```python
import torch

def _softmax(x, axis=-1):
    return torch.softmax(x, dim=axis)
def _gelu(x):
    return torch.nn.functional.gelu(x, approximate="tanh")
def _silu(x):
    return torch.nn.functional.silu(x)
def _sigmoid(x):
    return torch.sigmoid(x)
def _layernorm(x, axis=-1, eps=1e-5):
    m = x.mean(dim=axis, keepdim=True)
    v = x.var(dim=axis, keepdim=True, unbiased=False)
    return (x - m) / torch.sqrt(v + eps)
def _scatter_add(tgt, idx, src, axis=0):
    return tgt.clone().index_add_(axis, idx, src)
def _segment_sum(src, seg, n):
    out = torch.zeros((n,) + src.shape[1:], dtype=src.dtype)
    return out.index_add_(0, seg, src)
def _pad(x, pw):
    flat = tuple(v for pair in reversed(pw) for v in pair)
    return torch.nn.functional.pad(x, flat)

kernel_name = 'interleave_layers__softmax_full_mha__glu_gated_reglu__prompt'

def setup_inputs():

    _w = (lambda a: (lambda t: t.to(torch.bfloat16) if t.is_floating_point() else t)(torch.as_tensor(a)))
    def _A_setup():
        B, S, D = 1, 2048, 512
        return {
            "x": _w((lambda *s: torch.randn(*s, dtype=torch.bfloat16) * 0.05)(B, S, D)),
            "wqkv": _w((lambda *s: torch.randn(*s, dtype=torch.bfloat16) * 0.05)(D, 3 * D)),
            "wo": _w((lambda *s: torch.randn(*s, dtype=torch.bfloat16) * 0.05)(D, D)),
        }
    _A_in = _A_setup()

    def _B_setup():
        B, S, D, F = 1, 2048, 512, 1792
        return {
            "x": _w((lambda *s: torch.randn(*s, dtype=torch.bfloat16) * 0.05)(B, S, D)),
            "W_gate": _w((lambda *s: torch.randn(*s, dtype=torch.bfloat16) * 0.4)(D, F) * (2.0 / D) ** 0.5),
            "W_up": _w((lambda *s: torch.randn(*s, dtype=torch.bfloat16) * 0.4)(D, F) * (2.0 / D) ** 0.5),
            "W_down": _w((lambda *s: torch.randn(*s, dtype=torch.bfloat16) * 0.4)(F, D) * (1.0 / F) ** 0.5),
        }
    _B_in = _B_setup()

    return {
        "A_x": _A_in["x"],
        "A_wqkv": _A_in["wqkv"],
        "A_wo": _A_in["wo"],
        "B_x": _B_in["x"],
        "B_W_gate": _B_in["W_gate"],
        "B_W_up": _B_in["W_up"],
        "B_W_down": _B_in["W_down"],
    }

def reference(A_x, A_wqkv, A_wo, B_x, B_W_gate, B_W_up, B_W_down):
    def _A_ref(x, wqkv, wo):
        B, S, D = x.shape
        H = 32; Dh = D // H
        qkv = (lambda x, *d: x.permute(*d))((x @ wqkv).reshape(B, S, 3, H, Dh), 2, 0, 3, 1, 4)
        q, k, v = qkv[0], qkv[1], qkv[2]
        scale = Dh ** -0.5
        scores = torch.einsum("bhqd,bhkd->bhqk", q, k) * scale
        p = _softmax(scores, axis=-1)
        o = torch.einsum("bhqk,bhkd->bhqd", p, v)
        return (lambda x, *d: x.permute(*d))(o, 0, 2, 1, 3).reshape(B, S, D) @ wo

    def _B_ref(x, W_gate, W_up, W_down):
        gate = torch.einsum("bsd,df->bsf", x, W_gate)
        up = torch.einsum("bsd,df->bsf", x, W_up)
        gate = gate * (lambda x, dt: x.to(dt))(gate > 0, gate.dtype)
        h = gate * up
        return torch.einsum("bsf,fd->bsd", h, W_down)

    x = A_x
    x = x + _A_ref(_layernorm(x, axis=-1), A_wqkv, A_wo)
    x = x + _B_ref(_layernorm(x, axis=-1), B_W_gate, B_W_up, B_W_down)
    x = x + _A_ref(_layernorm(x, axis=-1), A_wqkv, A_wo)
    x = x + _B_ref(_layernorm(x, axis=-1), B_W_gate, B_W_up, B_W_down)
    return x
```

```python
class Asm:
    def __init__(self):
        self.lines = []
        self.uid = 0
    def __call__(self, s):
        for l in s.strip("\n").split("\n"):
            self.lines.append("    " + l.strip())
    def label(self, l):
        self.lines.append(l + ":")
    def newlabel(self, p="L"):
        self.uid += 1
        return f"{p}_{self.uid}"
    def text(self):
        return "\n".join(self.lines) + "\n"

def vr(b, n=1):
    return f"v{b}" if n == 1 else f"v[{b}:{b+n-1}]"
def sr(b, n=1):
    return f"s{b}" if n == 1 else f"s[{b}:{b+n-1}]"

MB = 1 << 20
WS_Q = 0
WS_K = 2 * MB
WS_V = 4 * MB
WS_KMAX = 6 * MB
WS_O = 8 * MB
WS_X1 = 10 * MB
WS_X2 = 12 * MB
WS_H = 16 * MB
WS_SIZE = 32 * MB

KA_X, KA_WQKV, KA_WO, KA_BX, KA_WG, KA_WU, KA_WD, KA_OUT, KA_DBG, KA_WS = [8 * i for i in range(10)]

def kernel_header(name):
    return f""".globl {name}
.p2align 8
.type {name},@function
{name}:
"""

def kernel_desc(name, vgpr, sgpr=96, accum=None):
    if accum is None:
        accum = (vgpr + 3) // 4 * 4
    return f""".p2align 6
.amdhsa_kernel {name}
  .amdhsa_next_free_vgpr {vgpr}
  .amdhsa_next_free_sgpr {sgpr}
  .amdhsa_accum_offset {accum}
  .amdhsa_group_segment_fixed_size 0
  .amdhsa_kernarg_size 80
  .amdhsa_user_sgpr_count 2
  .amdhsa_user_sgpr_kernarg_segment_ptr 1
  .amdhsa_system_sgpr_workgroup_id_x 1
  .amdhsa_float_denorm_mode_32 3
.end_amdhsa_kernel
"""

def make_srd(a, s, ptr, size):
    a(f"""s_mov_b32 s{s}, s{ptr}
    s_and_b32 s{s+1}, s{ptr+1}, 0xffff
    s_mov_b32 s{s+2}, {size}
    s_mov_b32 s{s+3}, 0x00020000""")

def f32bits(x):
    import struct
    return struct.unpack("<I", struct.pack("<f", x))[0]
```

```python
from common import *

def gen_attn(name):
    a = Asm()
    O = 0; CM = 16; S = [32, 48]; P = 64; KF = [72, 76]; VF = [80, 88]; QF = 96
    VKA = 100; VVA = 101; VLANE = 102; T = 104
    X_OFF = 131072; FLAG_OFF = X_OFF + 24576
    LDS = FLAG_OFF + 16
    sWS = 12
    sHEAD, sQB, sWAVE, sQT, sKH, sRG, sSECOND = 24, 25, 26, 27, 28, 29, 30
    sVM = 32
    NT = 32
    end = f"{name}_end"
    a(f"""s_cmp_ge_u32 s2, 256
    s_cbranch_scc1 {end}
    s_load_dwordx2 s[8:9], s[0:1], {KA_WS}
    v_and_b32 v{VLANE}, 63, v0
    v_lshrrev_b32 v{T}, 6, v0
    s_and_b32 s34, s2, 7
    s_lshr_b32 s35, s2, 3
    v_readfirstlane_b32 s{sWAVE}, v{T}
    s_lshl_b32 s{sHEAD}, s34, 2
    s_and_b32 s36, s35, 3
    s_add_u32 s{sHEAD}, s{sHEAD}, s36
    s_lshr_b32 s{sQB}, s35, 2
    s_and_b32 s{sQT}, s{sWAVE}, 7
    s_lshr_b32 s{sKH}, s{sWAVE}, 3
    s_lshl_b32 s{sRG}, s{sQB}, 3
    s_add_u32 s{sRG}, s{sRG}, s{sQT}
    s_mov_b32 s{sSECOND}, 0
    s_mov_b32 s{sVM}, 0xffff
    s_mov_b32 s{sVM+1}, 0xffff
    v_lshlrev_b32 v{T}, 4, v{VLANE}
    v_lshlrev_b32 v{T+1}, 3, v{VLANE}
    s_waitcnt lgkmcnt(0)""")
    make_srd(a, sWS, 8, WS_SIZE)
    a(f"""s_lshl_b32 s36, s{sHEAD}, 16
    s_lshl_b32 s37, s{sRG}, 10
    s_add_u32 s37, s37, s36
    buffer_load_dwordx4 v[{QF}:{QF+3}], v{T}, s[{sWS}:{sWS+3}], s37 offen
    s_lshl_b32 s38, s{sHEAD}, 9
    s_add_u32 s38, s38, {WS_KMAX}
    buffer_load_dwordx2 v[{T+2}:{T+3}], v{T+1}, s[{sWS}:{sWS+3}], s38 offen""")
    a(f"""s_and_b32 s39, s{sWAVE}, 1
    s_bfe_u32 s40, s{sWAVE}, 0x10001
    s_lshr_b32 s41, s{sWAVE}, 2
    s_lshl_b32 s42, s40, 15
    s_lshl_b32 s43, s41, 10
    s_add_u32 s42, s42, s43
    s_lshl_b32 s43, s39, 16
    s_add_u32 s43, s43, s42
    s_lshl_b32 s44, s39, 21
    s_add_u32 s44, s44, s42
    s_add_u32 s44, s44, s36
    s_add_u32 s44, s44, {WS_K}""")
    for i in range(8):
        a(f"""s_mov_b32 m0, s43
        s_add_u32 s43, s43, 4096
        buffer_load_dwordx4 v{T}, s[{sWS}:{sWS+3}], s44 offen lds
        s_add_u32 s44, s44, 4096""")
    a(f"""s_lshl_b32 s45, s{sKH}, 15
    v_add_u32 v{VKA}, s45, v{T}
    v_lshrrev_b32 v{T+4}, 5, v{VLANE}
    v_lshlrev_b32 v{T+4}, 8, v{T+4}
    v_and_b32 v{T+5}, 15, v{VLANE}
    v_lshlrev_b32 v{T+5}, 4, v{T+5}
    s_add_u32 s45, s45, 65536
    v_add3_u32 v{VVA}, v{T+4}, v{T+5}, s45""")
    for i in range(16):
        a(f"v_mov_b32 v{VF[0]+i}, 0x3f803f80")
    a(f"""v_mov_b32 v{T+4}, 0
    v_mov_b32 v{T+5}, {FLAG_OFF}
    ds_write_b32 v{T+5}, v{T+4}
    s_waitcnt vmcnt(8)
    v_max_f32 v{T+2}, v{T+2}, v{T+3}
    v_mov_b32 v{T+6}, 0""")
    for i in range(4):
        a(f"v_dot2c_f32_bf16 v{T+6}, v{QF+i}, v{QF+i}")
    for dpp in ("quad_perm:[1,0,3,2]", "quad_perm:[2,3,0,1]", "row_half_mirror", "row_mirror"):
        a(f"""s_nop 1
        v_max_f32_dpp v{T+2}, v{T+2}, v{T+2} {dpp} row_mask:0xf bank_mask:0xf""")
    a(f"""v_mov_b32 v{T+7}, v{T+6}
    s_nop 1
    v_permlane32_swap_b32 v{T+6}, v{T+7}
    v_readlane_b32 s46, v{T+2}, 0
    v_readlane_b32 s47, v{T+2}, 16
    v_readlane_b32 s48, v{T+2}, 32
    v_readlane_b32 s49, v{T+2}, 48
    v_add_f32 v{T+6}, v{T+6}, v{T+7}
    s_max_u32 s46, s46, s47
    s_max_u32 s48, s48, s49
    s_max_u32 s46, s46, s48
    s_nop 1
    v_mul_f32 v{T+6}, s46, v{T+6}
    v_sqrt_f32 v{T+6}, v{T+6}
    s_nop 0
    v_mul_f32 v{T+6}, {hex(f32bits(-(1.0 + 2.0**-7)))}, v{T+6}""")
    for i in range(16):
        a(f"v_mov_b32 v{CM+i}, v{T+6}")
    a("s_waitcnt vmcnt(6) lgkmcnt(0)\ns_barrier")
    main = f"{name}_main"
    a.label(main)
    def kread(t):
        a(f"ds_read_b128 {vr(KF[t%2],4)}, v{VKA} offset:{t*1024}")
    def vread(t):
        a(f"""s_mov_b64 exec, s[{sVM}:{sVM+1}]
        ds_read_b128 {vr(VF[t%2],4)}, v{VVA} offset:{t*1024}
        ds_read_b128 {vr(VF[t%2]+4,4)}, v{VVA} offset:{t*1024+512}
        s_mov_b64 exec, -1""")
    def smfma(t):
        a(f"v_mfma_f32_32x32x16_bf16 {vr(S[t%2],16)}, {vr(KF[t%2],4)}, {vr(QF,4)}, {vr(CM,16)}")
    kread(0); kread(1); vread(0)
    a("s_waitcnt lgkmcnt(3)")
    smfma(0)
    a("s_nop 7")
    for t in range(NT):
        if t == 6:
            a("s_waitcnt vmcnt(0)\ns_barrier")
        a("s_waitcnt lgkmcnt(0)")
        if t + 1 < NT:
            smfma(t + 1)
        if t + 2 < NT:
            kread(t + 2)
        if t + 1 < NT:
            vread(t + 1)
        s = S[t % 2]
        vf = VF[t % 2]
        for half in range(2):
            for i in range(8):
                a(f"v_exp_f32 v{s+8*half+i}, v{s+8*half+i}")
            for i in range(4):
                a(f"v_cvt_pk_bf16_f32 v{P+4*half+i}, v{s+8*half+2*i}, v{s+8*half+2*i+1}")
            if half == 1:
                c0 = "0" if t == 0 else vr(O, 16)
                a(f"v_mfma_f32_32x32x16_bf16 {vr(O,16)}, {vr(vf,4)}, {vr(P,4)}, {c0}")
                a("s_nop 0")
                a(f"v_mfma_f32_32x32x16_bf16 {vr(O,16)}, {vr(vf+4,4)}, {vr(P+4,4)}, {vr(O,16)}")
    noflag = f"{name}_noflag"
    a(f"""s_lshl_b32 s36, s{sQT}, 10
    s_mul_i32 s36, s36, 3
    s_add_u32 s36, s36, {X_OFF}
    v_lshl_add_u32 v{T}, v{VLANE}, 4, s36
    v_mov_b32 v{T+5}, {FLAG_OFF}
    v_mov_b32 v{T+4}, 1
    s_mov_b32 s37, {hex(f32bits(2.0**-40))}
    s_nop 7
    s_nop 3
    v_cmp_nge_f32 vcc, v{O+8}, s37
    s_cmp_lg_u32 s{sSECOND}, 0
    s_cbranch_scc1 {noflag}
    s_cbranch_vccz {noflag}
    ds_write_b32 v{T+5}, v{T+4}""")
    a.label(noflag)
    k0 = f"{name}_k0"
    a(f"""s_cmp_eq_u32 s{sKH}, 0
    s_cbranch_scc1 {k0}
    ds_write_b128 v{T}, v[{O}:{O+3}]
    ds_write_b128 v{T}, v[{O+4}:{O+7}] offset:1024
    ds_write_b128 v{T}, v[{O+8}:{O+11}] offset:2048""")
    a.label(k0)
    fb = f"{name}_fallback"
    a(f"""s_waitcnt lgkmcnt(0)
    s_barrier
    ds_read_b32 v{T+4}, v{T+5}
    ds_read_b128 v[{S[0]}:{S[0]+3}], v{T}
    ds_read_b128 v[{S[0]+4}:{S[0]+7}], v{T} offset:1024
    ds_read_b128 v[{S[0]+8}:{S[0]+11}], v{T} offset:2048
    s_waitcnt lgkmcnt(3)
    v_readfirstlane_b32 s38, v{T+4}
    s_nop 3
    s_andn2_b32 s38, s38, s{sSECOND}
    s_cmp_lg_u32 s38, 0
    s_cbranch_scc1 {fb}
    s_cmp_lg_u32 s{sKH}, 0
    s_cbranch_scc1 {end}
    s_waitcnt lgkmcnt(0)
    v_add_f32 v{O+8}, v{O+8}, v{S[0]+8}
    v_rcp_f32 v{O+8}, v{O+8}""")
    for i in range(8):
        a(f"v_add_f32 v{O+i}, v{O+i}, v{S[0]+i}")
    for i in range(8):
        a(f"v_mul_f32 v{O+i}, v{O+i}, v{O+8}")
    for i in range(4):
        a(f"v_cvt_pk_bf16_f32 v{P+i}, v{O+2*i}, v{O+2*i+1}")
    a(f"""s_lshl_b32 s36, s{sRG}, 15
    s_lshl_b32 s37, s{sHEAD}, 10
    s_add_u32 s36, s36, s37
    s_add_u32 s36, s36, {WS_O}
    v_lshlrev_b32 v{T}, 4, v{VLANE}
    buffer_store_dwordx4 v[{P}:{P+3}], v{T}, s[{sWS}:{sWS+3}], s36 offen""")
    a.label(end)
    a("s_endpgm")
    a.label(fb)
    loop = f"{name}_fbloop"
    MX = T + 8
    a(f"""s_waitcnt lgkmcnt(0)
    s_mov_b32 s{sSECOND}, 1
    s_barrier
    v_mov_b32 v{MX}, 0xff800000
    v_mov_b32 v{T+9}, v{VKA}
    s_mov_b32 s38, 0""")
    a.label(loop)
    a(f"""ds_read_b128 {vr(KF[0],4)}, v{T+9}
    v_add_u32 v{T+9}, 1024, v{T+9}
    s_waitcnt lgkmcnt(0)
    v_mfma_f32_32x32x16_bf16 {vr(S[0],16)}, {vr(KF[0],4)}, {vr(QF,4)}, 0
    s_nop 15
    s_nop 3""")
    for i in range(8):
        a(f"v_max3_f32 v{MX}, v{S[0]+2*i}, v{S[0]+2*i+1}, v{MX}")
    a(f"""s_add_u32 s38, s38, 1
    s_cmp_lt_u32 s38, {NT}
    s_cbranch_scc1 {loop}
    v_mov_b32 v{T+10}, v{MX}
    s_nop 1
    v_permlane32_swap_b32 v{MX}, v{T+10}
    s_nop 1
    v_max_f32 v{MX}, v{MX}, v{T+10}
    s_lshl_b32 s36, s{sQT}, 9
    s_add_u32 s36, s36, {X_OFF}
    v_lshl_add_u32 v{T+11}, v{VLANE}, 2, s36
    s_lshl_b32 s37, s{sKH}, 8
    v_add_u32 v{T+12}, s37, v{T+11}
    ds_write_b32 v{T+12}, v{MX}
    s_waitcnt lgkmcnt(0)
    s_barrier
    ds_read_b32 v{T+12}, v{T+11}
    ds_read_b32 v{T+13}, v{T+11} offset:256
    s_waitcnt lgkmcnt(0)
    v_max_f32 v{MX}, v{T+12}, v{T+13}
    v_sub_f32 v{MX}, 0, v{MX}""")
    for i in range(16):
        a(f"v_mov_b32 v{CM+i}, v{MX}")
    a(f"""s_barrier
    s_branch {main}""")
    return kernel_header(name) + a.text(), kernel_desc(name, 128), LDS
```

```python
from common import *
from k_qkv import emit_stats_final

class VmTracker:
    def __init__(self): self.ops = []
    def issue(self, tag): self.ops.append(tag)
    def wait_for(self, tags):
        last = max(i for i, t in enumerate(self.ops) if t in tags)
        return len(self.ops) - 1 - last

def gen_ffn1(name, xoff=WS_X1):
    a = Asm()
    NTL = 7
    ACC = 0; BF = 112; AR = 140; AD = 16
    ST1 = 204; ST2 = 208; CS = 212; VLANE = 219; VTRB = 220; VTR = 221; VDMA = 222; VA = 229; T = 230
    R = 5; SLOT = 29184; GRP = 14592; MAT = 7296
    CS_OFF = R * SLOT; CT_OFF = CS_OFF + 7168
    LDS = CT_OFF + 3584
    sW, sWS = 12, 16
    sRB, sCB, sWAVE, sRG = 24, 25, 26, 27
    sBLK, sWOFF, sAOFF, sONES = 28, 29, 30, 31
    end = f"{name}_end"
    a(f"""s_cmp_ge_u32 s2, 256
    s_cbranch_scc1 {end}
    s_load_dwordx4 s[4:7], s[0:1], {KA_WG}
    s_load_dwordx2 s[8:9], s[0:1], {KA_WS}
    v_and_b32 v{VLANE}, 63, v0
    v_lshrrev_b32 v{T}, 6, v0
    s_and_b32 s34, s2, 7
    s_lshr_b32 s35, s2, 3
    v_readfirstlane_b32 s{sWAVE}, v{T}
    s_and_b32 s{sRB}, s34, 1
    s_lshl_b32 s{sRB}, s{sRB}, 3
    s_and_b32 s36, s35, 7
    s_add_u32 s{sRB}, s{sRB}, s36
    s_lshr_b32 s{sCB}, s34, 1
    s_lshl_b32 s{sCB}, s{sCB}, 2
    s_lshr_b32 s36, s35, 3
    s_add_u32 s{sCB}, s{sCB}, s36
    s_lshl_b32 s{sRG}, s{sRB}, 2
    s_add_u32 s{sRG}, s{sRG}, s{sWAVE}
    s_mov_b32 s{sONES}, 0x3f803f80
    v_lshlrev_b32 v{VA}, 4, v{VLANE}""")
    for j in range(7):
        a(f"""v_add_u32 v{T}, {64*j}, v{VLANE}
        v_mul_u32_u24 v{T+1}, 4682, v{T}
        v_lshrrev_b32 v{T+1}, 16, v{T+1}
        v_mul_u32_u24 v{T+2}, 14, v{T+1}
        v_sub_u32 v{T+2}, v{T}, v{T+2}
        v_mul_u32_u24 v{T+1}, 3584, v{T+1}
        v_lshl_add_u32 v{VDMA+j}, v{T+2}, 4, v{T+1}""")
        if j % 4:
            a(f"v_subrev_u32 v{VDMA+j}, {1024*(j%4)}, v{VDMA+j}")
    a(f"""v_lshrrev_b32 v{T}, 5, v{VLANE}
    v_lshlrev_b32 v{T}, 2, v{T}
    v_bfe_u32 v{T+1}, v{VLANE}, 2, 2
    v_add_u32 v{T}, v{T}, v{T+1}
    v_mul_u32_u24 v{T}, 224, v{T}
    v_bfe_u32 v{T+1}, v{VLANE}, 4, 1
    v_mul_u32_u24 v{T+1}, {MAT}, v{T+1}
    v_and_b32 v{T+2}, 3, v{VLANE}
    v_lshlrev_b32 v{T+2}, 3, v{T+2}
    v_add3_u32 v{VTRB}, v{T}, v{T+1}, v{T+2}
    v_mov_b32 v{VTR}, v{VTRB}""")
    for i in range(4):
        a(f"v_mov_b32 v{ST1+i}, 0\nv_mov_b32 v{ST2+i}, 0")
    for i in range(NTL):
        a(f"v_mov_b32 v{CS+i}, 0")
    a(f"""s_and_b32 s36, s{sWAVE}, 1
    s_lshr_b32 s37, s{sWAVE}, 1
    s_mul_i32 s{sBLK}, s37, {GRP}
    s_mul_i32 s38, s36, {MAT}
    s_add_u32 s{sBLK}, s{sBLK}, s38
    s_mul_i32 s{sWOFF}, s37, {32*3584}
    s_mul_i32 s38, s{sCB}, 224
    s_add_u32 s{sWOFF}, s{sWOFF}, s38
    s_lshl_b32 s{sAOFF}, s{sRG}, 15
    s_add_u32 s{sAOFF}, s{sAOFF}, {xoff}
    s_waitcnt lgkmcnt(0)
    s_cmp_eq_u32 s36, 0
    s_cselect_b32 s10, s4, s6
    s_cselect_b32 s11, s5, s7""")
    make_srd(a, sW, 10, 512 * 1792 * 2)
    make_srd(a, sWS, 8, WS_SIZE)
    vm = VmTracker()
    def dma(c, track=True):
        slot = c % R
        a(f"s_add_u32 m0, s{sBLK}, {slot*SLOT}")
        a("s_nop 0")
        for j in range(4):
            a(f"buffer_load_dwordx4 v{VDMA+j}, s[{sW}:{sW+3}], s{sWOFF} offen offset:{1024*j} lds")
        a(f"s_add_u32 m0, s{sBLK}, {slot*SLOT+4096}")
        a("s_nop 0")
        for j in range(4, 7):
            a(f"buffer_load_dwordx4 v{VDMA+j}, s[{sW}:{sW+3}], s{sWOFF} offen offset:{1024*(j-4)} lds")
        a(f"s_add_u32 s{sWOFF}, s{sWOFF}, {64*3584}")
        if track:
            for j in range(7): vm.issue(("B", c))
    def aload(s, track=True):
        r = AR + 4 * (s % AD)
        a(f"buffer_load_dwordx4 v[{r}:{r+3}], v{VA}, s[{sWS}:{sWS+3}], s{sAOFF} offen offset:{(s%4)*1024}")
        if s % 4 == 3:
            a(f"s_add_u32 s{sAOFF}, s{sAOFF}, 4096")
        if track: vm.issue(("A", s))
    for c in range(R):
        dma(c)
        if c < 4:
            for q in range(4): aload(4 * c + q)
    def read(s, t):
        q = s % 4
        off = (q // 2) * GRP + (q % 2) * 3584 + 32 * t
        a(f"ds_read_b64_tr_b16 v[{BF+4*t}:{BF+4*t+1}], v{VTR} offset:{off}")
        a(f"ds_read_b64_tr_b16 v[{BF+4*t+2}:{BF+4*t+3}], v{VTR} offset:{off+8*224}")
    a(f"s_waitcnt vmcnt({vm.wait_for({('B',0)})})\ns_barrier")
    for t in range(NTL): read(0, t)
    def kstep(s, with_cs, track):
        af = AR + 4 * (s % AD)
        st = []
        for i in range(4):
            st.append(f"v_dot2c_f32_bf16 v{ST1+i}, s{sONES}, v{af+i}")
            st.append(f"v_dot2c_f32_bf16 v{ST2+i}, v{af+i}, v{af+i}")
        for t in range(NTL):
            lastk = (s == 31)
            n = (2 * (NTL - 1 - t)) if lastk else 12
            if t == 0:
                a(f"s_waitcnt vmcnt({wA}) lgkmcnt({n})")
            else:
                a(f"s_waitcnt lgkmcnt({n})")
            c = "0" if s == 0 else vr(ACC + 16 * t, 16)
            a(f"v_mfma_f32_32x32x16_bf16 {vr(ACC+16*t,16)}, {vr(BF+4*t,4)}, {vr(af,4)}, {c}")
            if with_cs:
                for i in range(4):
                    a(f"v_dot2c_f32_bf16 v{CS+t}, s{sONES}, v{BF+4*t+i}")
            if t == 0 and (s + 1) % 4 == 0 and s + 1 < 32:
                cn = (s + 1) // 4
                a(f"s_waitcnt vmcnt({wB})\ns_barrier")
                a(f"v_add_u32 v{VTR}, {(cn % R)*SLOT}, v{VTRB}")
                cnext = cn - 2 + R
                if cnext < 8 and cn >= 2:
                    dma(cnext, track)
            if not lastk:
                read(s + 1, t)
            if st and t >= 1:
                a(st.pop(0))
                if t >= 5: a(st.pop(0))
        while st: a(st.pop(0))
        if s + AD < 32:
            aload(s + AD, track)
    for s in range(32):
        wA = vm.wait_for({("A", s)})
        if (s + 1) % 4 == 0 and s + 1 < 32:
            wB = vm.wait_for({("B", (s + 1) // 4)})
        lcs = a.newlabel(name + "_cs"); lnx = a.newlabel(name + "_nx")
        a(f"s_cmp_eq_u32 s{sWAVE}, {s%4}\ns_cbranch_scc1 {lcs}")
        kstep(s, False, False)
        a(f"s_branch {lnx}")
        a.label(lcs)
        kstep(s, True, True)
        a.label(lnx)
    vMEAN, vRSTD = T, T + 1
    E = AR
    a("s_nop 3")
    a(f"""v_and_b32 v{T+2}, 31, v{VLANE}
    v_lshlrev_b32 v{T+3}, 5, v{T+2}
    v_lshrrev_b32 v{T+4}, 5, v{VLANE}
    v_lshlrev_b32 v{T+5}, 2, v{T+4}
    s_lshl_b32 s34, s{sWAVE}, 3
    v_add3_u32 v{T+5}, v{T+3}, v{T+5}, s34
    v_add_u32 v{T+5}, {CS_OFF}, v{T+5}""")
    for t in range(NTL):
        a(f"ds_write_b32 v{T+5}, v{CS+t} offset:{t*1024}")
    a(f"""v_add_u32 v{T+3}, {CS_OFF}, v{T+3}
    s_waitcnt lgkmcnt(0)
    s_barrier""")
    for t in range(NTL):
        a(f"ds_read_b128 v[{E+8*t}:{E+8*t+3}], v{T+3} offset:{t*1024}")
        a(f"ds_read_b128 v[{E+8*t+4}:{E+8*t+7}], v{T+3} offset:{t*1024+16}")
    emit_stats_final(a, ST1, ST2, BF, vMEAN, vRSTD)
    NM = T + 6; R2 = T + 8
    a(f"""v_sub_f32 v{NM}, 0, v{vMEAN}
    v_sub_f32 v{NM+1}, 0, v{vMEAN}
    v_mul_f32 v{R2}, v{vRSTD}, v{vRSTD}
    v_mul_f32 v{R2+1}, v{vRSTD}, v{vRSTD}
    s_mul_i32 s34, s{sWAVE}, 896
    s_add_u32 s36, s34, {CT_OFF}
    v_lshl_add_u32 v{T+10}, v{T+2}, 2, s36
    v_lshl_add_u32 v{T+11}, v{T+4}, 4, s36""")
    for t in range(NTL):
        b = E + 8 * t
        a(f"""s_waitcnt lgkmcnt({2*(NTL-1-t) + t})
        v_pk_add_f32 v[{b}:{b+1}], v[{b}:{b+1}], v[{b+2}:{b+3}]
        v_pk_add_f32 v[{b+4}:{b+5}], v[{b+4}:{b+5}], v[{b+6}:{b+7}]
        v_pk_add_f32 v[{b}:{b+1}], v[{b}:{b+1}], v[{b+4}:{b+5}]
        v_add_f32 v{b}, v{b}, v{b+1}
        ds_write_b32 v{T+10}, v{b} offset:{128*t}""")
    a(f"""s_mul_i32 s37, s{sRG}, {112*1024}
    s_mul_i32 s38, s{sCB}, {7*1024}
    s_add_u32 s37, s37, s38
    s_add_u32 s37, s37, {WS_H}
    s_add_u32 s38, s37, 4096
    s_waitcnt lgkmcnt(0)""")
    def csread(t):
        cb = E + 16 * (t % 3)
        for g in range(4):
            a(f"ds_read_b128 v[{cb+4*g}:{cb+4*g+3}], v{T+11} offset:{128*t+32*g}")
    csread(0); csread(1)
    for t in range(NTL):
        if t + 2 < NTL:
            csread(t + 2)
        nout = 4 * (min(t + 2, NTL - 1) - t)
        a(f"s_waitcnt lgkmcnt({nout})")
        cb = E + 16 * (t % 3)
        ac = ACC + 16 * t
        for i in range(8):
            a(f"v_pk_fma_f32 v[{ac+2*i}:{ac+2*i+1}], v[{NM}:{NM+1}], v[{cb+2*i}:{cb+2*i+1}], v[{ac+2*i}:{ac+2*i+1}]")
        for i in range(8):
            a(f"v_max_f32 v{ac+i}, 0, v{ac+i}")
        for i in range(4):
            a(f"v_pk_mul_f32 v[{ac+8+2*i}:{ac+8+2*i+1}], v[{ac+8+2*i}:{ac+8+2*i+1}], v[{R2}:{R2+1}]")
        for i in range(4):
            a(f"v_pk_mul_f32 v[{ac+2*i}:{ac+2*i+1}], v[{ac+2*i}:{ac+2*i+1}], v[{ac+8+2*i}:{ac+8+2*i+1}]")
        for i in range(4):
            a(f"v_cvt_pk_bf16_f32 v{ac+8+i}, v{ac+2*i}, v{ac+2*i+1}")
        so = 37 if t < 4 else 38
        a(f"buffer_store_dwordx4 v[{ac+8}:{ac+11}], v{VA}, s[{sWS}:{sWS+3}], s{so} offen offset:{(t%4)*1024}")
    a.label(end)
    a("s_endpgm")
    return kernel_header(name) + a.text(), kernel_desc(name, 256), LDS
```

```python
from common import *

def gen_proj(name, KS, a_off, ka_w, res, out, D=None):
    a = Asm()
    KW = KS // 4
    if D is None:
        D = min(KW, 14)
    ACC = 0; BF = 64; RES = 80; VLANE = 88; VTR = [89, 90]; VDMA = 91; VA = 92; T = 94
    AR = 112
    assert AR + D * 8 <= 256
    RING = D * 2048
    LDS = 4 * RING
    sW, sWS, sX = 12, 16, 20
    sRB, sCB, sWAVE = 24, 25, 26
    sA0, sA1, sW0, sW1, sM0base = 28, 29, 30, 31, 32
    ARG = KS * 1024
    end = f"{name}_end"
    a(f"""s_cmp_ge_u32 s2, 256
    s_cbranch_scc1 {end}
    s_load_dwordx2 s[6:7], s[0:1], {ka_w}
    s_load_dwordx2 s[8:9], s[0:1], {KA_WS}""")
    if res == 'nat':
        a(f"s_load_dwordx2 s[4:5], s[0:1], {KA_X}")
    if out == 'nat':
        a(f"s_load_dwordx2 s[4:5], s[0:1], {KA_OUT}")
    a(f"""v_and_b32 v{VLANE}, 63, v0
    v_lshrrev_b32 v{T}, 6, v0
    s_and_b32 s34, s2, 7
    s_lshr_b32 s35, s2, 3
    v_readfirstlane_b32 s{sWAVE}, v{T}
    s_lshl_b32 s{sRB}, s34, 2
    s_and_b32 s36, s35, 3
    s_add_u32 s{sRB}, s{sRB}, s36
    s_lshr_b32 s{sCB}, s35, 2
    v_lshlrev_b32 v{VA}, 4, v{VLANE}""")
    a(f"""v_lshrrev_b32 v{T}, 3, v{VLANE}
    v_and_b32 v{T+1}, 7, v{VLANE}
    v_bfe_u32 v{T+2}, v{VLANE}, 4, 1
    v_lshlrev_b32 v{T+2}, 2, v{T+2}
    v_xor_b32 v{T+1}, v{T+1}, v{T+2}
    v_lshlrev_b32 v{T+1}, 4, v{T+1}
    v_lshl_add_u32 v{VDMA}, v{T}, 10, v{T+1}""")
    a(f"""v_lshrrev_b32 v{T}, 5, v{VLANE}
    v_lshlrev_b32 v{T}, 2, v{T}
    v_bfe_u32 v{T+1}, v{VLANE}, 2, 2
    v_add_u32 v{T}, v{T}, v{T+1}
    v_lshlrev_b32 v{T}, 7, v{T}
    v_bfe_u32 v{T+1}, v{VLANE}, 4, 1
    v_lshlrev_b32 v{T+1}, 5, v{T+1}
    v_and_b32 v{T+2}, 3, v{VLANE}
    v_lshlrev_b32 v{T+2}, 3, v{T+2}
    v_bfe_u32 v{T+3}, v{VLANE}, 3, 1
    v_lshlrev_b32 v{T+3}, 6, v{T+3}
    v_add3_u32 v{T}, v{T}, v{T+1}, v{T+2}
    v_add_u32 v{T}, v{T}, v{T+3}
    s_mul_i32 s{sM0base}, s{sWAVE}, {RING}
    s_lshr_b32 s36, s{sWAVE}, 1
    s_lshl_b32 s36, s36, 6
    v_xor_b32 v{T}, s36, v{T}
    v_add_u32 v{VTR[0]}, s{sM0base}, v{T}
    v_xor_b32 v{T}, 64, v{T}
    v_add_u32 v{VTR[1]}, s{sM0base}, v{T}""")
    a(f"""s_and_b32 s36, s{sWAVE}, 1
    s_lshl_b32 s37, s{sRB}, 1
    s_add_u32 s38, s37, s36
    s_xor_b32 s39, s38, 1
    s_mul_i32 s{sA0}, s38, {ARG}
    s_mul_i32 s{sA1}, s39, {ARG}
    s_mul_i32 s40, s{sWAVE}, {KW*1024}
    s_add_u32 s40, s40, {a_off}
    s_add_u32 s{sA0}, s{sA0}, s40
    s_add_u32 s{sA1}, s{sA1}, s40
    s_mul_i32 s{sW0}, s{sWAVE}, {KW*16384}
    s_lshl_b32 s40, s{sCB}, 7
    s_add_u32 s{sW0}, s{sW0}, s40
    s_add_u32 s{sW1}, s{sW0}, 7168
    s_waitcnt lgkmcnt(0)""")
    make_srd(a, sW, 6, KS * 16 * 1024)
    make_srd(a, sWS, 8, WS_SIZE)
    if res == 'nat' or out == 'nat':
        make_srd(a, sX, 4, 2048 * 1024)
    a(f"""s_lshl_b32 s41, s38, 15
    s_lshr_b32 s42, s{sWAVE}, 1
    s_lshl_b32 s43, s42, 6
    s_add_u32 s43, s43, s40
    s_add_u32 s43, s43, s41
    s_lshl_b32 s44, s{sCB}, 12
    s_lshl_b32 s45, s42, 11
    s_add_u32 s44, s44, s45
    s_add_u32 s44, s44, s41""")
    nres = 0
    if res == 'nat':
        a(f"""v_and_b32 v{T}, 31, v{VLANE}
        v_lshlrev_b32 v{T}, 10, v{T}
        v_lshrrev_b32 v{T+1}, 5, v{VLANE}
        v_lshl_add_u32 v{T}, v{T+1}, 3, v{T}""")
        for g in range(4):
            a(f"buffer_load_dwordx2 v[{RES+2*g}:{RES+2*g+1}], v{T}, s[{sX}:{sX+3}], s43 offen offset:{16*g}")
        nres = 4
    else:
        a(f"""s_add_u32 s45, s44, {res}
        buffer_load_dwordx4 v[{RES}:{RES+3}], v{VA}, s[{sWS}:{sWS+3}], s45 offen
        buffer_load_dwordx4 v[{RES+4}:{RES+7}], v{VA}, s[{sWS}:{sWS+3}], s45 offen offset:1024""")
        nres = 2
    def loads(s):
        slot = s % D
        a(f"s_add_u32 m0, s{sM0base}, {slot*2048}")
        a(f"buffer_load_dwordx4 v[{AR+8*slot}:{AR+8*slot+3}], v{VA}, s[{sWS}:{sWS+3}], s{sA0} offen offset:{(s%4)*1024}")
        a(f"buffer_load_dwordx4 v{VDMA}, s[{sW}:{sW+3}], s{sW0} offen lds")
        a(f"buffer_load_dwordx4 v{VDMA}, s[{sW}:{sW+3}], s{sW1} offen offset:1024 lds")
        a(f"buffer_load_dwordx4 v[{AR+8*slot+4}:{AR+8*slot+7}], v{VA}, s[{sWS}:{sWS+3}], s{sA1} offen offset:{(s%4)*1024}")
        a(f"s_add_u32 s{sW0}, s{sW0}, 16384\ns_add_u32 s{sW1}, s{sW1}, 16384")
        if s % 4 == 3:
            a(f"s_add_u32 s{sA0}, s{sA0}, 4096\ns_add_u32 s{sA1}, s{sA1}, 4096")
    def reads(s):
        slot = s % D
        buf = BF + (s % 2) * 8
        for t in range(2):
            a(f"ds_read_b64_tr_b16 v[{buf+4*t}:{buf+4*t+1}], v{VTR[t]} offset:{slot*2048}")
            a(f"ds_read_b64_tr_b16 v[{buf+4*t+2}:{buf+4*t+3}], v{VTR[t]} offset:{slot*2048+1024}")
    for s in range(D):
        loads(s)
    last = D - 1
    a(f"s_waitcnt vmcnt({4*(last-0)})")
    reads(0)
    for s in range(KW):
        if s + 1 < KW:
            a(f"s_waitcnt vmcnt({4*(last-(s+1))})")
            reads(s + 1)
            a("s_waitcnt lgkmcnt(4)")
        else:
            a("s_waitcnt lgkmcnt(0)")
        buf = BF + (s % 2) * 8
        ar = AR + 8 * (s % D)
        for i in range(4):
            t, g = i >> 1, i & 1
            c = "0" if s == 0 else vr(ACC + 16 * i, 16)
            a(f"v_mfma_f32_32x32x16_bf16 {vr(ACC+16*i,16)}, {vr(buf+4*t,4)}, {vr(ar+4*g,4)}, {c}")
        if s + D < KW:
            loads(s + D)
            last = s + D
    a(f"v_add_u32 v{T}, s{sM0base}, v{VA}")
    for i in range(1, 4):
        a(f"""s_xor_b32 s46, s{sWAVE}, {i}
        s_mul_i32 s46, s46, {RING}
        v_add_u32 v{T+i}, s46, v{VA}""")
    a("s_nop 7\ns_nop 3")
    for i in range(1, 4):
        for q in range(4):
            a(f"ds_write_b128 v{T}, v[{ACC+16*i+4*q}:{ACC+16*i+4*q+3}] offset:{i*4096+q*1024}")
    a("s_waitcnt lgkmcnt(0)\ns_barrier")
    for i in range(1, 4):
        for q in range(4):
            a(f"ds_read_b128 v[{ACC+16*i+4*q}:{ACC+16*i+4*q+3}], v{T+i} offset:{i*4096+q*1024}")
    U = AR
    a("s_mov_b32 s47, 0xffff0000")
    for i in range(8):
        a(f"v_lshlrev_b32 v{U+2*i}, 16, v{RES+i}\nv_and_b32 v{U+2*i+1}, s47, v{RES+i}")
    for i in range(16):
        a(f"v_add_f32 v{ACC+i}, v{ACC+i}, v{U+i}")
    for i in range(1, 4):
        a(f"s_waitcnt lgkmcnt({4*(3-i)})")
        for j in range(16):
            a(f"v_add_f32 v{ACC+j}, v{ACC+j}, v{ACC+16*i+j}")
    PK = RES
    for i in range(8):
        a(f"v_cvt_pk_bf16_f32 v{PK+i}, v{ACC+2*i}, v{ACC+2*i+1}")
    if out == 'nat':
        a(f"""v_and_b32 v{T}, 31, v{VLANE}
        v_lshlrev_b32 v{T}, 10, v{T}
        v_lshrrev_b32 v{T+1}, 5, v{VLANE}
        v_lshl_add_u32 v{T}, v{T+1}, 4, v{T}
        v_permlane32_swap_b32 v{PK}, v{PK+2}
        v_permlane32_swap_b32 v{PK+1}, v{PK+3}
        v_permlane32_swap_b32 v{PK+4}, v{PK+6}
        v_permlane32_swap_b32 v{PK+5}, v{PK+7}
        s_nop 1
        buffer_store_dwordx4 v[{PK}:{PK+3}], v{T}, s[{sX}:{sX+3}], s43 offen
        buffer_store_dwordx4 v[{PK+4}:{PK+7}], v{T}, s[{sX}:{sX+3}], s43 offen offset:32""")
    else:
        a(f"""s_add_u32 s45, s44, {out}
        buffer_store_dwordx4 v[{PK}:{PK+3}], v{VA}, s[{sWS}:{sWS+3}], s45 offen
        buffer_store_dwordx4 v[{PK+4}:{PK+7}], v{VA}, s[{sWS}:{sWS+3}], s45 offen offset:1024""")
    a.label(end)
    a("s_endpgm")
    return kernel_header(name) + a.text(), kernel_desc(name, 256), LDS
```

```python
from common import *
import math

QSCALE = 0.25 * math.log2(math.e)

def emit_stats_final(a, ST1, ST2, T, vMEAN, vRSTD):
    for i in range(4):
        a(f"v_cvt_f64_f32 v[{T+2*i}:{T+2*i+1}], v{ST1+i}")
    for i in range(4):
        a(f"v_cvt_f64_f32 v[{T+8+2*i}:{T+8+2*i+1}], v{ST2+i}")
    a(f"""v_add_f64 v[{T}:{T+1}], v[{T}:{T+1}], v[{T+2}:{T+3}]
    v_add_f64 v[{T+4}:{T+5}], v[{T+4}:{T+5}], v[{T+6}:{T+7}]
    v_add_f64 v[{T+8}:{T+9}], v[{T+8}:{T+9}], v[{T+10}:{T+11}]
    v_add_f64 v[{T+12}:{T+13}], v[{T+12}:{T+13}], v[{T+14}:{T+15}]
    v_add_f64 v[{T}:{T+1}], v[{T}:{T+1}], v[{T+4}:{T+5}]
    v_add_f64 v[{T+8}:{T+9}], v[{T+8}:{T+9}], v[{T+12}:{T+13}]
    s_nop 1
    v_mov_b32 v{T+2}, v{T}
    v_mov_b32 v{T+3}, v{T+1}
    v_mov_b32 v{T+10}, v{T+8}
    v_mov_b32 v{T+11}, v{T+9}
    s_nop 1
    v_permlane32_swap_b32 v{T}, v{T+2}
    v_permlane32_swap_b32 v{T+1}, v{T+3}
    v_permlane32_swap_b32 v{T+8}, v{T+10}
    v_permlane32_swap_b32 v{T+9}, v{T+11}
    s_nop 1
    v_add_f64 v[{T}:{T+1}], v[{T}:{T+1}], v[{T+2}:{T+3}]
    v_add_f64 v[{T+8}:{T+9}], v[{T+8}:{T+9}], v[{T+10}:{T+11}]
    v_ldexp_f64 v[{T}:{T+1}], v[{T}:{T+1}], -9
    v_ldexp_f64 v[{T+8}:{T+9}], v[{T+8}:{T+9}], -9
    v_fma_f64 v[{T+8}:{T+9}], -v[{T}:{T+1}], v[{T}:{T+1}], v[{T+8}:{T+9}]
    v_cvt_f32_f64 v{vMEAN}, v[{T}:{T+1}]
    v_cvt_f32_f64 v{vRSTD}, v[{T+8}:{T+9}]
    v_max_f32 v{vRSTD}, 0, v{vRSTD}
    v_add_f32 v{vRSTD}, {hex(f32bits(1e-5))}, v{vRSTD}
    v_rsq_f32 v{vRSTD}, v{vRSTD}
    s_nop 0""")

def gen_qkv(name, natural, xoff=WS_X2):
    a = Asm()
    ACC = 0; BF = 48; ST1 = 72; ST2 = 76; CS = 80
    VLANE = 83; VTR0 = 84; VTR1 = 85; VDMA = 86; VAOFF = 89
    T = 92
    AP = 128
    CS_OFF = 98304; ST_OFF = CS_OFF + 3072; CT_OFF = ST_OFF + 1024
    LDS = CT_OFF + 1024
    sA, sW, sWS = 12, 16, 20
    sRB, sCB, sWAVE, sRG = 24, 25, 26, 27
    sM0, sWOFF, sAOFF, sONES = 30, 31, 32, 33
    end = f"{name}_end"
    a(f"""s_cmp_ge_u32 s2, 256
    s_cbranch_scc1 {end}
    s_load_dwordx2 s[4:5], s[0:1], {KA_X}
    s_load_dwordx2 s[6:7], s[0:1], {KA_WQKV}
    s_load_dwordx2 s[8:9], s[0:1], {KA_WS}
    v_and_b32 v{VLANE}, 63, v0
    v_lshrrev_b32 v{T}, 6, v0
    s_and_b32 s28, s2, 7
    s_lshr_b32 s29, s2, 3
    v_readfirstlane_b32 s{sWAVE}, v{T}
    s_and_b32 s{sRB}, s28, 3
    s_lshl_b32 s{sRB}, s{sRB}, 2
    s_and_b32 s34, s29, 3
    s_add_u32 s{sRB}, s{sRB}, s34
    s_lshr_b32 s{sCB}, s28, 2
    s_lshl_b32 s{sCB}, s{sCB}, 3
    s_lshr_b32 s34, s29, 2
    s_add_u32 s{sCB}, s{sCB}, s34
    s_lshl_b32 s{sRG}, s{sRB}, 2
    s_add_u32 s{sRG}, s{sRG}, s{sWAVE}
    s_mov_b32 s{sONES}, 0x3f803f80""")
    for j in range(3):
        a(f"""v_add_u32 v{T}, {64*j}, v{VLANE}
        v_mul_u32_u24 v{T+1}, 171, v{T}
        v_lshrrev_b32 v{T+1}, 11, v{T+1}
        v_mul_u32_u24 v{T+2}, 12, v{T+1}
        v_sub_u32 v{T+2}, v{T}, v{T+2}
        v_mul_u32_u24 v{T+1}, 3072, v{T+1}
        v_lshrrev_b32 v{T+3}, 2, v{T+2}
        v_lshlrev_b32 v{T+3}, 10, v{T+3}
        v_and_b32 v{T+2}, 3, v{T+2}
        v_lshlrev_b32 v{T+2}, 4, v{T+2}
        v_add3_u32 v{VDMA+j}, v{T+1}, v{T+2}, v{T+3}""")
        if j:
            a(f"v_subrev_u32 v{VDMA+j}, {1024*j}, v{VDMA+j}")
    if natural:
        a(f"""v_and_b32 v{T}, 31, v{VLANE}
        v_lshlrev_b32 v{T}, 10, v{T}
        v_lshrrev_b32 v{T+1}, 5, v{VLANE}
        v_lshlrev_b32 v{T+1}, 4, v{T+1}
        v_add_u32 v{VAOFF}, v{T}, v{T+1}""")
    else:
        a(f"v_lshlrev_b32 v{VAOFF}, 4, v{VLANE}")
    a(f"""v_lshrrev_b32 v{T}, 5, v{VLANE}
    v_lshlrev_b32 v{T}, {3 if natural else 2}, v{T}
    v_bfe_u32 v{T+1}, v{VLANE}, 2, 2
    v_add_u32 v{T}, v{T}, v{T+1}
    v_mul_u32_u24 v{T}, 192, v{T}
    v_bfe_u32 v{T+1}, v{VLANE}, 4, 1
    v_lshlrev_b32 v{T+1}, 5, v{T+1}
    v_and_b32 v{T+2}, 3, v{VLANE}
    v_lshlrev_b32 v{T+2}, 3, v{T+2}
    v_add3_u32 v{VTR0}, v{T}, v{T+1}, v{T+2}
    v_add_u32 v{VTR1}, 49152, v{VTR0}""")
    SECOND = (4 if natural else 8) * 192
    for i in range(4):
        a(f"v_mov_b32 v{ST1+i}, 0\nv_mov_b32 v{ST2+i}, 0")
    for i in range(3):
        a(f"v_mov_b32 v{CS+i}, 0")
    a("s_waitcnt lgkmcnt(0)")
    if natural:
        make_srd(a, sA, 4, 2048 * 512 * 2)
    make_srd(a, sW, 6, 512 * 1536 * 2)
    make_srd(a, sWS, 8, WS_SIZE)
    sAsrd = sA if natural else sWS
    a(f"""s_mul_i32 s{sM0}, s{sWAVE}, 3072
    s_mul_i32 s{sWOFF}, s{sWAVE}, 49152
    s_lshl_b32 s34, s{sCB}, 6
    s_add_u32 s{sWOFF}, s{sWOFF}, s34
    s_lshl_b32 s{sAOFF}, s{sRG}, 15""")
    if not natural:
        a(f"s_add_u32 s{sAOFF}, s{sAOFF}, {xoff}")
    for c in range(8):
        a(f"s_mov_b32 m0, s{sM0}")
        a(f"s_add_u32 s{sM0}, s{sM0}, 12288")
        for j in range(3):
            a(f"buffer_load_dwordx4 v{VDMA+j}, s[{sW}:{sW+3}], s{sWOFF} offen offset:{1024*j} lds")
        a(f"s_add_u32 s{sWOFF}, s{sWOFF}, 196608")
        for q in range(4):
            ks = 4 * c + q
            imm = ks * 32 if natural else q * 1024
            a(f"buffer_load_dwordx4 v[{AP+4*ks}:{AP+4*ks+3}], v{VAOFF}, s[{sAsrd}:{sAsrd+3}], s{sAOFF} offen offset:{imm}")
        if not natural:
            a(f"s_add_u32 s{sAOFF}, s{sAOFF}, 4096")
    def reads(s):
        buf = BF + (s % 2) * 12
        base = VTR0 if s < 16 else VTR1
        off = (s % 16) * 3072
        for t in range(3):
            a(f"ds_read_b64_tr_b16 v[{buf+4*t}:{buf+4*t+1}], v{base} offset:{off+64*t}")
            a(f"ds_read_b64_tr_b16 v[{buf+4*t+2}:{buf+4*t+3}], v{base} offset:{off+64*t+SECOND}")
    a("s_waitcnt vmcnt(49)\ns_barrier")
    reads(0)
    for s in range(32):
        if s + 1 < 32:
            if (s + 1) % 4 == 0:
                a(f"s_waitcnt vmcnt({56 - 7*((s+1)//4 + 1)})\ns_barrier")
            reads(s + 1)
            a("s_waitcnt lgkmcnt(6)")
        else:
            a("s_waitcnt lgkmcnt(0)")
        buf = BF + (s % 2) * 12
        af = AP + 4 * s
        def C(t): return "0" if s == 0 else vr(ACC + 16 * t, 16)
        st = []
        for i in range(4):
            st.append(f"v_dot2c_f32_bf16 v{ST1+i}, s{sONES}, v{af+i}")
            st.append(f"v_dot2c_f32_bf16 v{ST2+i}, v{af+i}, v{af+i}")
        a(f"v_mfma_f32_32x32x16_bf16 {vr(ACC,16)}, {vr(buf,4)}, {vr(af,4)}, {C(0)}")
        for x in st[0:3]: a(x)
        a(f"v_mfma_f32_32x32x16_bf16 {vr(ACC+16,16)}, {vr(buf+4,4)}, {vr(af,4)}, {C(1)}")
        for x in st[3:6]: a(x)
        a(f"v_mfma_f32_32x32x16_bf16 {vr(ACC+32,16)}, {vr(af,4)}, {vr(buf+8,4)}, {C(2)}")
        for x in st[6:8]: a(x)
        skip = a.newlabel(name + "_cs")
        a(f"s_cmp_lg_u32 s{sWAVE}, {s%4}\ns_cbranch_scc1 {skip}")
        for i in range(4):
            for t in range(3):
                a(f"v_dot2c_f32_bf16 v{CS+t}, s{sONES}, v{buf+4*t+i}")
        a.label(skip)
    vMEAN, vRSTD = T, T + 1
    E = 128
    a("s_nop 3")
    a(f"""v_and_b32 v{T+2}, 31, v{VLANE}
    v_lshlrev_b32 v{T+3}, 5, v{T+2}
    v_lshrrev_b32 v{T+4}, 5, v{VLANE}
    v_lshlrev_b32 v{T+5}, 2, v{T+4}
    s_lshl_b32 s34, s{sWAVE}, 3
    v_add3_u32 v{T+5}, v{T+3}, v{T+5}, s34
    v_add_u32 v{T+5}, {CS_OFF}, v{T+5}""")
    for t in range(3):
        a(f"ds_write_b32 v{T+5}, v{CS+t} offset:{t*1024}")
    emit_stats_final(a, ST1, ST2, E, vMEAN, vRSTD)
    a(f"""v_mul_f32 v{T+6}, v{vMEAN}, v{vRSTD}
    v_sub_f32 v{T+6}, 0, v{T+6}
    s_lshl_b32 s34, s{sWAVE}, 8
    s_add_u32 s35, s34, {ST_OFF}
    v_lshl_add_u32 v{T+7}, v{T+2}, 2, s35
    ds_write_b32 v{T+7}, v{vRSTD}
    ds_write_b32 v{T+7}, v{T+6} offset:128
    v_add_u32 v{T+3}, {CS_OFF}, v{T+3}
    s_waitcnt lgkmcnt(0)
    s_barrier""")
    for t in range(3):
        a(f"ds_read_b128 v[{E+8*t}:{E+8*t+3}], v{T+3} offset:{t*1024}")
        a(f"ds_read_b128 v[{E+8*t+4}:{E+8*t+7}], v{T+3} offset:{t*1024+16}")
    AV = E + 32; BV = E + 48
    a(f"v_lshl_add_u32 v{T+8}, v{T+4}, 4, s35")
    for g in range(4):
        a(f"ds_read_b128 v[{AV+4*g}:{AV+4*g+3}], v{T+8} offset:{32*g}")
        a(f"ds_read_b128 v[{BV+4*g}:{BV+4*g+3}], v{T+8} offset:{128+32*g}")
    a("s_waitcnt lgkmcnt(8)")
    for t in range(3):
        b = E + 8 * t
        a(f"""v_add_f32 v{b}, v{b}, v{b+1}
        v_add_f32 v{b+2}, v{b+2}, v{b+3}
        v_add_f32 v{b+4}, v{b+4}, v{b+5}
        v_add_f32 v{b+6}, v{b+6}, v{b+7}
        v_add_f32 v{b}, v{b}, v{b+2}
        v_add_f32 v{b+4}, v{b+4}, v{b+6}
        v_add_f32 v{CS+t}, v{b}, v{b+4}""")
    a(f"""s_add_u32 s36, s34, {CT_OFF}
    v_lshl_add_u32 v{T+7}, v{T+2}, 2, s36
    ds_write_b32 v{T+7}, v{CS}
    ds_write_b32 v{T+7}, v{CS+1} offset:128
    v_lshl_add_u32 v{T+8}, v{T+4}, 4, s36
    s_waitcnt lgkmcnt(0)""")
    CQ = E + 64; CK = E + 80
    for g in range(4):
        a(f"ds_read_b128 v[{CQ+4*g}:{CQ+4*g+3}], v{T+8} offset:{32*g}")
        a(f"ds_read_b128 v[{CK+4*g}:{CK+4*g+3}], v{T+8} offset:{128+32*g}")
    PV = E + 96
    for i in range(16):
        a(f"v_mul_f32 v{BV+i}, v{BV+i}, v{CS+2}")
    for i in range(16):
        a(f"v_fma_f32 v{ACC+32+i}, v{ACC+32+i}, v{AV+i}, v{BV+i}")
    for i in range(8):
        a(f"v_cvt_pk_bf16_f32 v{PV+i}, v{ACC+32+2*i}, v{ACC+32+2*i+1}")
    a(f"""v_bfe_u32 v{T+9}, v{VLANE}, 4, 1
    v_lshlrev_b32 v{T+9}, 16, v{T+9}
    v_and_b32 v{T+10}, 15, v{VLANE}
    v_lshlrev_b32 v{T+10}, 4, v{T+10}
    v_lshlrev_b32 v{T+11}, 8, v{T+4}
    v_add3_u32 v{T+9}, v{T+9}, v{T+10}, v{T+11}
    s_lshl_b32 s37, s{sCB}, 17
    s_lshl_b32 s38, s{sRG}, 10
    s_add_u32 s37, s37, s38
    s_add_u32 s39, s37, {WS_V}
    buffer_store_dwordx4 v[{PV}:{PV+3}], v{T+9}, s[{sWS}:{sWS+3}], s39 offen
    buffer_store_dwordx4 v[{PV+4}:{PV+7}], v{T+9}, s[{sWS}:{sWS+3}], s39 offen offset:512
    v_sub_f32 v{T+12}, 0, v{vMEAN}
    v_mul_f32 v{T+13}, {hex(f32bits(QSCALE))}, v{vRSTD}
    v_lshlrev_b32 v{T+14}, 4, v{VLANE}
    s_waitcnt lgkmcnt(0)""")
    PQ = E + 104; PK = E + 112
    for i in range(16):
        a(f"v_fma_f32 v{ACC+i}, v{T+12}, v{CQ+i}, v{ACC+i}")
    for i in range(16):
        a(f"v_mul_f32 v{ACC+i}, v{ACC+i}, v{T+13}")
    for i in range(8):
        a(f"v_cvt_pk_bf16_f32 v{PQ+i}, v{ACC+2*i}, v{ACC+2*i+1}")
    a(f"""s_add_u32 s39, s37, {WS_Q}
    s_add_u32 s40, s39, 65536
    buffer_store_dwordx4 v[{PQ}:{PQ+3}], v{T+14}, s[{sWS}:{sWS+3}], s39 offen
    buffer_store_dwordx4 v[{PQ+4}:{PQ+7}], v{T+14}, s[{sWS}:{sWS+3}], s40 offen""")
    for i in range(16):
        a(f"v_fma_f32 v{ACC+16+i}, v{T+12}, v{CK+i}, v{ACC+16+i}")
    for i in range(16):
        a(f"v_mul_f32 v{ACC+16+i}, v{ACC+16+i}, v{vRSTD}")
    for i in range(8):
        a(f"v_cvt_pk_bf16_f32 v{PK+i}, v{ACC+16+2*i}, v{ACC+16+2*i+1}")
    a(f"""s_add_u32 s39, s37, {WS_K}
    s_add_u32 s40, s39, 65536
    buffer_store_dwordx4 v[{PK}:{PK+3}], v{T+14}, s[{sWS}:{sWS+3}], s39 offen
    buffer_store_dwordx4 v[{PK+4}:{PK+7}], v{T+14}, s[{sWS}:{sWS+3}], s40 offen""")
    NA, NB = T + 16, T + 17
    a(f"v_mul_f32 v{NA}, v{ACC+16}, v{ACC+16}\nv_mul_f32 v{NB}, v{ACC+24}, v{ACC+24}")
    for i in range(1, 8):
        a(f"v_fmac_f32 v{NA}, v{ACC+16+i}, v{ACC+16+i}\nv_fmac_f32 v{NB}, v{ACC+24+i}, v{ACC+24+i}")
    a(f"""v_mov_b32 v{T+18}, v{NA}
    v_mov_b32 v{T+19}, v{NB}
    s_nop 1
    v_permlane32_swap_b32 v{NA}, v{T+18}
    v_permlane32_swap_b32 v{NB}, v{T+19}
    s_nop 1
    v_add_f32 v{NA}, v{NA}, v{T+18}
    v_add_f32 v{NB}, v{NB}, v{T+19}""")
    for dpp in ("quad_perm:[1,0,3,2]", "quad_perm:[2,3,0,1]", "row_half_mirror", "row_mirror"):
        a(f"""s_nop 1
        v_max_f32_dpp v{NA}, v{NA}, v{NA} {dpp} row_mask:0xf bank_mask:0xf
        v_max_f32_dpp v{NB}, v{NB}, v{NB} {dpp} row_mask:0xf bank_mask:0xf""")
    a(f"""v_lshrrev_b32 v{T+18}, 2, v{VLANE}
    s_lshl_b32 s39, s{sCB}, 10
    s_lshl_b32 s40, s{sRG}, 3
    s_add_u32 s39, s39, s40
    s_add_u32 s39, s39, {WS_KMAX}
    s_mov_b64 exec, 0x10001
    buffer_store_dword v{NA}, v{T+18}, s[{sWS}:{sWS+3}], s39 offen
    buffer_store_dword v{NB}, v{T+18}, s[{sWS}:{sWS+3}], s39 offen offset:512""")
    a.label(end)
    a("s_endpgm")
    return kernel_header(name) + a.text(), kernel_desc(name, 256), LDS
```

```python
import sys
from common import *
from k_qkv import gen_qkv
from k_attn import gen_attn
from k_proj import gen_proj
from k_ffn1 import gen_ffn1

HEADER = open("interleave_layers__softmax_full_mha__glu_gated_reglu__prompt.s.ref").read().split("; Override launch")[0]

def build(launches, kernels):
    out = HEADER
    for (name, grid, block) in launches:
        out += f"; @launch kernel={name} grid=({grid},1,1) block=({block},1,1) lds={kernels[name][2]}\n"
    out += '.amdgcn_target "amdgcn-amd-amdhsa--gfx950"\n.text\n'
    for name, (code, desc, lds) in kernels.items():
        out += code
    out += '.section .rodata,"a"\n'
    for name, (code, desc, lds) in kernels.items():
        out += desc
    return out

def full():
    kernels = {}
    kernels["qkv1_kernel"] = gen_qkv("qkv1_kernel", True)
    kernels["qkv2_kernel"] = gen_qkv("qkv2_kernel", False, WS_X2)
    kernels["attn_kernel"] = gen_attn("attn_kernel")
    kernels["wo1_kernel"] = gen_proj("wo1_kernel", 32, WS_O, KA_WO, 'nat', WS_X1)
    kernels["wo2_kernel"] = gen_proj("wo2_kernel", 32, WS_O, KA_WO, WS_X2, WS_X1)
    kernels["ffn1_kernel"] = gen_ffn1("ffn1_kernel", WS_X1)
    kernels["down1_kernel"] = gen_proj("down1_kernel", 112, WS_H, KA_WD, WS_X1, WS_X2)
    kernels["down2_kernel"] = gen_proj("down2_kernel", 112, WS_H, KA_WD, WS_X1, 'nat')
    launches = [("qkv1_kernel", 256, 256), ("attn_kernel", 256, 1024), ("wo1_kernel", 256, 256), ("ffn1_kernel", 256, 256), ("down1_kernel", 256, 256),
                ("qkv2_kernel", 256, 256), ("attn_kernel", 256, 1024), ("wo2_kernel", 256, 256), ("ffn1_kernel", 256, 256), ("down2_kernel", 256, 256)]
    return launches, kernels

if __name__ == "__main__":
    launches, kernels = full()
    open(sys.argv[1], "w").write(build(launches, kernels))
```

```python
class Asm:
    def __init__(self):
        self.lines = []
        self.uid = 0
    def __call__(self, s):
        for l in s.strip("\n").split("\n"):
            self.lines.append("    " + l.strip())
    def label(self, l):
        self.lines.append(l + ":")
    def newlabel(self, p="L"):
        self.uid += 1
        return f"{p}_{self.uid}"
    def text(self):
        return "\n".join(self.lines) + "\n"

def vr(b, n=1):
    return f"v{b}" if n == 1 else f"v[{b}:{b+n-1}]"
def sr(b, n=1):
    return f"s{b}" if n == 1 else f"s[{b}:{b+n-1}]"

MB = 1 << 20
WS_Q = 0
WS_K = 2 * MB
WS_V = 4 * MB
WS_KMAX = 6 * MB
WS_O = 8 * MB
WS_X1 = 10 * MB
WS_X2 = 12 * MB
WS_X0 = 14 * MB
WS_H = 16 * MB
WS_WQKV = 26 * MB
WS_WGU = 28 * MB
WS_ST = 6 * MB + 65536
WS_CSQ = 6 * MB + 65536 + 262144
WS_CSG = WS_CSQ + 65536
WS_WO = 23 * MB + 512 * 1024
WS_WD = 32 * MB
WS_DUMMY = 34 * MB
WS_FLAG = 35 * MB
WS_R2 = 7 * MB + 512 * 1024
WS_ST2 = 7 * MB
WS_SIZE = 40 * MB

KA_X, KA_WQKV, KA_WO, KA_BX, KA_WG, KA_WU, KA_WD, KA_OUT, KA_DBG, KA_WS = [8 * i for i in range(10)]

def kernel_header(name):
    return f""".globl {name}
.p2align 8
.type {name},@function
{name}:
"""

def kernel_desc(name, vgpr, sgpr=96, accum=None):
    import os
    if os.environ.get("STAMP"): sgpr = 102
    if accum is None:
        accum = (vgpr + 3) // 4 * 4
    return f""".p2align 6
.amdhsa_kernel {name}
  .amdhsa_next_free_vgpr {vgpr}
  .amdhsa_next_free_sgpr {sgpr}
  .amdhsa_accum_offset {accum}
  .amdhsa_group_segment_fixed_size 0
  .amdhsa_kernarg_size 80
  .amdhsa_user_sgpr_count 2
  .amdhsa_user_sgpr_kernarg_segment_ptr 1
  .amdhsa_system_sgpr_workgroup_id_x 1
  .amdhsa_float_denorm_mode_32 3
.end_amdhsa_kernel
"""

def make_srd(a, s, ptr, size):
    a(f"""s_mov_b32 s{s}, s{ptr}
    s_and_b32 s{s+1}, s{ptr+1}, 0xffff
    s_mov_b32 s{s+2}, {size}
    s_mov_b32 s{s+3}, 0x00020000""")

def f32bits(x):
    import struct
    return struct.unpack("<I", struct.pack("<f", x))[0]

import os
STAMP = bool(os.environ.get("STAMP"))
WS_STAMP = 36 * MB
def stamp_begin(a):
    if STAMP:
        a("s_memtime s[80:81]\ns_memrealtime s[82:83]\ns_load_dwordx2 s[88:89], s[0:1], %d\ns_load_dwordx2 s[94:95], s[0:1], %d\nv_readfirstlane_b32 s75, v0\ns_mov_b32 s93, s2" % (KA_WS, KA_DBG))
def stamp_mid(a, idx):
    if STAMP:
        a(f"s_memtime s[90:91]\ns_waitcnt lgkmcnt(0)\ns_sub_u32 s{96+idx}, s90, s80")
def stamp_end(a, vtmp=8):
    if STAMP:
        a(f"""s_waitcnt vmcnt(0)
        s_memtime s[84:85]
        s_memrealtime s[86:87]
        s_waitcnt lgkmcnt(0)
        s_mov_b64 exec, -1
        s_sub_u32 s84, s84, s80
        s_mov_b32 s76, s88
        s_and_b32 s77, s89, 0xffff
        s_mov_b32 s78, {WS_SIZE}
        s_mov_b32 s79, 0x00020000
        s_bfe_u32 s92, s94, 0x50009
        s_lshl_b32 s92, s92, 18
        s_lshl_b32 s91, s93, 10
        s_add_u32 s92, s92, s91
        s_add_u32 s92, s92, {WS_STAMP}
        v_mov_b32 v{vtmp}, s75
        v_mov_b32 v0, s82
        v_mov_b32 v1, s86
        v_mov_b32 v2, s84
        v_mov_b32 v3, s96
        v_mov_b32 v4, s97
        v_mov_b32 v5, s98
        v_mov_b32 v6, s99
        v_mov_b32 v7, s100
        s_mov_b64 exec, 1
        buffer_store_dwordx4 v[0:3], v{vtmp}, s[76:79], s92 offen
        buffer_store_dwordx4 v[4:7], v{vtmp}, s[76:79], s92 offen offset:16""")
```

```python
from common import *
from k_prep import emit_wunits

def gen_attn(entries):
    a = Asm()
    name = entries[0][0]
    O = 0; CM = 16; S = [32, 48]; P = 64; KF = [72, 76]; VF = [80, 88]; QF = 96
    VKA = 100; VVA = 101; VLANE = 102; VA = 103; T = 104
    STG = 131072
    CNT_OFF = STG + 24576
    LDS = STG + 32768
    sWS = 12
    sHEAD, sQB, sWAVE, sRG, sNOBAR, sIT, sSIDE, sQT, sKH, sNIT, sSECOND = 24, 25, 26, 27, 64, 65, 66, 70, 71, 72, 73
    sVM = 68
    UN = 8
    body = f"{name}_body"; end = f"{name}_end"; helper = f"{name}_helper"; pro = f"{name}_pro"
    code = ""
    for i, (nm, side) in enumerate(entries):
        code += kernel_header(nm) + f"    s_mov_b32 s{sSIDE}, {int(side)}\n"
        if i + 1 < len(entries):
            code += f"    s_branch {body}\n"
    a.label(body)
    a(f"""s_cmp_ge_u32 s2, 256
    s_cbranch_scc1 {end}_real""")
    stamp_begin(a)
    a(f"""s_load_dwordx2 s[8:9], s[0:1], {KA_WS}
    v_and_b32 v{VLANE}, 63, v0
    v_lshrrev_b32 v{T}, 6, v0
    s_and_b32 s34, s2, 7
    s_lshr_b32 s35, s2, 3
    v_readfirstlane_b32 s{sWAVE}, v{T}
    v_lshlrev_b32 v{VA}, 4, v{VLANE}
    s_lshl_b32 s{sHEAD}, s34, 2
    s_and_b32 s36, s35, 3
    s_add_u32 s{sHEAD}, s{sHEAD}, s36
    s_lshr_b32 s{sQB}, s35, 2
    s_lshl_b32 s36, s{sHEAD}, 16
    s_mov_b32 s14, {WS_SIZE}
    s_mov_b32 s15, 0x00020000
    s_and_b32 s{sQT}, s{sWAVE}, 7
    s_lshr_b32 s{sKH}, s{sWAVE}, 3
    s_lshl_b32 s{sRG}, s{sQB}, 3
    s_add_u32 s{sRG}, s{sRG}, s{sQT}
    s_and_b32 s39, s{sWAVE}, 1
    s_bfe_u32 s40, s{sWAVE}, 0x10001
    s_lshl_b32 s42, s40, 15
    s_lshl_b32 s43, s39, 16
    s_add_u32 s43, s43, s42
    s_lshl_b32 s44, s39, 21
    s_add_u32 s44, s44, s42
    s_add_u32 s44, s44, s36
    s_add_u32 s44, s44, {WS_K}
    s_mov_b32 s{sNOBAR}, 0
    s_cmp_ge_u32 s{sWAVE}, 12
    s_cbranch_scc1 {helper}
    s_bfe_u32 s41, s{sWAVE}, 0x10002
    s_lshl_b32 s41, s41, 11
    s_add_u32 m0, s43, s41
    s_add_u32 s44, s44, s41
    s_waitcnt lgkmcnt(0)
    s_mov_b32 s12, s8
    s_and_b32 s13, s9, 0xffff
    s_cmp_ge_u32 s{sWAVE}, 8
    s_cbranch_scc1 {pro}""")
    for j in range(2):
        a(f"buffer_load_dwordx4 v{VA}, s[{sWS}:{sWS+3}], s44 offen offset:{1024*j} lds")
    a(f"""v_lshlrev_b32 v{T}, 2, v{VLANE}
    v_add_u32 v{T}, {CNT_OFF}, v{T}
    v_mov_b32 v{T+1}, 0
    ds_write_b32 v{T}, v{T+1}""")
    a.label(pro)
    a("s_setprio 3")
    a(f"""s_lshl_b32 s36, s{sHEAD}, 16
    s_lshl_b32 s37, s{sRG}, 10
    s_add_u32 s37, s37, s36
    s_lshl_b32 s38, s{sHEAD}, 9
    s_add_u32 s38, s38, {WS_KMAX}
    v_lshlrev_b32 v{T+1}, 3, v{VLANE}
    buffer_load_dwordx4 v[{QF}:{QF+3}], v{VA}, s[{sWS}:{sWS+3}], s37 offen
    buffer_load_dwordx2 v[{T+2}:{T+3}], v{T+1}, s[{sWS}:{sWS+3}], s38 offen
    s_mov_b32 s{sSECOND}, 0
    s_mov_b32 s{sNIT}, 4
    s_mov_b32 s{sVM}, 0xffff
    s_mov_b32 s{sVM+1}, 0xffff
    v_lshrrev_b32 v{T+4}, 5, v{VLANE}
    v_lshlrev_b32 v{T+4}, 8, v{T+4}
    v_and_b32 v{T+5}, 15, v{VLANE}
    v_lshlrev_b32 v{T+5}, 4, v{T+5}
    v_add_u32 v{T+4}, v{T+4}, v{T+5}
    v_add_u32 v{T+8}, 65536, v{T+4}
    s_lshl_b32 s45, s{sKH}, 15
    v_add_u32 v{VKA}, s45, v{VA}
    v_add_u32 v{VVA}, s45, v{T+8}""")
    for i in range(16):
        a(f"v_mov_b32 v{VF[0]+i}, 0x3f803f80")
    a(f"""v_mov_b32 v{T+6}, 0
    v_mov_b32 v{T+14}, {CNT_OFF}
    s_waitcnt vmcnt(0) lgkmcnt(0)
    v_max_f32 v{T+2}, v{T+2}, v{T+3}""")
    for i in range(4):
        a(f"v_dot2c_f32_bf16 v{T+6}, v{QF+i}, v{QF+i}")
    for dpp in ("quad_perm:[1,0,3,2]", "quad_perm:[2,3,0,1]", "row_half_mirror", "row_mirror"):
        a(f"""s_nop 1
        v_max_f32_dpp v{T+2}, v{T+2}, v{T+2} {dpp} row_mask:0xf bank_mask:0xf""")
    a(f"""v_mov_b32 v{T+7}, v{T+6}
    s_nop 1
    v_permlane32_swap_b32 v{T+6}, v{T+7}
    v_readlane_b32 s46, v{T+2}, 0
    v_readlane_b32 s47, v{T+2}, 16
    v_readlane_b32 s48, v{T+2}, 32
    v_readlane_b32 s49, v{T+2}, 48
    v_add_f32 v{T+6}, v{T+6}, v{T+7}
    s_max_u32 s46, s46, s47
    s_max_u32 s48, s48, s49
    s_max_u32 s46, s46, s48
    s_nop 1
    v_mul_f32 v{T+6}, s46, v{T+6}
    v_sqrt_f32 v{T+6}, v{T+6}
    s_nop 0
    v_mul_f32 v{T+6}, {hex(f32bits(-(1.0 + 2.0**-7)))}, v{T+6}""")
    main = f"{name}_main"
    stamp_mid(a, 1)
    a(f"""s_cmp_lg_u32 s{sNOBAR}, 0
    s_cbranch_scc1 {main}
    s_barrier""")
    a.label(main)
    stamp_mid(a, 2)
    a(f"""ds_read_b128 {vr(KF[0],4)}, v{VKA}
    ds_read_b128 {vr(KF[1],4)}, v{VKA} offset:1024
    s_mov_b64 exec, s[{sVM}:{sVM+1}]
    ds_read_b128 {vr(VF[0],4)}, v{VVA}
    ds_read_b128 {vr(VF[0]+4,4)}, v{VVA} offset:512
    s_mov_b64 exec, -1
    s_mov_b32 s{sIT}, 0""")
    for i in range(16):
        a(f"v_mov_b32 v{CM+i}, v{T+6}")
    for i in range(16):
        a(f"v_mov_b32 v{O+i}, 0")
    for i in range(4):
        a(f"v_mov_b32 v{P+4+i}, 0")
    a(f"""s_waitcnt lgkmcnt(3)
    v_mfma_f32_32x32x16_bf16 {vr(S[0],16)}, {vr(KF[0],4)}, {vr(QF,4)}, {vr(CM,16)}
    s_nop 9""")
    loop = f"{name}_loop"
    a.label(loop)
    for t in range(UN):
        s = S[t % 2]; sn = S[(t + 1) % 2]
        E = [f"v_exp_f32 v{s+i}, v{s+i}" for i in range(16)]
        C = [f"v_cvt_pk_bf16_f32 v{P+i}, v{s+2*i}, v{s+2*i+1}" for i in range(8)]
        if t == 2:
            skip = f"{name}_nopoll"; pl = f"{name}_spoll"
            a(f"""s_cmp_ge_u32 s{sIT}, 2
            s_cbranch_scc1 {skip}
            s_lshl_b32 s50, s{sIT}, 2
            s_add_u32 s50, s50, 4""")
            a.label(pl)
            a(f"""ds_read_b32 v{T+15}, v{T+14} offset:64
            s_waitcnt lgkmcnt(0)
            v_readfirstlane_b32 s51, v{T+15}
            s_nop 3
            s_cmp_lt_u32 s51, s50
            s_cbranch_scc1 {pl}""")
            a.label(skip)
        PR = eval(os.environ.get("PR", "{3: 2, 6: 1, 7: 0}"))
        if t in PR:
            a(f"""s_cmp_lg_u32 s{sIT}, 3
            s_cbranch_scc1 {name}_pr{t}
            s_setprio {PR[t]}""")
            a.label(f"{name}_pr{t}")
        a("s_waitcnt lgkmcnt(2)")
        a(f"v_mfma_f32_32x32x16_bf16 {vr(sn,16)}, {vr(KF[(t+1)%2],4)}, {vr(QF,4)}, {vr(CM,16)}")
        a(f"ds_read_b128 {vr(KF[t%2],4)}, v{VKA} offset:{(t+2)*1024}")
        for x in E[:8]: a(x)
        a(f"v_mfma_f32_32x32x16_bf16 {vr(O,16)}, {vr(VF[(t+1)%2]+4,4)}, {vr(P+4,4)}, {vr(O,16)}")
        a(f"""s_mov_b64 exec, s[{sVM}:{sVM+1}]
        ds_read_b128 {vr(VF[(t+1)%2],4)}, v{VVA} offset:{(t+1)*1024}
        ds_read_b128 {vr(VF[(t+1)%2]+4,4)}, v{VVA} offset:{(t+1)*1024+512}
        s_mov_b64 exec, -1""")
        for x in C[:4] + E[8:12]: a(x)
        a("s_waitcnt lgkmcnt(4)")
        a(f"v_mfma_f32_32x32x16_bf16 {vr(O,16)}, {vr(VF[t%2],4)}, {vr(P,4)}, {vr(O,16)}")
        for x in E[12:]: a(x)
        if t == UN - 1:
            a(f"""v_add_u32 v{VKA}, {UN*1024}, v{VKA}
            v_add_u32 v{VVA}, {UN*1024}, v{VVA}
            s_add_u32 s{sIT}, s{sIT}, 1""")
            a(f"s_cmp_lt_u32 s{sIT}, s{sNIT}")
        for x in C[4:]: a(x)
    a(f"s_cbranch_scc1 {loop}")
    a(f"""s_waitcnt lgkmcnt(0)
    v_mfma_f32_32x32x16_bf16 {vr(O,16)}, {vr(VF[1]+4,4)}, {vr(P+4,4)}, {vr(O,16)}""")
    stamp_mid(a, 3)
    fb = f"{name}_fallback"; fin = f"{name}_fin"; second = f"{name}_second"; poll = f"{name}_poll"
    a(f"""s_lshl_b32 s36, s{sRG}, 15
    s_lshl_b32 s37, s{sHEAD}, 10
    s_add_u32 s36, s36, s37
    s_add_u32 s36, s36, {WS_O}
    s_mov_b32 s37, {hex(f32bits(2.0**-40))}
    s_cmp_lg_u32 s{sSECOND}, 0
    s_cbranch_scc1 {name}_fin0
    s_lshl_b32 s38, s{sQT}, 3
    s_add_u32 s38, s38, {CNT_OFF}
    v_mov_b32 v{T+9}, s38
    v_mov_b32 v{T+10}, 1
    s_mul_i32 s39, s{sQT}, 2304
    s_add_u32 s39, s39, {STG}
    s_mov_b64 exec, 1
    ds_add_rtn_u32 v{T+11}, v{T+9}, v{T+10}
    s_mov_b64 exec, -1
    v_add_u32 v{T+12}, s39, v{VA}
    v_lshlrev_b32 v{T+13}, 2, v{VLANE}
    v_add_u32 v{T+13}, s39, v{T+13}
    s_waitcnt lgkmcnt(0)
    v_readfirstlane_b32 s40, v{T+11}
    s_nop 3
    s_cmp_lg_u32 s40, 0
    s_cbranch_scc1 {second}""")
    a.label(f"{name}_sdpoll")
    a(f"""ds_read_b32 v{T+15}, v{T+14} offset:68
    s_waitcnt lgkmcnt(0)
    v_readfirstlane_b32 s51, v{T+15}
    s_nop 3
    s_cmp_lt_u32 s51, 4
    s_cbranch_scc1 {name}_sdpoll
    ds_write_b128 v{T+12}, v[{O}:{O+3}]
    ds_write_b128 v{T+12}, v[{O+4}:{O+7}] offset:1024
    ds_write_b32 v{T+13}, v{O+8} offset:2048
    s_waitcnt lgkmcnt(0)
    ds_write_b32 v{T+9}, v{T+10} offset:4
    s_branch {end}""")
    a.label(second)
    a.label(poll)
    a(f"""ds_read_b32 v{T+11}, v{T+9} offset:4
    s_waitcnt lgkmcnt(0)
    v_readfirstlane_b32 s40, v{T+11}
    s_nop 3
    s_cmp_eq_u32 s40, 0
    s_cbranch_scc1 {poll}
    ds_read_b128 v[{S[0]}:{S[0]+3}], v{T+12}
    ds_read_b128 v[{S[0]+4}:{S[0]+7}], v{T+12} offset:1024
    ds_read_b32 v{S[0]+8}, v{T+13} offset:2048
    s_waitcnt lgkmcnt(0)""")
    for i in range(9):
        a(f"v_add_f32 v{O+i}, v{O+i}, v{S[0]+i}")
    a(f"""v_cmp_nge_f32 vcc, v{O+8}, s37
    s_nop 4
    s_cbranch_vccnz {fb}""")
    a.label(f"{name}_fin0")
    a(f"s_nop 6\nv_rcp_f32 v{O+9}, v{O+8}\ns_nop 0")
    for i in range(8):
        a(f"v_mul_f32 v{O+i}, v{O+i}, v{O+9}")
    for i in range(4):
        a(f"v_cvt_pk_bf16_f32 v{P+i}, v{O+2*i}, v{O+2*i+1}")
    a(f"buffer_store_dwordx4 v[{P}:{P+3}], v{VA}, s[{sWS}:{sWS+3}], s36 offen")
    a.label(end)
    stamp_end(a)
    a.label(end + "_real")
    a("s_endpgm")
    a.label(fb)
    floop = f"{name}_fbloop"
    MX = T + 9
    a(f"""s_mov_b32 s{sSECOND}, 1
    s_mov_b32 s{sNOBAR}, 1
    s_mov_b32 s{sNIT}, 8
    v_mov_b32 v{MX}, 0xff800000
    v_mov_b32 v{T+10}, v{VA}
    s_mov_b32 s38, 0""")
    a.label(floop)
    a(f"""ds_read_b128 {vr(KF[0],4)}, v{T+10}
    v_add_u32 v{T+10}, 1024, v{T+10}
    s_waitcnt lgkmcnt(0)
    v_mfma_f32_32x32x16_bf16 {vr(S[0],16)}, {vr(KF[0],4)}, {vr(QF,4)}, 0
    s_nop 15
    s_nop 3""")
    for i in range(8):
        a(f"v_max3_f32 v{MX}, v{S[0]+2*i}, v{S[0]+2*i+1}, v{MX}")
    a(f"""s_add_u32 s38, s38, 1
    s_cmp_lt_u32 s38, 64
    s_cbranch_scc1 {floop}
    v_mov_b32 v{T+10}, v{MX}
    s_nop 1
    v_permlane32_swap_b32 v{MX}, v{T+10}
    s_nop 1
    v_max_f32 v{MX}, v{MX}, v{T+10}
    v_sub_f32 v{T+6}, 0, v{MX}
    v_mov_b32 v{VKA}, v{VA}
    v_mov_b32 v{VVA}, v{T+8}""")
    for i in range(16):
        a(f"v_mov_b32 v{VF[0]+i}, 0x3f803f80")
    a(f"s_branch {main}")
    a.label(helper)
    a(f"""s_load_dwordx2 s[6:7], s[0:1], {KA_WQKV}
    s_load_dwordx4 s[28:31], s[0:1], {KA_WG}
    s_load_dwordx2 s[60:61], s[0:1], {KA_WO}
    s_load_dwordx2 s[62:63], s[0:1], {KA_WD}
    s_add_u32 s43, s43, 4096
    s_add_u32 s44, s44, 4096
    s_mov_b32 s{sNOBAR}, 1
    s_setprio 3
    v_mov_b32 v{T+14}, {CNT_OFF}
    v_mov_b32 v{T+15}, 1
    s_waitcnt lgkmcnt(0)
    s_mov_b32 s12, s8
    s_and_b32 s13, s9, 0xffff""")
    def dma4():
        a(f"s_mov_b32 m0, s43\ns_add_u32 s43, s43, 4096")
        for j in range(4):
            a(f"buffer_load_dwordx4 v{VA}, s[{sWS}:{sWS+3}], s44 offen offset:{1024*j} lds")
        a("s_add_u32 s44, s44, 4096")
    dma4(); dma4()
    a("s_barrier")
    dma4(); dma4()
    a(f"""s_waitcnt vmcnt(8)
    s_mov_b64 exec, 1
    ds_add_u32 v{T+14}, v{T+15} offset:64
    s_mov_b64 exec, -1""")
    dma4(); dma4(); dma4()
    hdone = f"{name}_hdone"
    a(f"""s_waitcnt vmcnt(0)
    s_mov_b64 exec, 1
    ds_add_u32 v{T+14}, v{T+15} offset:64
    s_mov_b64 exec, -1
    s_cmp_eq_u32 s{sSIDE}, 0
    s_cbranch_scc1 {hdone}
    s_sub_u32 s45, s{sWAVE}, 12
    s_lshl_b32 s34, s45, 13
    s_add_u32 s34, s34, {STG}
    s_lshl_b32 s67, s45, 8
    s_add_u32 s67, s67, s2
    s_mov_b32 s33, 0x3f803f80
    s_cmp_ge_u32 s67, 736
    s_cbranch_scc1 {hdone}
    s_add_u32 s45, s67, 192
    s_cmp_ge_u32 s67, 448
    s_cselect_b32 s67, s45, s67""")
    emit_wunits(a, name + "_w", hdone, VLANE, T, VA, 0, sWS, 67)
    a.label(hdone)
    a(f"""s_mov_b64 exec, 1
    ds_add_u32 v{T+14}, v{T+15} offset:68
    s_mov_b64 exec, -1
    s_branch {pro}""")
    desc = "".join(kernel_desc(nm, 128) for nm, _ in entries)
    return code + a.text(), desc, LDS
```

```python
from common import *
from k_qkv import emit_stats_final, emit_stats_loads, VmTracker
from collections import defaultdict

def gen_ffn1(name, xoff=WS_X1):
    a = Asm()
    NTL = 7
    NB = 9
    ACC = 0; BF = 112; AR = 148; AD = 12
    SR = 196; CP = 212; CT = 196
    VLANE = 228; VA = 229; VB = 230; T = 232
    vMEAN, vRSTD = 246, 247; NM = 248; R2 = 250
    R = 5; SLOT = 28672
    CS_OFF = R * SLOT
    LDS = CS_OFF + 1024
    sWS = 12
    sRB, sCB, sWAVE, sRG = 24, 25, 26, 27
    sBLK, sWOFF, sAOFF = 28, 29, 30
    end = f"{name}_end"
    a(f"""s_cmp_ge_u32 s2, 256
    s_cbranch_scc1 {end}_real""")
    stamp_begin(a)
    a(f"""s_load_dwordx2 s[8:9], s[0:1], {KA_WS}
    v_and_b32 v{VLANE}, 63, v0
    v_lshrrev_b32 v{T}, 6, v0
    s_and_b32 s34, s2, 7
    s_lshr_b32 s35, s2, 3
    v_readfirstlane_b32 s{sWAVE}, v{T}
    v_lshlrev_b32 v{VA}, 4, v{VLANE}
    s_and_b32 s{sRB}, s34, 1
    s_lshl_b32 s{sRB}, s{sRB}, 3
    s_and_b32 s36, s35, 7
    s_add_u32 s{sRB}, s{sRB}, s36
    s_lshr_b32 s{sCB}, s34, 1
    s_lshl_b32 s{sCB}, s{sCB}, 2
    s_lshr_b32 s36, s35, 3
    s_add_u32 s{sCB}, s{sCB}, s36
    s_lshl_b32 s{sRG}, s{sRB}, 2
    s_add_u32 s{sRG}, s{sRG}, s{sWAVE}
    s_mul_i32 s{sBLK}, s{sWAVE}, 7168
    s_mul_i32 s{sWOFF}, s{sCB}, {32*7168}
    s_add_u32 s{sWOFF}, s{sWOFF}, s{sBLK}
    s_add_u32 s{sWOFF}, s{sWOFF}, {WS_WGU}
    s_add_u32 s31, s{sWOFF}, 4096
    s_lshl_b32 s{sAOFF}, s{sRG}, 15
    s_add_u32 s{sAOFF}, s{sAOFF}, {xoff}
    s_mov_b32 s14, {WS_SIZE}
    s_mov_b32 s15, 0x00020000
    v_mov_b32 v{VB}, v{VA}
    s_waitcnt lgkmcnt(0)
    s_mov_b32 s12, s8
    s_and_b32 s13, s9, 0xffff""")
    vm = VmTracker(); lg = VmTracker()
    def bdma(c, j):
        slot = c % R
        if j == 0:
            a(f"s_add_u32 m0, s{sBLK}, {slot*SLOT}\ns_nop 0")
        if j == 4:
            a(f"s_add_u32 m0, s{sBLK}, {slot*SLOT+4096}\ns_nop 0")
        so = sWOFF if j < 4 else 31
        a(f"buffer_load_dwordx4 v{VA}, s[{sWS}:{sWS+3}], s{so} offen offset:{1024*(j%4)} lds")
        if j == 6:
            a(f"s_add_u32 s{sWOFF}, s{sWOFF}, {0 if os.environ.get('NOB') else SLOT}\ns_add_u32 s31, s31, {0 if os.environ.get('NOB') else SLOT}")
        vm.issue(("B", c))
    def aload(s):
        r = AR + 4 * (s % AD)
        a(f"buffer_load_dwordx4 v[{r}:{r+3}], v{VA}, s[{sWS}:{sWS+3}], s{sAOFF} offen offset:{(s%4)*1024}")
        if s % 4 == 3:
            a(f"s_add_u32 s{sAOFF}, s{sAOFF}, {0 if os.environ.get('NOA') else 4096}")
        vm.issue(("A", s))
    stamp_mid(a, 0)
    for j in range(7): bdma(0, j)
    for q in range(4): aload(q)
    for j in range(4): bdma(1, j)
    a(f"""v_and_b32 v{T}, 31, v{VLANE}
    v_lshrrev_b32 v{T+1}, 5, v{VLANE}
    v_lshlrev_b32 v{T+2}, 11, v{T+1}
    v_lshl_add_u32 v{T+2}, v{T}, 3, v{T+2}
    s_lshl_b32 s34, s{sRG}, 12
    s_add_u32 s34, s34, {WS_ST}
    v_lshlrev_b32 v{T+3}, 6, v0
    s_mul_i32 s35, s{sCB}, {224*64}
    s_add_u32 s35, s35, {WS_CSG}
    v_lshlrev_b32 v{T+4}, 2, v0
    v_add_u32 v{T+4}, {CS_OFF}, v{T+4}
    v_lshlrev_b32 v{T+5}, 4, v{T+1}
    v_add_u32 v{T+5}, {CS_OFF}, v{T+5}
    s_mul_i32 s37, s{sRG}, {112*1024}
    s_mul_i32 s38, s{sCB}, {7*1024}
    s_add_u32 s37, s37, s38
    s_add_u32 s37, s37, {WS_H}
    s_add_u32 s38, s37, 4096""")
    slots = [(s, t) for s in range(28) for t in range(NTL)] + [(28 + q, t) for t in range(NTL) for q in range(4)]
    NS = len(slots)
    def read(m):
        s, t = slots[m]
        b = BF + 4 * (m % NB)
        a(f"ds_read_b128 v[{b}:{b+3}], v{VB} offset:{(s%4)*7168+1024*t}")
        lg.issue(("F", m))
    loadq = defaultdict(list)
    seq = [lambda j=j: bdma(1, j) for j in range(4, 7)] + [lambda s=s: aload(s) for s in range(4, 8)]
    for i, f in enumerate(seq): loadq[i].append(f)
    def small1():
        emit_stats_loads(a, SR, T + 2, sWS, 34)
        for i in range(8): vm.issue(("S", 0))
    def small2():
        for i in range(4):
            a(f"buffer_load_dwordx4 v[{CP+4*i}:{CP+4*i+3}], v{T+3}, s[{sWS}:{sWS+3}], s35 offen offset:{16*i}")
            vm.issue(("S", 0))
    loadq[20].append(small1); loadq[24].append(small2)
    for c in range(2, 8):
        base = (c - 2) * 28 + 8 if c == 2 else (c - 2) * 28 + 2
        step = 3 if c == 2 else 4
        for j in range(7):
            loadq[base + step * j].append(lambda c=c, j=j: bdma(c, j))
    for s in range(8, 32):
        loadq[(s - 8) * 7 + 6].append(lambda s=s: aload(s))
    fillq = defaultdict(list)
    sub = Asm()
    for i in range(8):
        sub(f"v_add_f32 v{CP+2*i}, v{CP+2*i}, v{CP+2*i+1}")
    for i in range(4):
        sub(f"v_add_f32 v{CP+4*i}, v{CP+4*i}, v{CP+4*i+2}")
    sub(f"""v_add_f32 v{CP}, v{CP}, v{CP+4}
    v_add_f32 v{CP+8}, v{CP+8}, v{CP+12}
    v_add_f32 v{CP}, v{CP}, v{CP+8}
    DSW""")
    emit_stats_final(sub, SR, T + 6, vMEAN, vRSTD)
    sub(f"""v_sub_f32 v{NM}, 0, v{vMEAN}
    v_mul_f32 v{R2}, v{vRSTD}, v{vRSTD}
    v_mul_f32 v{R2+1}, v{vRSTD}, v{vRSTD}""")
    blockA = [l.strip() for l in sub.lines]
    m0 = 8 * 7
    for i, ins in enumerate(blockA):
        fillq[m0 + i // 3].append((ins, None))
    lastA = m0 + (len(blockA) - 1) // 3
    assert lastA < 12 * 7, lastA
    csreadq = defaultdict(list)
    for u in range(14):
        tt, hf = u // 2, u % 2
        cb = CT + 8 * (u % 2)
        ks = 13 + u
        csreadq[(ks - 1) * 7 + tt].append((u, cb, tt, hf))
        mt = ks * 7 + tt
        pos = [mt + 4] * 3 + [mt + 5] * 3 + [mt + 6] * 2
        for i in range(8):
            r = ACC + 16 * tt + 8 * hf + i
            fillq[pos[i]].append((f"v_fma_f32 v{r}, v{NM}, v{cb+i}, v{r}", tt, ("C", u)))
    def epi(t):
        ac = ACC + 16 * t
        L = []
        for i in range(8): L.append(f"v_max_f32 v{ac+i}, 0, v{ac+i}")
        for i in range(4): L.append(f"v_pk_mul_f32 v[{ac+8+2*i}:{ac+8+2*i+1}], v[{ac+8+2*i}:{ac+8+2*i+1}], v[{R2}:{R2+1}]")
        for i in range(4): L.append(f"v_pk_mul_f32 v[{ac+2*i}:{ac+2*i+1}], v[{ac+2*i}:{ac+2*i+1}], v[{ac+8+2*i}:{ac+8+2*i+1}]")
        for i in range(4): L.append(f"v_cvt_pk_bf16_f32 v{ac+8+i}, v{ac+2*i}, v{ac+2*i+1}")
        so = 37 if t < 4 else 38
        L.append(f"buffer_store_dwordx4 v[{ac+8}:{ac+11}], v{VA}, s[{sWS}:{sWS+3}], s{so} offen offset:{(t%4)*1024}")
        return L
    tail = []
    for t in range(NTL):
        mt = 196 + 4 * t + 3
        L = epi(t)
        for i, ins in enumerate(L):
            p = mt + 3 + i // 6
            if p < NS: fillq[p].append((ins, t))
            else: tail.append((ins, t))
    stamp_mid(a, 1)
    a(f"s_waitcnt vmcnt({vm.wait_for({('B',0)})})\ns_barrier")
    stamp_mid(a, 2)
    for m in range(7): read(m)
    last_mfma_pos = {}
    def pos(): return len(a.lines)
    seenA = set(); curchunk = 0
    def emit_fill(item):
        ins = item[0]; tile = item[1]
        if len(item) > 2:
            n = lg.wait_for({item[2]})
            if n < 15 and ("w", item[2]) not in seenA:
                a(f"s_waitcnt lgkmcnt({n})"); seenA.add(("w", item[2]))
        if tile is not None:
            d = pos() - last_mfma_pos[tile]
            if d < 13:
                a(f"s_nop {13 - d - 1}")
        if ins == "DSW":
            a(f"ds_write_b32 v{T+4}, v{CP}"); lg.issue(("W", 0))
        else:
            a(ins)
    for m, (s, t) in enumerate(slots):
        w = f"lgkmcnt({min(15, lg.wait_for({('F', m)}))})"
        if s not in seenA:
            seenA.add(s)
            w = f"vmcnt({vm.wait_for({('A', s)})}) " + w
        if m == m0:
            w = f"vmcnt({min(vm.wait_for({('S', 0)}), vm.wait_for({('A', s)}))}) " + w.split(" ")[-1]
        a(f"s_waitcnt {w}")
        cc = "0" if s == 0 else vr(ACC + 16 * t, 16)
        af = AR + 4 * (s % AD)
        a(f"v_mfma_f32_32x32x16_bf16 {vr(ACC+16*t,16)}, {vr(BF+4*(m%NB),4)}, {vr(af,4)}, {cc}")
        last_mfma_pos[t] = pos() - 1
        for item in fillq[m]: emit_fill(item)
        if m + 7 < NS:
            cn = slots[m + 7][0] // 4
            if cn != curchunk:
                curchunk = cn
                lw = ""
                if cn == 3:
                    lw = f" lgkmcnt({min(15, lg.wait_for({('W', 0)}))})"
                a(f"s_waitcnt vmcnt({vm.wait_for({('B', cn)})}){lw}\ns_barrier")
                a(f"v_add_u32 v{VB}, {(cn % R)*SLOT}, v{VA}")
            read(m + 7)
        else:
            a("s_nop 0")
        for (u, cb, tt, hf) in csreadq[m]:
            for g in range(2):
                a(f"ds_read_b128 v[{cb+4*g}:{cb+4*g+3}], v{T+5} offset:{128*tt+32*(2*hf+g)}")
                lg.issue(("C", u))
        for f in loadq[m]: f()
    X = os.environ.get("FX", "")
    if X:
        i0 = max(i for i, l in enumerate(a.lines) if "s_sub_u32 s98" in l) + 1
        body = a.lines[i0:]
        if "b" in X: body = [l for l in body if "s_barrier" not in l]
        if "l" in X: body = [l for l in body if "buffer_load" not in l]
        if "d" in X: body = [l for l in body if "ds_read" not in l]
        if "w" in X: body = [l for l in body if "s_waitcnt" not in l]
        if "v" in X: body = [l for l in body if not (l.strip().startswith("v_") and "mfma" not in l)]
        if "s" in X: body = [l for l in body if "buffer_store" not in l]
        a.lines = a.lines[:i0] + body
    stamp_mid(a, 3)
    for item in tail: emit_fill(item)
    a.label(end)
    stamp_end(a)
    a.label(end + "_real")
    a("s_endpgm")
    return kernel_header(name) + a.text(), kernel_desc(name, 256), LDS
```

```python
from common import *

def emit_tile_stats(a, V, T, vaddr, srd, soff):
    a(f"v_add_f32 v{T}, v{V}, v{V+1}\nv_mul_f32 v{T+1}, v{V}, v{V}")
    a(f"v_fmac_f32 v{T+1}, v{V+1}, v{V+1}")
    for i in range(2, 16):
        a(f"v_add_f32 v{T}, v{T}, v{V+i}\nv_fmac_f32 v{T+1}, v{V+i}, v{V+i}")
    a(f"""v_mov_b32 v{T+2}, v{T}
    v_mov_b32 v{T+3}, v{T+1}
    s_nop 1
    v_permlane32_swap_b32 v{T}, v{T+2}
    v_permlane32_swap_b32 v{T+1}, v{T+3}
    s_nop 1
    v_add_f32 v{T}, v{T}, v{T+2}
    v_add_f32 v{T+1}, v{T+1}, v{T+3}
    s_mov_b64 exec, 0xffffffff
    buffer_store_dwordx2 v[{T}:{T+1}], v{vaddr}, s[{srd}:{srd+3}], s{soff} offen
    s_mov_b64 exec, -1""")

def emit_wunits(a, name, end, VLANE, T, VA, F, sWS, sU):
    sW, sW2 = 16, 20
    lgu = f"{name}_gu"; lq = f"{name}_q"; lgo = f"{name}_go"
    a(f"""v_lshrrev_b32 v{T}, 3, v{VLANE}
    v_and_b32 v{T+1}, 7, v{VLANE}
    v_bfe_u32 v{T+2}, v{VLANE}, 4, 1
    v_lshlrev_b32 v{T+2}, 2, v{T+2}
    v_xor_b32 v{T+1}, v{T+1}, v{T+2}
    v_lshlrev_b32 v{T+1}, 4, v{T+1}
    v_lshrrev_b32 v{T+3}, 5, v{VLANE}
    v_lshlrev_b32 v{T+3}, 2, v{T+3}
    v_bfe_u32 v{T+4}, v{VLANE}, 2, 2
    v_add_u32 v{T+3}, v{T+3}, v{T+4}
    v_lshlrev_b32 v{T+3}, 7, v{T+3}
    v_and_b32 v{T+5}, 3, v{VLANE}
    v_lshlrev_b32 v{T+5}, 3, v{T+5}
    v_bfe_u32 v{T+6}, v{VLANE}, 3, 1
    v_lshlrev_b32 v{T+6}, 6, v{T+6}
    v_bfe_u32 v{T+4}, v{VLANE}, 4, 1
    v_add3_u32 v{T+3}, v{T+3}, v{T+5}, s34
    s_cmp_lt_u32 s{sU}, 448
    s_cbranch_scc1 {lgu}
    s_cmp_lt_u32 s{sU}, 640
    s_cbranch_scc1 {lq}""")
    a(f"""s_mov_b32 s18, {1792*1024}
    s_mov_b32 s42, 704
    s_mov_b32 s43, {112*2048}
    s_mov_b32 s44, {WS_WD}
    s_cmp_lt_u32 s{sU}, 704
    s_cselect_b32 s16, s60, s62
    s_cselect_b32 s17, s61, s63
    s_cselect_b32 s18, {512*1024}, s18
    s_cselect_b32 s42, 640, s42
    s_cselect_b32 s43, {32*2048}, s43
    s_cselect_b32 s44, {WS_WO}, s44
    s_and_b32 s17, s17, 0xffff
    s_mov_b32 s19, 0x00020000
    s_sub_u32 s42, s{sU}, s42
    s_lshr_b32 s35, s42, 3
    s_and_b32 s36, s42, 7
    s_mov_b32 s45, 1024
    s_mul_i32 s40, s36, s43
    s_lshl_b32 s41, s35, 13
    s_add_u32 s40, s40, s41
    s_add_u32 s40, s40, s44
    s_mov_b32 s46, 1024
    s_mov_b32 s47, 2048
    s_mov_b32 s48, {WS_DUMMY}
    s_branch {lgo}""")
    a.label(lq)
    make_srd(a, sW, 6, 512 * 1536 * 2)
    a(f"""s_sub_u32 s42, s{sU}, 448
    s_mul_i32 s35, s42, 2731
    s_lshr_b32 s35, s35, 16
    s_mul_i32 s36, s35, 24
    s_sub_u32 s36, s42, s36
    s_mov_b32 s45, 3072
    s_lshr_b32 s38, s36, 3
    s_and_b32 s39, s36, 7
    s_mul_i32 s40, s39, {2*32*3*1024}
    s_mul_i32 s41, s35, {4*3*1024}
    s_add_u32 s40, s40, s41
    s_lshl_b32 s41, s38, 10
    s_add_u32 s40, s40, s41
    s_add_u32 s40, s40, {WS_WQKV}
    s_mov_b32 s46, {32*3*1024}
    s_mov_b32 s47, 3072
    s_lshl_b32 s48, s35, 2
    s_mul_i32 s41, s39, {2*96*32}
    s_add_u32 s48, s48, s41
    s_lshl_b32 s41, s38, 10
    s_add_u32 s48, s48, s41
    s_add_u32 s48, s48, {WS_CSQ}""")
    a.label(lgo)
    a(f"""v_mul_lo_u32 v{T}, v{T}, s45
    v_add_u32 v{T}, v{T}, v{T+1}
    s_lshl_b32 s49, s45, 6
    s_mul_i32 s37, s35, s49
    s_lshl_b32 s38, s36, 7
    s_add_u32 s37, s37, s38
    s_lshl_b32 s49, s45, 3""")
    for j in range(8):
        a(f"""s_add_u32 m0, s34, {1024*j}
        s_nop 0
        buffer_load_dwordx4 v{T}, s[{sW}:{sW+3}], s37 offen lds
        s_add_u32 s37, s37, s49""")
    a(f"""v_lshlrev_b32 v{T+4}, 5, v{T+4}
    v_add_u32 v{T+4}, v{T+4}, v{T+6}
    v_add_u32 v{T+5}, v{T+3}, v{T+4}
    v_xor_b32 v{T+4}, 64, v{T+4}
    v_add_u32 v{T+6}, v{T+3}, v{T+4}
    v_mov_b32 v{F+32}, 0
    v_mov_b32 v{F+33}, 0
    s_add_u32 s41, s40, s46
    s_waitcnt vmcnt(0)""")
    for q in range(4):
        for t in range(2):
            r = F + 8 * q + 4 * t
            a(f"ds_read_b64_tr_b16 v[{r}:{r+1}], v{T+5+t} offset:{q*2048}")
            a(f"ds_read_b64_tr_b16 v[{r+2}:{r+3}], v{T+5+t} offset:{q*2048+1024}")
    a("s_waitcnt lgkmcnt(0)")
    for q in range(4):
        for t in range(2):
            r = F + 8 * q + 4 * t
            a(f"buffer_store_dwordx4 v[{r}:{r+3}], v{VA}, s[{sWS}:{sWS+3}], s{40+t} offen")
            for i in range(4):
                a(f"v_dot2c_f32_bf16 v{F+32+t}, s33, v{r+i}")
            a(f"s_add_u32 s{40+t}, s{40+t}, s47")
    a(f"""s_cmp_ge_u32 s{sU}, 640
    s_cbranch_scc1 {end}
    s_nop 1
    v_mov_b32 v{F+34}, v{F+32}
    v_mov_b32 v{F+35}, v{F+33}
    s_nop 1
    v_permlane32_swap_b32 v{F+32}, v{F+34}
    v_permlane32_swap_b32 v{F+33}, v{F+35}
    s_nop 1
    v_add_f32 v{F+32}, v{F+32}, v{F+34}
    v_add_f32 v{F+33}, v{F+33}, v{F+35}
    v_lshlrev_b32 v{T}, 5, v{VLANE}
    s_mov_b64 exec, 0xffffffff
    buffer_store_dword v{F+32}, v{T}, s[{sWS}:{sWS+3}], s48 offen
    buffer_store_dword v{F+33}, v{T}, s[{sWS}:{sWS+3}], s48 offen offset:3072
    s_branch {end}""")
    a.label(lgu)
    make_srd(a, sW, 28, 512 * 1792 * 2)
    make_srd(a, sW2, 30, 512 * 1792 * 2)
    a(f"""s_mov_b32 s42, s{sU}
    s_mul_i32 s35, s42, 2341
    s_lshr_b32 s35, s35, 16
    s_mul_i32 s36, s35, 28
    s_sub_u32 s36, s42, s36
    v_mul_u32_u24 v{T}, 3584, v{T}
    v_add_u32 v{T}, v{T}, v{T+1}
    s_mul_i32 s37, s35, {32*3584}
    s_lshl_b32 s38, s36, 7
    s_add_u32 s37, s37, s38""")
    for j in range(4):
        a(f"""s_add_u32 m0, s34, {1024*j}
        s_nop 0
        buffer_load_dwordx4 v{T}, s[{sW}:{sW+3}], s37 offen lds
        s_add_u32 m0, s34, {4096+1024*j}
        s_nop 0
        buffer_load_dwordx4 v{T}, s[{sW2}:{sW2+3}], s37 offen lds
        s_add_u32 s37, s37, {8*3584}""")
    a(f"""v_lshlrev_b32 v{T+4}, 12, v{T+4}
    v_add3_u32 v{T+5}, v{T+3}, v{T+4}, v{T+6}
    v_xor_b32 v{T+6}, 64, v{T+6}
    v_add3_u32 v{T+6}, v{T+3}, v{T+4}, v{T+6}""")
    for i in range(4):
        a(f"v_mov_b32 v{F+32+i}, 0")
    for i in range(4):
        a(f"""s_lshl_b32 s43, s36, 2
        s_add_u32 s43, s43, {i}
        s_mul_i32 s44, s43, 9363
        s_lshr_b32 s44, s44, 16
        s_mul_i32 s45, s44, 7
        s_sub_u32 s45, s43, s45
        s_mul_i32 s{46+i}, s44, {32*7*1024}
        s_lshl_b32 s54, s45, 10
        s_add_u32 s{46+i}, s{46+i}, s54
        s_mul_i32 s54, s35, {2*7*1024}
        s_add_u32 s{46+i}, s{46+i}, s54
        s_add_u32 s{46+i}, s{46+i}, {WS_WGU}
        s_add_u32 s{56+i}, s{46+i}, 7168""")
    a(f"""s_lshl_b32 s50, s35, 2
    s_lshl_b32 s51, s36, 13
    s_add_u32 s50, s50, s51
    s_add_u32 s50, s50, {WS_CSG}
    s_add_u32 s51, s50, 4096
    s_waitcnt vmcnt(0)""")
    for q in range(2):
        for i in range(4):
            r = F + 16 * q + 4 * i
            base = T + 5 + (i >> 1)
            off = q * 2048 + (i & 1) * 32
            a(f"ds_read_b64_tr_b16 v[{r}:{r+1}], v{base} offset:{off}")
            a(f"ds_read_b64_tr_b16 v[{r+2}:{r+3}], v{base} offset:{off+1024}")
    a("s_waitcnt lgkmcnt(0)")
    for q in range(2):
        for i in range(4):
            r = F + 16 * q + 4 * i
            a(f"buffer_store_dwordx4 v[{r}:{r+3}], v{VA}, s[{sWS}:{sWS+3}], s{(46 if q == 0 else 56)+i} offen")
            for e in range(4):
                a(f"v_dot2c_f32_bf16 v{F+32+i}, s33, v{r+e}")
    a("s_nop 2")
    for i in range(4):
        a(f"v_mov_b32 v{F+36+i}, v{F+32+i}")
    a("s_nop 1")
    for i in range(4):
        a(f"v_permlane32_swap_b32 v{F+32+i}, v{F+36+i}")
    a("s_nop 1")
    for i in range(4):
        a(f"v_add_f32 v{F+32+i}, v{F+32+i}, v{F+36+i}")
    a(f"v_lshlrev_b32 v{T}, 6, v{VLANE}\ns_mov_b64 exec, 0xffffffff")
    for i in range(4):
        a(f"buffer_store_dword v{F+32+i}, v{T}, s[{sWS}:{sWS+3}], s{50+(i>>1)} offen offset:{2048*(i&1)}")
    a(f"s_branch {end}")

STM = os.environ.get('STM', '')
def gen_prep(name):
    a = Asm()
    VLANE = 1; T = 2; VA = 10; F = 16
    sWS, sW, sW2 = 12, 16, 20
    sWAVE, sU = 24, 25
    end = f"{name}_end"
    a(f"""s_cmp_ge_u32 s2, 256
    s_cbranch_scc1 {end}_real""")
    stamp_begin(a)
    a(f"""s_load_dwordx4 s[4:7], s[0:1], {KA_X}
    s_load_dwordx4 s[28:31], s[0:1], {KA_WG}
    s_load_dwordx2 s[8:9], s[0:1], {KA_WS}
    s_load_dwordx2 s[60:61], s[0:1], {KA_WO}
    s_load_dwordx2 s[62:63], s[0:1], {KA_WD}
    v_and_b32 v{VLANE}, 63, v0
    v_lshrrev_b32 v{T}, 6, v0
    v_lshlrev_b32 v{VA}, 4, v{VLANE}
    v_readfirstlane_b32 s{sWAVE}, v{T}
    s_mov_b32 s33, 0x3f803f80
    s_add_u32 s{sU}, s2, 448
    s_mov_b32 s34, 0
    s_waitcnt lgkmcnt(0)""")
    make_srd(a, sWS, 8, WS_SIZE)
    lx = f"{name}_x"; lgu = f"{name}_gu"; lq = f"{name}_q"; lwo = f"{name}_wo"; lgo = f"{name}_go"
    a(f"""s_cmp_lg_u32 s{sWAVE}, 0
    s_cbranch_scc1 {lx}
    s_cmp_ge_u32 s{sU}, 640
    s_cbranch_scc1 {end}""")
    emit_wunits(a, name, end, VLANE, T, VA, F, sWS, sU)
    a.label(lx)
    make_srd(a, sW, 4, 2048 * 1024)
    a(f"""s_lshl_b32 s35, s2, 2
    s_add_u32 s35, s35, s{sWAVE}
    s_sub_u32 s35, s35, 1
    s_lshr_b32 s36, s35, 4
    s_and_b32 s37, s35, 15
    v_and_b32 v{T}, 31, v{VLANE}
    v_lshlrev_b32 v{T+1}, 10, v{T}
    v_lshrrev_b32 v{T+2}, 5, v{VLANE}
    v_lshl_add_u32 v{T+1}, v{T+2}, 4, v{T+1}
    s_lshl_b32 s38, s36, 15
    s_lshl_b32 s39, s37, 6
    s_add_u32 s39, s39, s38
    buffer_load_dwordx4 v[{F}:{F+3}], v{T+1}, s[{sW}:{sW+3}], s39 offen
    buffer_load_dwordx4 v[{F+4}:{F+7}], v{T+1}, s[{sW}:{sW+3}], s39 offen offset:32
    s_lshl_b32 s40, s37, 11
    s_add_u32 s40, s40, s38
    s_add_u32 s40, s40, {WS_X0}
    s_lshl_b32 s41, s35, 8
    s_add_u32 s41, s41, {WS_ST}
    v_lshlrev_b32 v{T+3}, 3, v{T}
    s_mov_b32 s42, 0xffff0000
    s_waitcnt vmcnt(0)
    v_permlane32_swap_b32 v{F}, v{F+2}
    v_permlane32_swap_b32 v{F+1}, v{F+3}
    v_permlane32_swap_b32 v{F+4}, v{F+6}
    v_permlane32_swap_b32 v{F+5}, v{F+7}
    s_nop 1
    buffer_store_dwordx4 v[{F}:{F+3}], v{VA}, s[{sWS}:{sWS+3}], s40 offen
    buffer_store_dwordx4 v[{F+4}:{F+7}], v{VA}, s[{sWS}:{sWS+3}], s40 offen offset:1024""")
    U = F + 8
    for i in range(8):
        a(f"v_lshlrev_b32 v{U+2*i}, 16, v{F+i}\nv_and_b32 v{U+2*i+1}, s42, v{F+i}")
    emit_tile_stats(a, U, T + 4, T + 3, sWS, 41)
    a.lines = [(l + ' ' + STM) if 'buffer_store' in l else l for l in a.lines]
    a.label(end)
    stamp_end(a)
    a.label(end + "_real")
    a("s_endpgm")
    return kernel_header(name) + a.text(), kernel_desc(name, 64), 8192
```

```python
from common import *
from k_prep import emit_tile_stats

def gen_proj(variants):
    a = Asm()
    name = variants[0]["name"]
    R = 8; CH = 16384; PRE = int(os.environ.get("PRE", "3"))
    ACC = 0; RES = 48; VLANE = 56; VA = 57; VDMA = 58; VRA = 59; VRB = 60; VRA0 = 61; VRB0 = 62; T = 64; FR = 96
    LDS = R * CH
    sW, sWS, sX = 12, 16, 20
    sRB, sCB, sWAVE = 24, 25, 26
    sNCH, sAOFFP, sARG, sKAW, sRES, sOUT = 40, 41, 42, 43, 44, 45
    sAO, sW0, sW1, sLSLOT, sRSLOT, sCNT, sLCNT = 28, 29, 30, 31, 32, 33, 46
    body = f"{name}_body"; end = f"{name}_end"
    code = ""
    for i, v in enumerate(variants):
        code += kernel_header(v["name"])
        code += f"""    s_mov_b32 s{sNCH}, {v['KS']//4}
    s_mov_b32 s{sAOFFP}, {v['a_off']}
    s_mov_b32 s{sARG}, {v['KS']*1024}
    s_mov_b32 s{sKAW}, {v['w_off']}
    s_mov_b32 s{sRES}, {v['res']}
    s_mov_b32 s{sOUT}, {0 if v['out'] == 'nat' else v['out']}
"""
        if i + 1 < len(variants):
            code += f"    s_branch {body}\n"
    a.label(body)
    a(f"""s_cmp_ge_u32 s2, 256
    s_cbranch_scc1 {end}_real""")
    stamp_begin(a)
    a(f"""s_load_dwordx2 s[8:9], s[0:1], {KA_WS}
    s_load_dwordx2 s[4:5], s[0:1], {KA_OUT}
    v_and_b32 v{VLANE}, 63, v0
    v_lshrrev_b32 v{T}, 6, v0
    s_and_b32 s34, s2, 7
    s_lshr_b32 s35, s2, 3
    v_readfirstlane_b32 s{sWAVE}, v{T}
    s_lshl_b32 s{sRB}, s34, 2
    s_and_b32 s36, s35, 3
    s_add_u32 s{sRB}, s{sRB}, s36
    s_lshr_b32 s{sCB}, s35, 2
    v_lshlrev_b32 v{VA}, 4, v{VLANE}
    s_and_b32 s36, s{sWAVE}, 1
    s_lshr_b32 s37, s{sWAVE}, 1
    s_lshl_b32 s38, s{sRB}, 1
    s_add_u32 s38, s38, s36
    s_mul_i32 s{sAO}, s38, s{sARG}
    s_lshl_b32 s39, s37, 11
    s_add_u32 s{sAO}, s{sAO}, s39
    s_add_u32 s{sAO}, s{sAO}, s{sAOFFP}
    s_mul_i32 s{sW0}, s{sCB}, s{sARG}
    s_lshl_b32 s{sW0}, s{sW0}, 1
    s_lshl_b32 s47, s{sWAVE}, 11
    s_add_u32 s{sW0}, s{sW0}, s47
    s_add_u32 s{sW0}, s{sW0}, s{sKAW}
    s_lshl_b32 s48, s36, 12
    s_add_u32 s48, s48, s39
    s_lshl_b32 s49, s{sWAVE}, 11
    s_add_u32 s49, s49, 8192
    s_mov_b32 s{sLSLOT}, 0
    s_mov_b32 s{sRSLOT}, 0
    s_mov_b32 s{sLCNT}, s{sNCH}
    s_mov_b32 s{sCNT}, s{sNCH}
    s_mov_b32 s18, {WS_SIZE}
    s_mov_b32 s19, 0x00020000
    s_mov_b32 s54, {WS_SIZE}
    s_mov_b32 s55, 0x00020000
    s_waitcnt lgkmcnt(0)
    s_mov_b32 s16, s8
    s_and_b32 s17, s9, 0xffff
    s_mov_b32 s52, s8
    s_and_b32 s53, s9, 0xffff""")
    def ld(q):
        if q == 0:
            a(f"""s_add_u32 m0, s{sLSLOT}, s48
            s_add_u32 s50, s{sLSLOT}, s49
            buffer_load_dwordx4 v{VA}, s[52:55], s{sAO} offen lds""")
        if q == 1:
            a(f"""buffer_load_dwordx4 v{VA}, s[52:55], s{sAO} offen offset:1024 lds
            s_mov_b32 m0, s50
            s_add_u32 s{sAO}, s{sAO}, {0 if os.environ.get('NOA') else 4096}""")
        if q == 2:
            a(f"""buffer_load_dwordx4 v{VA}, s[52:55], s{sW0} offen lds
            s_add_u32 s{sLSLOT}, s{sLSLOT}, {CH}
            s_and_b32 s{sLSLOT}, s{sLSLOT}, {R*CH-1}""")
        if q == 3:
            a(f"""buffer_load_dwordx4 v{VA}, s[52:55], s{sW0} offen offset:1024 lds
            s_add_u32 s{sW0}, s{sW0}, {0 if os.environ.get('NOB') else 8192}
            s_sub_u32 s{sLCNT}, s{sLCNT}, 1
            s_cmp_eq_u32 s{sLCNT}, 0
            s_cselect_b32 s54, 0, s54""")
    def loads():
        for q in range(4): ld(q)
    stamp_mid(a, 0)
    for c in range(PRE):
        loads()
    a(f"""s_lshl_b32 s56, s38, 15
    s_lshl_b32 s57, s{sCB}, 12
    s_lshl_b32 s58, s37, 11
    s_add_u32 s57, s57, s58
    s_add_u32 s57, s57, s56
    s_add_u32 s58, s57, s{sRES}
    buffer_load_dwordx4 v[{RES}:{RES+3}], v{VA}, s[{sWS}:{sWS+3}], s58 offen
    buffer_load_dwordx4 v[{RES+4}:{RES+7}], v{VA}, s[{sWS}:{sWS+3}], s58 offen offset:1024
    s_lshl_b32 s59, s36, 12
    v_add_u32 v{VRA0}, s59, v{VA}
    s_lshl_b32 s59, s37, 10
    s_add_u32 s59, s59, 8192
    v_add_u32 v{VRB0}, s59, v{VA}""")
    for i in range(16):
        a(f"v_mov_b32 v{ACC+i}, 0")
    stamp_mid(a, 1)
    def rd_setup():
        a(f"""v_add_u32 v{VRA}, s{sRSLOT}, v{VRA0}
        v_add_u32 v{VRB}, s{sRSLOT}, v{VRB0}
        s_add_u32 s{sRSLOT}, s{sRSLOT}, {CH}
        s_and_b32 s{sRSLOT}, s{sRSLOT}, {R*CH-1}""")
    def rd(buf, q):
        af = FR + 32 * buf; bf = af + 16
        a(f"ds_read_b128 v[{af+4*q}:{af+4*q+3}], v{VRA} offset:{q*1024}")
        a(f"ds_read_b128 v[{bf+4*q}:{bf+4*q+3}], v{VRB} offset:{q*2048}")
    def mf(buf, q):
        af = FR + 32 * buf; bf = af + 16
        a(f"v_mfma_f32_32x32x16_bf16 {vr(ACC,16)}, {vr(bf+4*q,4)}, {vr(af+4*q,4)}, {vr(ACC,16)}")
    def phase(cur):
        a(f"s_waitcnt vmcnt({(PRE-1)*4}) lgkmcnt(0)\ns_barrier")
        rd_setup()
        for q in range(4):
            mf(cur, q)
            rd(1 - cur, q)
            ld(q)
    a(f"s_waitcnt vmcnt({(PRE-1)*4+2})")
    stamp_mid(a, 2)
    a("s_barrier")
    rd_setup()
    for q in range(4):
        rd(0, q); ld(q)
    a(f"s_lshr_b32 s{sCNT}, s{sCNT}, 1")
    loop = f"{name}_loop"; tail = f"{name}_tail"
    a.label(loop)
    phase(0)
    a(f"""s_sub_u32 s{sCNT}, s{sCNT}, 1
    s_cmp_eq_u32 s{sCNT}, 0
    s_cbranch_scc1 {tail}""")
    phase(1)
    a(f"s_branch {loop}")
    a.label(tail)
    for q in range(4):
        a(f"s_waitcnt lgkmcnt({2*(3-q)})")
        mf(1, q)
    a("s_nop 1")
    stamp_mid(a, 3)
    U = 80
    a("s_mov_b32 s47, 0xffff0000")
    for i in range(8):
        a(f"v_lshlrev_b32 v{U+2*i}, 16, v{RES+i}\nv_and_b32 v{U+2*i+1}, s47, v{RES+i}")
    for i in range(16):
        a(f"v_add_f32 v{ACC+i}, v{ACC+i}, v{U+i}")
    PK = RES
    for i in range(8):
        a(f"v_cvt_pk_bf16_f32 v{PK+i}, v{ACC+2*i}, v{ACC+2*i+1}")
    nat = f"{name}_nat"
    a(f"""s_cmp_eq_u32 s{sOUT}, 0
    s_cbranch_scc1 {nat}
    s_add_u32 s58, s57, s{sOUT}
    buffer_store_dwordx4 v[{PK}:{PK+3}], v{VA}, s[{sWS}:{sWS+3}], s58 offen
    buffer_store_dwordx4 v[{PK+4}:{PK+7}], v{VA}, s[{sWS}:{sWS+3}], s58 offen offset:1024
    v_and_b32 v{T}, 31, v{VLANE}
    v_lshlrev_b32 v{T}, 3, v{T}
    s_lshr_b32 s58, s57, 3
    s_add_u32 s58, s58, {WS_ST}""")
    for i in range(8):
        a(f"v_lshlrev_b32 v{U+2*i}, 16, v{PK+i}\nv_and_b32 v{U+2*i+1}, s47, v{PK+i}")
    emit_tile_stats(a, U, T + 2, T, sWS, 58)
    a(f"s_branch {end}")
    a.label(nat)
    make_srd(a, sX, 4, 2048 * 1024)
    a(f"""s_lshl_b32 s58, s{sCB}, 7
    s_lshl_b32 s59, s37, 6
    s_add_u32 s58, s58, s59
    s_add_u32 s58, s58, s56
    v_and_b32 v{T}, 31, v{VLANE}
    v_lshlrev_b32 v{T}, 10, v{T}
    v_lshrrev_b32 v{T+1}, 5, v{VLANE}
    v_lshl_add_u32 v{T}, v{T+1}, 4, v{T}
    v_permlane32_swap_b32 v{PK}, v{PK+2}
    v_permlane32_swap_b32 v{PK+1}, v{PK+3}
    v_permlane32_swap_b32 v{PK+4}, v{PK+6}
    v_permlane32_swap_b32 v{PK+5}, v{PK+7}
    s_nop 1
    buffer_store_dwordx4 v[{PK}:{PK+3}], v{T}, s[{sX}:{sX+3}], s58 offen
    buffer_store_dwordx4 v[{PK+4}:{PK+7}], v{T}, s[{sX}:{sX+3}], s58 offen offset:32""")
    a.label(end)
    stamp_end(a)
    a.label(end + "_real")
    a("s_endpgm")
    desc = "".join(kernel_desc(v["name"], 160) for v in variants)
    return code + a.text(), desc, LDS
```

```python
from common import *
import math

QSCALE = 0.25 * math.log2(math.e)

class VmTracker:
    def __init__(self): self.ops = []
    def issue(self, tag): self.ops.append(tag)
    def wait_for(self, tags):
        last = max(i for i, t in enumerate(self.ops) if t in tags)
        return len(self.ops) - 1 - last

def emit_stats_loads(a, SR, vaddr, srd, soff):
    for i in range(8):
        a(f"buffer_load_dwordx2 v[{SR+2*i}:{SR+2*i+1}], v{vaddr}, s[{srd}:{srd+3}], s{soff} offen offset:{256*i}")

def emit_stats_final(a, SR, T, vMEAN, vRSTD):
    a(f"v_cvt_f64_f32 v[{T}:{T+1}], v{SR}\nv_cvt_f64_f32 v[{T+2}:{T+3}], v{SR+1}")
    for i in range(1, 8):
        a(f"""v_cvt_f64_f32 v[{T+4}:{T+5}], v{SR+2*i}
        v_cvt_f64_f32 v[{T+6}:{T+7}], v{SR+2*i+1}
        v_add_f64 v[{T}:{T+1}], v[{T}:{T+1}], v[{T+4}:{T+5}]
        v_add_f64 v[{T+2}:{T+3}], v[{T+2}:{T+3}], v[{T+6}:{T+7}]""")
    a(f"""v_mov_b32 v{T+4}, v{T}
    v_mov_b32 v{T+5}, v{T+1}
    v_mov_b32 v{T+6}, v{T+2}
    v_mov_b32 v{T+7}, v{T+3}
    s_nop 1
    v_permlane32_swap_b32 v{T}, v{T+4}
    v_permlane32_swap_b32 v{T+1}, v{T+5}
    v_permlane32_swap_b32 v{T+2}, v{T+6}
    v_permlane32_swap_b32 v{T+3}, v{T+7}
    s_nop 1
    v_add_f64 v[{T}:{T+1}], v[{T}:{T+1}], v[{T+4}:{T+5}]
    v_add_f64 v[{T+2}:{T+3}], v[{T+2}:{T+3}], v[{T+6}:{T+7}]
    v_ldexp_f64 v[{T}:{T+1}], v[{T}:{T+1}], -9
    v_ldexp_f64 v[{T+2}:{T+3}], v[{T+2}:{T+3}], -9
    v_fma_f64 v[{T+2}:{T+3}], -v[{T}:{T+1}], v[{T}:{T+1}], v[{T+2}:{T+3}]
    v_cvt_f32_f64 v{vMEAN}, v[{T}:{T+1}]
    v_cvt_f32_f64 v{vRSTD}, v[{T+2}:{T+3}]
    v_max_f32 v{vRSTD}, 0, v{vRSTD}
    v_add_f32 v{vRSTD}, {hex(f32bits(1e-5))}, v{vRSTD}
    v_rsq_f32 v{vRSTD}, v{vRSTD}
    s_nop 0""")

def gen_qkv(names_xoffs):
    a = Asm()
    name = names_xoffs[0][0]
    ACC = 0; BF = 48; BQ = 84; BK = 100; AVv = 116; BV = 132
    AR = 148; AD = 12
    SR = 200; CP = 216; VLANE = 224; VA = 225; VB0 = 226; VB1 = 227; T = 228
    vMEAN, vRSTD, vNB, vRQ = 244, 245, 246, 247
    CS_OFF = 98304; ST_OFF = CS_OFF + 1024
    LDS = ST_OFF + 1024
    sWS = 12
    sRB, sCB, sWAVE, sRG = 24, 25, 26, 27
    sM0, sWOFF, sAOFF, sXOFF = 30, 31, 32, 33
    body = f"{name}_body"
    end = f"{name}_end"
    code = ""
    for i, (nm, xoff) in enumerate(names_xoffs):
        code += kernel_header(nm) + f"    s_mov_b32 s{sXOFF}, {xoff}\n"
        if i + 1 < len(names_xoffs):
            code += f"    s_branch {body}\n"
    a.label(body)
    a(f"""s_cmp_ge_u32 s2, 256
    s_cbranch_scc1 {end}_real""")
    stamp_begin(a)
    a(f"""s_load_dwordx2 s[8:9], s[0:1], {KA_WS}
    v_and_b32 v{VLANE}, 63, v0
    v_lshrrev_b32 v{T}, 6, v0
    s_and_b32 s28, s2, 7
    s_lshr_b32 s29, s2, 3
    v_readfirstlane_b32 s{sWAVE}, v{T}
    v_lshlrev_b32 v{VA}, 4, v{VLANE}
    s_and_b32 s{sRB}, s28, 3
    s_lshl_b32 s{sRB}, s{sRB}, 2
    s_and_b32 s34, s29, 3
    s_add_u32 s{sRB}, s{sRB}, s34
    s_lshr_b32 s{sCB}, s28, 2
    s_lshl_b32 s{sCB}, s{sCB}, 3
    s_lshr_b32 s34, s29, 2
    s_add_u32 s{sCB}, s{sCB}, s34
    s_lshl_b32 s{sRG}, s{sRB}, 2
    s_add_u32 s{sRG}, s{sRG}, s{sWAVE}
    s_mul_i32 s{sM0}, s{sWAVE}, 3072
    s_mul_i32 s{sWOFF}, s{sCB}, 98304
    s_add_u32 s{sWOFF}, s{sWOFF}, s{sM0}
    s_add_u32 s{sWOFF}, s{sWOFF}, {WS_WQKV}
    s_lshl_b32 s{sAOFF}, s{sRG}, 15
    s_add_u32 s{sAOFF}, s{sAOFF}, s{sXOFF}
    s_mov_b32 s14, {WS_SIZE}
    s_mov_b32 s15, 0x00020000
    s_waitcnt lgkmcnt(0)
    s_mov_b32 s12, s8
    s_and_b32 s13, s9, 0xffff""")
    vm = VmTracker()
    def bdma(c, j):
        if j == 0:
            a(f"s_mov_b32 m0, s{sM0}\ns_add_u32 s{sM0}, s{sM0}, 12288")
        a(f"buffer_load_dwordx4 v{VA}, s[{sWS}:{sWS+3}], s{sWOFF} offen offset:{1024*j} lds")
        if j == 2:
            a(f"s_add_u32 s{sWOFF}, s{sWOFF}, {0 if os.environ.get('NOB') else 12288}")
        vm.issue(("B", c))
    def aload(s):
        r = AR + 4 * (s % AD)
        a(f"buffer_load_dwordx4 v[{r}:{r+3}], v{VA}, s[{sWS}:{sWS+3}], s{sAOFF} offen offset:{(s%4)*1024}")
        if s % 4 == 3:
            a(f"s_add_u32 s{sAOFF}, s{sAOFF}, {0 if os.environ.get('NOA') else 4096}")
        vm.issue(("A", s))
    stamp_mid(a, 0)
    PRE = 2
    for c in range(PRE):
        for j in range(3): bdma(c, j)
        for q in range(4): aload(4 * c + q)
    a(f"""v_and_b32 v{T}, 31, v{VLANE}
    v_lshrrev_b32 v{T+1}, 5, v{VLANE}
    v_lshlrev_b32 v{T+2}, 11, v{T+1}
    v_lshl_add_u32 v{T+2}, v{T}, 3, v{T+2}
    s_lshl_b32 s34, s{sRG}, 12
    s_add_u32 s34, s34, {WS_ST}""")
    emit_stats_loads(a, SR, T + 2, sWS, 34)
    for i in range(8): vm.issue(("S", 0))
    a(f"""v_lshlrev_b32 v{T+3}, 5, v0
    s_mul_i32 s35, s{sCB}, 3072
    s_add_u32 s35, s35, {WS_CSQ}
    buffer_load_dwordx4 v[{CP}:{CP+3}], v{T+3}, s[{sWS}:{sWS+3}], s35 offen
    buffer_load_dwordx4 v[{CP+4}:{CP+7}], v{T+3}, s[{sWS}:{sWS+3}], s35 offen offset:16
    v_mov_b32 v{VB0}, v{VA}
    v_add_u32 v{VB1}, 49152, v{VA}
    v_lshlrev_b32 v{T+3}, 2, v0
    v_add_u32 v{T+3}, {CS_OFF}, v{T+3}""")
    vm.issue(("S", 0)); vm.issue(("S", 0))
    def reads(s):
        buf = BF + (s % 3) * 12
        base = VB0 if s < 16 else VB1
        off = (s % 16) * 3072
        for t in range(3):
            a(f"ds_read_b128 v[{buf+4*t}:{buf+4*t+3}], v{base} offset:{off+1024*t}")
    stamp_mid(a, 1)
    a(f"s_waitcnt vmcnt({vm.wait_for({('B',0)})})\ns_barrier")
    stamp_mid(a, 2)
    reads(0)
    def block1():
        emit_stats_final(a, SR, T + 4, vMEAN, vRSTD)
        a(f"""v_add_f32 v{CP}, v{CP}, v{CP+1}
        v_add_f32 v{CP+2}, v{CP+2}, v{CP+3}
        v_add_f32 v{CP+4}, v{CP+4}, v{CP+5}
        v_add_f32 v{CP+6}, v{CP+6}, v{CP+7}
        v_add_f32 v{CP}, v{CP}, v{CP+2}
        v_add_f32 v{CP+4}, v{CP+4}, v{CP+6}
        v_add_f32 v{CP}, v{CP}, v{CP+4}
        ds_write_b32 v{T+3}, v{CP}
        v_mul_f32 v{vNB}, v{vMEAN}, v{vRSTD}
        v_sub_f32 v{vNB}, 0, v{vNB}
        v_mul_f32 v{vRQ}, {hex(f32bits(QSCALE))}, v{vRSTD}
        s_lshl_b32 s34, s{sWAVE}, 8
        s_add_u32 s35, s34, {ST_OFF}
        v_lshl_add_u32 v{T+4}, v{T}, 2, s35
        ds_write_b32 v{T+4}, v{vRSTD}
        ds_write_b32 v{T+4}, v{vNB} offset:128
        v_lshl_add_u32 v{T+5}, v{T+1}, 4, s35
        v_lshlrev_b32 v{T+6}, 4, v{T+1}
        v_add_u32 v{T+6}, {CS_OFF}, v{T+6}
        v_lshlrev_b32 v{T+7}, 2, v{T}
        v_add_u32 v{T+7}, {CS_OFF+256}, v{T+7}
        v_mul_f32 v{T+8}, {hex(f32bits(QSCALE))}, v{vNB}""")
    def block2a():
        for g in range(4):
            a(f"ds_read_b128 v[{BQ+4*g}:{BQ+4*g+3}], v{T+6} offset:{32*g}")
            a(f"ds_read_b128 v[{BK+4*g}:{BK+4*g+3}], v{T+6} offset:{128+32*g}")
        a(f"ds_read_b32 v{T+9}, v{T+7}")
    def block2b():
        for g in range(4):
            a(f"ds_read_b128 v[{AVv+4*g}:{AVv+4*g+3}], v{T+5} offset:{32*g}")
            a(f"ds_read_b128 v[{BV+4*g}:{BV+4*g+3}], v{T+5} offset:{128+32*g}")
    def block3():
        for i in range(16):
            a(f"v_mul_f32 v{BQ+i}, v{BQ+i}, v{T+8}")
        for i in range(16):
            a(f"v_mul_f32 v{BK+i}, v{BK+i}, v{vNB}")
        for i in range(16):
            a(f"v_mul_f32 v{BV+i}, v{BV+i}, v{T+9}")
    for s in range(32):
        c = s // 4
        wA = vm.wait_for({("A", s)})
        if s + 1 < 32:
            if (s + 1) % 4 == 0:
                a(f"s_waitcnt vmcnt({vm.wait_for({('B',(s+1)//4), ('A', s)})}) lgkmcnt(0)\ns_barrier")
                reads(s + 1)
            else:
                reads(s + 1)
                a(f"s_waitcnt vmcnt({wA}) lgkmcnt(3)")
        else:
            a(f"s_waitcnt vmcnt({wA}) lgkmcnt(0)")
        buf = BF + (s % 3) * 12
        af = AR + 4 * (s % AD)
        def C(t): return "0" if s == 0 else vr(ACC + 16 * t, 16)
        cn = c + PRE
        q = s % 4
        a(f"v_mfma_f32_32x32x16_bf16 {vr(ACC,16)}, {vr(buf,4)}, {vr(af,4)}, {C(0)}")
        if cn < 8 and q < 3: bdma(cn, q)
        a(f"v_mfma_f32_32x32x16_bf16 {vr(ACC+16,16)}, {vr(buf+4,4)}, {vr(af,4)}, {C(1)}")
        if cn < 8: aload(4 * cn + q)
        a(f"v_mfma_f32_32x32x16_bf16 {vr(ACC+32,16)}, {vr(af,4)}, {vr(buf+8,4)}, {C(2)}")
        if s == 9: block1()
        if s == 12: block2a()
        if s == 13: block2b()
        if s == 14: block3()
        if s == 16:
            a(f"""v_bfe_u32 v{T+10}, v{VLANE}, 4, 1
            v_lshlrev_b32 v{T+10}, 16, v{T+10}
            v_and_b32 v{T+11}, 15, v{VLANE}
            v_lshlrev_b32 v{T+11}, 4, v{T+11}
            v_lshlrev_b32 v{T+12}, 8, v{T+1}
            v_add3_u32 v{T+10}, v{T+10}, v{T+11}, v{T+12}
            v_lshrrev_b32 v{T+11}, 2, v{VLANE}
            s_lshl_b32 s37, s{sCB}, 17
            s_lshl_b32 s38, s{sRG}, 10
            s_add_u32 s37, s37, s38
            s_add_u32 s39, s37, {WS_V}
            s_add_u32 s40, s37, {WS_Q}
            s_add_u32 s41, s40, 65536
            s_add_u32 s42, s37, {WS_K}
            s_add_u32 s43, s42, 65536
            s_lshl_b32 s44, s{sCB}, 10
            s_lshl_b32 s45, s{sRG}, 3
            s_add_u32 s44, s44, s45
            s_add_u32 s44, s44, {WS_KMAX}""")
    stamp_mid(a, 3)
    P = AR
    a("s_nop 7\ns_nop 2")
    for i in range(16):
        a(f"v_fma_f32 v{ACC+16+i}, v{ACC+16+i}, v{vRSTD}, v{BK+i}")
    NA, NB = T + 12, T + 13
    a(f"v_mul_f32 v{NA}, v{ACC+16}, v{ACC+16}\nv_mul_f32 v{NB}, v{ACC+24}, v{ACC+24}")
    for i in range(1, 8):
        a(f"v_fmac_f32 v{NA}, v{ACC+16+i}, v{ACC+16+i}\nv_fmac_f32 v{NB}, v{ACC+24+i}, v{ACC+24+i}")
    a(f"v_mov_b32 v{T+14}, v{NA}\nv_mov_b32 v{T+15}, v{NB}")
    for i in range(8):
        a(f"v_cvt_pk_bf16_f32 v{P+i}, v{ACC+16+2*i}, v{ACC+16+2*i+1}")
    a(f"""v_permlane32_swap_b32 v{NA}, v{T+14}
    v_permlane32_swap_b32 v{NB}, v{T+15}
    buffer_store_dwordx4 v[{P}:{P+3}], v{VA}, s[{sWS}:{sWS+3}], s42 offen
    buffer_store_dwordx4 v[{P+4}:{P+7}], v{VA}, s[{sWS}:{sWS+3}], s43 offen
    v_add_f32 v{NA}, v{NA}, v{T+14}
    v_add_f32 v{NB}, v{NB}, v{T+15}""")
    dpps = ["quad_perm:[1,0,3,2]", "quad_perm:[2,3,0,1]", "row_half_mirror", "row_mirror"]
    for i in range(16):
        a(f"v_fma_f32 v{ACC+i}, v{ACC+i}, v{vRQ}, v{BQ+i}")
        if i % 4 == 3:
            d = dpps[i // 4]
            a(f"v_max_f32_dpp v{NA}, v{NA}, v{NA} {d} row_mask:0xf bank_mask:0xf\nv_max_f32_dpp v{NB}, v{NB}, v{NB} {d} row_mask:0xf bank_mask:0xf")
    for i in range(8):
        a(f"v_cvt_pk_bf16_f32 v{P+8+i}, v{ACC+2*i}, v{ACC+2*i+1}")
    a(f"""buffer_store_dwordx4 v[{P+8}:{P+11}], v{VA}, s[{sWS}:{sWS+3}], s40 offen
    buffer_store_dwordx4 v[{P+12}:{P+15}], v{VA}, s[{sWS}:{sWS+3}], s41 offen""")
    for i in range(16):
        a(f"v_fma_f32 v{ACC+32+i}, v{ACC+32+i}, v{AVv+i}, v{BV+i}")
    for i in range(8):
        a(f"v_cvt_pk_bf16_f32 v{P+16+i}, v{ACC+32+2*i}, v{ACC+32+2*i+1}")
    a(f"""buffer_store_dwordx4 v[{P+16}:{P+19}], v{T+10}, s[{sWS}:{sWS+3}], s39 offen
    buffer_store_dwordx4 v[{P+20}:{P+23}], v{T+10}, s[{sWS}:{sWS+3}], s39 offen offset:512
    s_mov_b64 exec, 0x10001
    buffer_store_dword v{NA}, v{T+11}, s[{sWS}:{sWS+3}], s44 offen
    buffer_store_dword v{NB}, v{T+11}, s[{sWS}:{sWS+3}], s44 offen offset:512""")
    a.label(end)
    stamp_end(a)
    a.label(end + "_real")
    a("s_endpgm")
    desc = "".join(kernel_desc(nm, 256) for nm, _ in names_xoffs)
    return code + a.text(), desc, LDS
```

```python
import sys
from common import *
from k_prep import gen_prep
from k_qkv import gen_qkv
from k_attn import gen_attn
from k_proj import gen_proj
from k_ffn1 import gen_ffn1

HEADER = open("interleave_layers__softmax_full_mha__glu_gated_reglu__prompt.s.ref").read().split("; Override launch")[0]

def build(launches, groups):
    lds = {}
    for code, desc, l, names in groups:
        for n in names: lds[n] = l
    out = HEADER
    for (name, grid, block) in launches:
        out += f"; @launch kernel={name} grid=({grid},1,1) block=({block},1,1) lds={lds[name]}\n"
    out += '.amdgcn_target "amdgcn-amd-amdhsa--gfx950"\n.text\n'
    for code, desc, l, names in groups:
        out += code
    out += '.section .rodata,"a"\n'
    for code, desc, l, names in groups:
        out += desc
    return out

def full():
    groups = []
    groups.append(gen_prep("prep_kernel") + (["prep_kernel"],))
    groups.append(gen_qkv([("qkv1_kernel", WS_X0), ("qkv2_kernel", WS_X2)]) + (["qkv1_kernel", "qkv2_kernel"],))
    groups.append(gen_attn([("attn1_kernel", True), ("attn2_kernel", False)]) + (["attn1_kernel", "attn2_kernel"],))
    pv = [dict(name="wo1_kernel", KS=32, a_off=WS_O, w_off=WS_WO, res=WS_X0, out=WS_X1),
          dict(name="wo2_kernel", KS=32, a_off=WS_O, w_off=WS_WO, res=WS_X2, out=WS_X1),
          dict(name="down1_kernel", KS=112, a_off=WS_H, w_off=WS_WD, res=WS_X1, out=WS_X2),
          dict(name="down2_kernel", KS=112, a_off=WS_H, w_off=WS_WD, res=WS_X1, out='nat')]
    groups.append(gen_proj(pv) + ([v["name"] for v in pv],))
    groups.append(gen_ffn1("ffn1_kernel", WS_X1) + (["ffn1_kernel"],))
    launches = [("prep_kernel", 256, 320),
                ("qkv1_kernel", 256, 256), ("attn1_kernel", 256, 1024), ("wo1_kernel", 256, 256), ("ffn1_kernel", 256, 256), ("down1_kernel", 256, 256),
                ("qkv2_kernel", 256, 256), ("attn2_kernel", 256, 1024), ("wo2_kernel", 256, 256), ("ffn1_kernel", 256, 256), ("down2_kernel", 256, 256)]
    return launches, groups

if __name__ == "__main__":
    launches, groups = full()
    open(sys.argv[1], "w").write(build(launches, groups))
```

```python
from common import *
from k_prep import emit_wunits

def gen_attn(entries):
    a = Asm()
    name = entries[0][0]
    O = 0; CM = 16; S = [32, 48]; P = 64; KF = [72, 76]; VF = [80, 88]; QF = 96
    VKA = 100; VVA = 101; VLANE = 102; VA = 103; T = 104
    STG = 131072
    CNT_OFF = STG + 24576
    LDS = STG + 32768
    sWS = 12
    sHEAD, sQB, sWAVE, sRG, sNOBAR, sIT, sSIDE, sQT, sKH, sNIT, sSECOND = 24, 25, 26, 27, 64, 65, 66, 70, 71, 72, 73
    sVM = 68
    UN = 8
    def emit_vf_init():
        if os.environ.get("ALLONES"):
            for i in range(16): a(f"v_mov_b32 v{VF[0]+i}, 0x3f803f80")
            return
        for i in range(16): a(f"v_mov_b32 v{VF[0]+i}, 0")
        a("s_mov_b32 exec_lo, 0x110000\ns_mov_b32 exec_hi, 0x110000")
        for i in range(16): a(f"v_mov_b32 v{VF[0]+i}, 0x3f803f80")
        a("s_mov_b64 exec, -1")
    body = f"{name}_body"; end = f"{name}_end"; helper = f"{name}_helper"; pro = f"{name}_pro"
    code = ""
    for i, (nm, side) in enumerate(entries):
        code += kernel_header(nm) + f"    s_mov_b32 s{sSIDE}, {int(side)}\n"
        if i + 1 < len(entries):
            code += f"    s_branch {body}\n"
    a.label(body)
    a(f"""s_cmp_ge_u32 s2, 256
    s_cbranch_scc1 {end}_real""")
    stamp_begin(a)
    a(f"""s_load_dwordx2 s[8:9], s[0:1], {KA_WS}
    v_and_b32 v{VLANE}, 63, v0
    v_lshrrev_b32 v{T}, 6, v0
    s_and_b32 s34, s2, 7
    s_lshr_b32 s35, s2, 3
    v_readfirstlane_b32 s{sWAVE}, v{T}
    v_lshlrev_b32 v{VA}, 4, v{VLANE}
    s_lshl_b32 s{sHEAD}, s34, 2
    s_and_b32 s36, s35, 3
    s_add_u32 s{sHEAD}, s{sHEAD}, s36
    s_lshr_b32 s{sQB}, s35, 2
    s_lshl_b32 s36, s{sHEAD}, 16
    s_mov_b32 s14, {WS_SIZE}
    s_mov_b32 s15, 0x00020000
    s_and_b32 s{sQT}, s{sWAVE}, 7
    s_lshr_b32 s{sKH}, s{sWAVE}, 3
    s_lshl_b32 s{sRG}, s{sQB}, 3
    s_add_u32 s{sRG}, s{sRG}, s{sQT}
    s_and_b32 s39, s{sWAVE}, 1
    s_bfe_u32 s40, s{sWAVE}, 0x10001
    s_lshl_b32 s42, s40, 15
    s_lshl_b32 s43, s39, 16
    s_add_u32 s43, s43, s42
    s_lshl_b32 s44, s39, 21
    s_add_u32 s44, s44, s42
    s_add_u32 s44, s44, s36
    s_add_u32 s44, s44, {WS_K}
    s_mov_b32 s{sNOBAR}, 0
    s_cmp_ge_u32 s{sWAVE}, 12
    s_cbranch_scc1 {helper}
    s_bfe_u32 s41, s{sWAVE}, 0x10002
    s_lshl_b32 s41, s41, 11
    s_add_u32 m0, s43, s41
    s_add_u32 s44, s44, s41
    s_waitcnt lgkmcnt(0)
    s_mov_b32 s12, s8
    s_and_b32 s13, s9, 0xffff
    s_cmp_ge_u32 s{sWAVE}, 8
    s_cbranch_scc1 {pro}""")
    for j in range(2):
        a(f"buffer_load_dwordx4 v{VA}, s[{sWS}:{sWS+3}], s44 offen offset:{1024*j} lds")
    a(f"""v_lshlrev_b32 v{T}, 2, v{VLANE}
    v_add_u32 v{T}, {CNT_OFF}, v{T}
    v_mov_b32 v{T+1}, 0
    ds_write_b32 v{T}, v{T+1}""")
    a.label(pro)
    a("s_setprio 3")
    a(f"""s_lshl_b32 s36, s{sHEAD}, 16
    s_lshl_b32 s37, s{sRG}, 10
    s_add_u32 s37, s37, s36
    s_lshl_b32 s38, s{sHEAD}, 9
    s_add_u32 s38, s38, {WS_KMAX}
    v_lshlrev_b32 v{T+1}, 3, v{VLANE}
    buffer_load_dwordx4 v[{QF}:{QF+3}], v{VA}, s[{sWS}:{sWS+3}], s37 offen
    buffer_load_dwordx2 v[{T+2}:{T+3}], v{T+1}, s[{sWS}:{sWS+3}], s38 offen
    s_mov_b32 s{sSECOND}, 0
    s_mov_b32 s{sNIT}, 4
    s_mov_b32 s{sVM}, 0xffff
    s_mov_b32 s{sVM+1}, 0xffff
    v_lshrrev_b32 v{T+4}, 5, v{VLANE}
    v_lshlrev_b32 v{T+4}, 8, v{T+4}
    v_and_b32 v{T+5}, 15, v{VLANE}
    v_lshlrev_b32 v{T+5}, 4, v{T+5}
    v_add_u32 v{T+4}, v{T+4}, v{T+5}
    v_add_u32 v{T+8}, 65536, v{T+4}
    s_lshl_b32 s45, s{sKH}, 15
    v_add_u32 v{VKA}, s45, v{VA}
    v_add_u32 v{VVA}, s45, v{T+8}""")
    emit_vf_init()
    a(f"""v_mov_b32 v{T+6}, 0
    v_mov_b32 v{T+14}, {CNT_OFF}
    s_waitcnt vmcnt(0) lgkmcnt(0)
    v_max_f32 v{T+2}, v{T+2}, v{T+3}""")
    for i in range(4):
        a(f"v_dot2c_f32_bf16 v{T+6}, v{QF+i}, v{QF+i}")
    for dpp in ("quad_perm:[1,0,3,2]", "quad_perm:[2,3,0,1]", "row_half_mirror", "row_mirror"):
        a(f"""s_nop 1
        v_max_f32_dpp v{T+2}, v{T+2}, v{T+2} {dpp} row_mask:0xf bank_mask:0xf""")
    a(f"""v_mov_b32 v{T+7}, v{T+6}
    s_nop 1
    v_permlane32_swap_b32 v{T+6}, v{T+7}
    v_readlane_b32 s46, v{T+2}, 0
    v_readlane_b32 s47, v{T+2}, 16
    v_readlane_b32 s48, v{T+2}, 32
    v_readlane_b32 s49, v{T+2}, 48
    v_add_f32 v{T+6}, v{T+6}, v{T+7}
    s_max_u32 s46, s46, s47
    s_max_u32 s48, s48, s49
    s_max_u32 s46, s46, s48
    s_nop 1
    v_mul_f32 v{T+6}, s46, v{T+6}
    v_sqrt_f32 v{T+6}, v{T+6}
    s_nop 0
    v_mul_f32 v{T+6}, {hex(f32bits(-(1.0 + 2.0**-7)))}, v{T+6}""")
    main = f"{name}_main"
    stamp_mid(a, 1)
    a(f"""s_cmp_lg_u32 s{sNOBAR}, 0
    s_cbranch_scc1 {main}
    s_barrier""")
    a.label(main)
    stamp_mid(a, 2)
    a(f"""ds_read_b128 {vr(KF[0],4)}, v{VKA}
    ds_read_b128 {vr(KF[1],4)}, v{VKA} offset:1024
    s_mov_b64 exec, s[{sVM}:{sVM+1}]
    ds_read_b128 {vr(VF[0],4)}, v{VVA}
    ds_read_b128 {vr(VF[0]+4,4)}, v{VVA} offset:512
    s_mov_b64 exec, -1
    s_mov_b32 s{sIT}, 0""")
    for i in range(16):
        a(f"v_mov_b32 v{CM+i}, v{T+6}")
    for i in range(16):
        a(f"v_mov_b32 v{O+i}, 0")
    for i in range(4):
        a(f"v_mov_b32 v{P+4+i}, 0")
    a(f"""s_waitcnt lgkmcnt(3)
    v_mfma_f32_32x32x16_bf16 {vr(S[0],16)}, {vr(KF[0],4)}, {vr(QF,4)}, {vr(CM,16)}
    s_nop 9""")
    loop = f"{name}_loop"
    a.label(loop)
    for t in range(UN):
        s = S[t % 2]; sn = S[(t + 1) % 2]
        E = [f"v_exp_f32 v{s+i}, v{s+i}" for i in range(16)]
        C = [f"v_cvt_pk_bf16_f32 v{P+i}, v{s+2*i}, v{s+2*i+1}" for i in range(8)]
        if t == 2:
            skip = f"{name}_nopoll"; pl = f"{name}_spoll"
            a(f"""s_cmp_ge_u32 s{sIT}, 2
            s_cbranch_scc1 {skip}
            s_lshl_b32 s50, s{sIT}, 2
            s_add_u32 s50, s50, 4""")
            a.label(pl)
            a(f"""ds_read_b32 v{T+15}, v{T+14} offset:64
            s_waitcnt lgkmcnt(0)
            v_readfirstlane_b32 s51, v{T+15}
            s_nop 3
            s_cmp_lt_u32 s51, s50
            s_cbranch_scc1 {pl}""")
            a.label(skip)
        PR = eval(os.environ.get("PR", "{(1, 4): 2, (3, 0): 1, (3, 6): 0}"))
        for (it_, t_), pr_ in PR.items():
            if t_ == t:
                a(f"""s_cmp_lg_u32 s{sIT}, {it_}
                s_cbranch_scc1 {name}_pr{it_}_{t}
                s_setprio {pr_}""")
                a.label(f"{name}_pr{it_}_{t}")
        a("s_waitcnt lgkmcnt(2)")
        a(f"v_mfma_f32_32x32x16_bf16 {vr(sn,16)}, {vr(KF[(t+1)%2],4)}, {vr(QF,4)}, {vr(CM,16)}")
        a(f"ds_read_b128 {vr(KF[t%2],4)}, v{VKA} offset:{(t+2)*1024}")
        for x in E[:8]: a(x)
        a(f"v_mfma_f32_32x32x16_bf16 {vr(O,16)}, {vr(VF[(t+1)%2]+4,4)}, {vr(P+4,4)}, {vr(O,16)}")
        a(f"""s_mov_b64 exec, s[{sVM}:{sVM+1}]
        ds_read_b128 {vr(VF[(t+1)%2],4)}, v{VVA} offset:{(t+1)*1024}
        ds_read_b128 {vr(VF[(t+1)%2]+4,4)}, v{VVA} offset:{(t+1)*1024+512}
        s_mov_b64 exec, -1""")
        for x in C[:4] + E[8:12]: a(x)
        a("s_waitcnt lgkmcnt(4)")
        a(f"v_mfma_f32_32x32x16_bf16 {vr(O,16)}, {vr(VF[t%2],4)}, {vr(P,4)}, {vr(O,16)}")
        for x in E[12:]: a(x)
        if t == UN - 1:
            a(f"""v_add_u32 v{VKA}, {UN*1024}, v{VKA}
            v_add_u32 v{VVA}, {UN*1024}, v{VVA}
            s_add_u32 s{sIT}, s{sIT}, 1""")
            a(f"s_cmp_lt_u32 s{sIT}, s{sNIT}")
        for x in C[4:]: a(x)
    a(f"s_cbranch_scc1 {loop}")
    a(f"""s_waitcnt lgkmcnt(0)
    v_mfma_f32_32x32x16_bf16 {vr(O,16)}, {vr(VF[1]+4,4)}, {vr(P+4,4)}, {vr(O,16)}""")
    stamp_mid(a, 3)
    fb = f"{name}_fallback"; fin = f"{name}_fin"; second = f"{name}_second"; poll = f"{name}_poll"
    a(f"""s_lshl_b32 s36, s{sRG}, 15
    s_lshl_b32 s37, s{sHEAD}, 10
    s_add_u32 s36, s36, s37
    s_add_u32 s36, s36, {WS_O}
    s_mov_b32 s37, {hex(f32bits(2.0**-40))}
    s_cmp_lg_u32 s{sSECOND}, 0
    s_cbranch_scc1 {name}_fin0
    s_lshl_b32 s38, s{sQT}, 3
    s_add_u32 s38, s38, {CNT_OFF}
    v_mov_b32 v{T+9}, s38
    v_mov_b32 v{T+10}, 1
    s_mul_i32 s39, s{sQT}, 2304
    s_add_u32 s39, s39, {STG}
    s_mov_b64 exec, 1
    ds_add_rtn_u32 v{T+11}, v{T+9}, v{T+10}
    s_mov_b64 exec, -1
    v_add_u32 v{T+12}, s39, v{VA}
    v_lshlrev_b32 v{T+13}, 2, v{VLANE}
    v_add_u32 v{T+13}, s39, v{T+13}
    s_waitcnt lgkmcnt(0)
    v_readfirstlane_b32 s40, v{T+11}
    s_nop 3
    s_cmp_lg_u32 s40, 0
    s_cbranch_scc1 {second}""")
    a.label(f"{name}_sdpoll")
    a(f"""ds_read_b32 v{T+15}, v{T+14} offset:68
    s_waitcnt lgkmcnt(0)
    v_readfirstlane_b32 s51, v{T+15}
    s_nop 3
    s_cmp_lt_u32 s51, 4
    s_cbranch_scc1 {name}_sdpoll
    ds_write_b128 v{T+12}, v[{O}:{O+3}]
    ds_write_b128 v{T+12}, v[{O+4}:{O+7}] offset:1024
    ds_write_b32 v{T+13}, v{O+8} offset:2048
    s_waitcnt lgkmcnt(0)
    ds_write_b32 v{T+9}, v{T+10} offset:4
    s_branch {end}""")
    a.label(second)
    a.label(poll)
    a(f"""ds_read_b32 v{T+11}, v{T+9} offset:4
    s_waitcnt lgkmcnt(0)
    v_readfirstlane_b32 s40, v{T+11}
    s_nop 3
    s_cmp_eq_u32 s40, 0
    s_cbranch_scc1 {poll}
    ds_read_b128 v[{S[0]}:{S[0]+3}], v{T+12}
    ds_read_b128 v[{S[0]+4}:{S[0]+7}], v{T+12} offset:1024
    ds_read_b32 v{S[0]+8}, v{T+13} offset:2048
    s_waitcnt lgkmcnt(0)""")
    for i in range(9):
        a(f"v_add_f32 v{O+i}, v{O+i}, v{S[0]+i}")
    a(f"""v_cmp_nge_f32 vcc, v{O+8}, s37
    s_nop 4
    s_cbranch_vccnz {fb}""")
    a.label(f"{name}_fin0")
    a(f"s_nop 6\nv_rcp_f32 v{O+9}, v{O+8}\ns_nop 0")
    for i in range(8):
        a(f"v_mul_f32 v{O+i}, v{O+i}, v{O+9}")
    for i in range(4):
        a(f"v_cvt_pk_bf16_f32 v{P+i}, v{O+2*i}, v{O+2*i+1}")
    a(f"buffer_store_dwordx4 v[{P}:{P+3}], v{VA}, s[{sWS}:{sWS+3}], s36 offen")
    a.label(end)
    stamp_end(a)
    a.label(end + "_real")
    a("s_endpgm")
    a.label(fb)
    floop = f"{name}_fbloop"
    MX = T + 9
    a(f"""s_mov_b32 s{sSECOND}, 1
    s_mov_b32 s{sNOBAR}, 1
    s_mov_b32 s{sNIT}, 8
    v_mov_b32 v{MX}, 0xff800000
    v_mov_b32 v{T+10}, v{VA}
    s_mov_b32 s38, 0""")
    a.label(floop)
    a(f"""ds_read_b128 {vr(KF[0],4)}, v{T+10}
    v_add_u32 v{T+10}, 1024, v{T+10}
    s_waitcnt lgkmcnt(0)
    v_mfma_f32_32x32x16_bf16 {vr(S[0],16)}, {vr(KF[0],4)}, {vr(QF,4)}, 0
    s_nop 15
    s_nop 3""")
    for i in range(8):
        a(f"v_max3_f32 v{MX}, v{S[0]+2*i}, v{S[0]+2*i+1}, v{MX}")
    a(f"""s_add_u32 s38, s38, 1
    s_cmp_lt_u32 s38, 64
    s_cbranch_scc1 {floop}
    v_mov_b32 v{T+10}, v{MX}
    s_nop 1
    v_permlane32_swap_b32 v{MX}, v{T+10}
    s_nop 1
    v_max_f32 v{MX}, v{MX}, v{T+10}
    v_sub_f32 v{T+6}, 0, v{MX}
    v_mov_b32 v{VKA}, v{VA}
    v_mov_b32 v{VVA}, v{T+8}""")
    emit_vf_init()
    a(f"s_branch {main}")
    a.label(helper)
    a(f"""s_load_dwordx2 s[6:7], s[0:1], {KA_WQKV}
    s_load_dwordx4 s[28:31], s[0:1], {KA_WG}
    s_load_dwordx2 s[60:61], s[0:1], {KA_WO}
    s_load_dwordx2 s[62:63], s[0:1], {KA_WD}
    s_add_u32 s43, s43, 4096
    s_add_u32 s44, s44, 4096
    s_mov_b32 s{sNOBAR}, 1
    s_setprio 3
    v_mov_b32 v{T+14}, {CNT_OFF}
    v_mov_b32 v{T+15}, 1
    s_waitcnt lgkmcnt(0)
    s_mov_b32 s12, s8
    s_and_b32 s13, s9, 0xffff""")
    def dma4():
        a(f"s_mov_b32 m0, s43\ns_add_u32 s43, s43, 4096")
        for j in range(4):
            a(f"buffer_load_dwordx4 v{VA}, s[{sWS}:{sWS+3}], s44 offen offset:{1024*j} lds")
        a("s_add_u32 s44, s44, 4096")
    dma4(); dma4()
    a("s_barrier")
    dma4(); dma4()
    a(f"""s_waitcnt vmcnt(8)
    s_mov_b64 exec, 1
    ds_add_u32 v{T+14}, v{T+15} offset:64
    s_mov_b64 exec, -1""")
    dma4(); dma4(); dma4()
    hdone = f"{name}_hdone"
    a(f"""s_waitcnt vmcnt(0)
    s_mov_b64 exec, 1
    ds_add_u32 v{T+14}, v{T+15} offset:64
    s_mov_b64 exec, -1
    s_cmp_eq_u32 s{sSIDE}, 0
    s_cbranch_scc1 {hdone}
    s_sub_u32 s45, s{sWAVE}, 12
    s_lshl_b32 s34, s45, 13
    s_add_u32 s34, s34, {STG}
    s_lshl_b32 s67, s45, 8
    s_add_u32 s67, s67, s2
    s_mov_b32 s33, 0x3f803f80
    s_cmp_ge_u32 s67, 768
    s_cbranch_scc1 {hdone}""")
    a.label(f"{name}_wloop")
    emit_wunits(a, name + "_w", f"{name}_wnext", VLANE, T, VA, 0, sWS, 67)
    a.label(f"{name}_wnext")
    a(f"""s_mov_b64 exec, -1
    s_add_u32 s67, s67, 768
    s_cmp_lt_u32 s67, 928
    s_cbranch_scc1 {name}_wloop""")
    a.label(hdone)
    a(f"""s_mov_b64 exec, 1
    ds_add_u32 v{T+14}, v{T+15} offset:68
    s_mov_b64 exec, -1
    s_branch {pro}""")
    desc = "".join(kernel_desc(nm, 128) for nm, _ in entries)
    return code + a.text(), desc, LDS
```

```python
from common import *
from k_qkv import emit_stats_final, emit_stats_loads, VmTracker
from collections import defaultdict

def gen_ffn1(name, xoff=WS_X1):
    a = Asm()
    NTL = 7; NB = 9
    ACC = 0; BF = 112; AR = 148; AD = 12
    SR = 196; CP = 212; CT = 196
    VLANE = 228; VA = 229; VB = 230; T = 232
    vMEAN, vRSTD = 246, 247; NM = 248; R2 = 250
    R = 5; SLOT = 28672
    CS_OFF = R * SLOT
    LDS = CS_OFF + 1024
    sWS = 12
    sRB, sCB, sWAVE, sRG = 24, 25, 26, 27
    sBLK, sWOFF, sAOFF = 28, 29, 30
    end = f"{name}_end"
    a(f"""s_cmp_ge_u32 s2, 256
    s_cbranch_scc1 {end}_real""")
    stamp_begin(a)
    a(f"""s_load_dwordx2 s[8:9], s[0:1], {KA_WS}
    v_and_b32 v{VLANE}, 63, v0
    v_lshrrev_b32 v{T}, 6, v0
    s_and_b32 s34, s2, 7
    s_lshr_b32 s35, s2, 3
    v_readfirstlane_b32 s{sWAVE}, v{T}
    v_lshlrev_b32 v{VA}, 4, v{VLANE}
    s_and_b32 s{sRB}, s34, 1
    s_lshl_b32 s{sRB}, s{sRB}, 3
    s_and_b32 s36, s35, 7
    s_add_u32 s{sRB}, s{sRB}, s36
    s_lshr_b32 s{sCB}, s34, 1
    s_lshl_b32 s{sCB}, s{sCB}, 2
    s_lshr_b32 s36, s35, 3
    s_add_u32 s{sCB}, s{sCB}, s36
    s_lshl_b32 s{sRG}, s{sRB}, 2
    s_add_u32 s{sRG}, s{sRG}, s{sWAVE}
    s_mul_i32 s{sBLK}, s{sWAVE}, 7168
    s_mul_i32 s{sWOFF}, s{sCB}, {32*7168}
    s_add_u32 s{sWOFF}, s{sWOFF}, s{sBLK}
    s_add_u32 s{sWOFF}, s{sWOFF}, {WS_WGU}
    s_add_u32 s31, s{sWOFF}, 4096
    s_lshl_b32 s{sAOFF}, s{sRG}, 15
    s_add_u32 s{sAOFF}, s{sAOFF}, {xoff}
    s_mov_b32 s14, {WS_SIZE}
    s_mov_b32 s15, 0x00020000
    v_mov_b32 v{VB}, v{VA}
    s_waitcnt lgkmcnt(0)
    s_mov_b32 s12, s8
    s_and_b32 s13, s9, 0xffff""")
    vm = VmTracker(); lg = VmTracker()
    def bdma(c, j):
        slot = c % R
        if j == 0:
            a(f"s_add_u32 m0, s{sBLK}, {slot*SLOT}\ns_nop 0")
        if j == 4:
            a(f"s_add_u32 m0, s{sBLK}, {slot*SLOT+4096}\ns_nop 0")
        so = sWOFF if j < 4 else 31
        a(f"buffer_load_dwordx4 v{VA}, s[{sWS}:{sWS+3}], s{so} offen offset:{1024*(j%4)} lds")
        if j == 6:
            a(f"s_add_u32 s{sWOFF}, s{sWOFF}, {SLOT}\ns_add_u32 s31, s31, {SLOT}")
        vm.issue(("B", c))
    def aload(s):
        r = AR + 4 * (s % AD)
        a(f"buffer_load_dwordx4 v[{r}:{r+3}], v{VA}, s[{sWS}:{sWS+3}], s{sAOFF} offen offset:{(s%4)*1024}")
        if s % 4 == 3:
            a(f"s_add_u32 s{sAOFF}, s{sAOFF}, 4096")
        vm.issue(("A", s))
    for j in range(7): bdma(0, j)
    for q in range(4): aload(q)
    for j in range(4): bdma(1, j)
    a(f"""v_and_b32 v{T}, 31, v{VLANE}
    v_lshrrev_b32 v{T+1}, 5, v{VLANE}
    v_lshlrev_b32 v{T+2}, 11, v{T+1}
    v_lshl_add_u32 v{T+2}, v{T}, 3, v{T+2}
    s_lshl_b32 s34, s{sRG}, 12
    s_add_u32 s34, s34, {WS_ST}
    v_lshlrev_b32 v{T+3}, 6, v0
    s_mul_i32 s35, s{sCB}, {224*64}
    s_add_u32 s35, s35, {WS_CSG}
    v_lshlrev_b32 v{T+4}, 2, v0
    v_add_u32 v{T+4}, {CS_OFF}, v{T+4}
    v_lshlrev_b32 v{T+5}, 4, v{T+1}
    v_add_u32 v{T+5}, {CS_OFF}, v{T+5}
    s_mul_i32 s37, s{sRG}, {112*1024}
    s_mul_i32 s38, s{sCB}, {7*1024}
    s_add_u32 s37, s37, s38
    s_add_u32 s37, s37, {WS_H}
    s_add_u32 s38, s37, 4096""")
    slots = [(s, t) for s in range(28) for t in range(NTL)] + [(28 + q, t) for t in range(NTL) for q in range(4)]
    NS = len(slots)
    def read(m):
        s, t = slots[m]
        b = BF + 4 * (m % NB)
        a(f"ds_read_b128 v[{b}:{b+3}], v{VB} offset:{(s%4)*7168+1024*t}")
        lg.issue(("F", m))
    loadq = defaultdict(list)
    def small_st(i):
        a(f"buffer_load_dwordx2 v[{SR+2*i}:{SR+2*i+1}], v{T+2}, s[{sWS}:{sWS+3}], s34 offen offset:{256*i}")
        vm.issue(("S", 0))
    def small_cs(i):
        a(f"buffer_load_dwordx4 v[{CP+4*i}:{CP+4*i+3}], v{T+3}, s[{sWS}:{sWS+3}], s35 offen offset:{16*i}")
        vm.issue(("S", 0))
    seq = [lambda j=j: bdma(1, j) for j in range(4, 7)] + [lambda s=s: aload(s) for s in range(4, 8)]
    for i, f in enumerate(seq): loadq[i].append(f)
    for i in range(8): loadq[29 + 2 * i].append(lambda i=i: small_st(i))
    for i in range(4): loadq[45 + 2 * i].append(lambda i=i: small_cs(i))
    for c in range(2, 8):
        base = (c - 2) * 28 + 8 if c == 2 else (c - 2) * 28 + 2
        step = 3 if c == 2 else 4
        for j in range(7):
            loadq[base + step * j].append(lambda c=c, j=j: bdma(c, j))
    for s in range(8, 32):
        loadq[(s - 8) * 7 + 6].append(lambda s=s: aload(s))
    fillq = defaultdict(list)
    sub = Asm()
    for i in range(8):
        sub(f"v_add_f32 v{CP+2*i}, v{CP+2*i}, v{CP+2*i+1}")
    for i in range(4):
        sub(f"v_add_f32 v{CP+4*i}, v{CP+4*i}, v{CP+4*i+2}")
    sub(f"""v_add_f32 v{CP}, v{CP}, v{CP+4}
    v_add_f32 v{CP+8}, v{CP+8}, v{CP+12}
    v_add_f32 v{CP}, v{CP}, v{CP+8}
    DSW""")
    emit_stats_final(sub, SR, T + 6, vMEAN, vRSTD)
    sub(f"""v_sub_f32 v{NM}, 0, v{vMEAN}
    v_mul_f32 v{R2}, v{vRSTD}, v{vRSTD}
    v_mul_f32 v{R2+1}, v{vRSTD}, v{vRSTD}""")
    blockA = [l.strip() for l in sub.lines]
    m0 = 11 * 7 + 2
    for i, ins in enumerate(blockA):
        fillq[m0 + i // 2].append((ins, None))
    lastA = m0 + (len(blockA) - 1) // 2
    assert lastA < 19 * 7, lastA
    assert m0 + blockA.index("DSW") // 2 < 15 * 7
    csreadq = defaultdict(list)
    for tt in range(7):
        cb = CT + 16 * (tt % 2)
        ks = 20 + tt
        csreadq[(ks - 1) * 7 + tt].append((tt, cb))
        mt = ks * 7 + tt
        if os.environ.get("PKF"):
            pos = [mt + 3] * 2 + [mt + 4] * 2 + [mt + 5] * 2 + [mt + 6] * 2
            for i in range(8):
                r = ACC + 16 * tt + 2 * i
                fillq[pos[i]].append((f"v_pk_fma_f32 v[{r}:{r+1}], v[{NM}:{NM+1}], v[{cb+2*i}:{cb+2*i+1}], v[{r}:{r+1}] op_sel_hi:[0,1,1]", tt, ("C", tt)))
        else:
            pos = [mt + 3] * 4 + [mt + 4] * 4 + [mt + 5] * 4 + [mt + 6] * 4
            for i in range(16):
                r = ACC + 16 * tt + i
                fillq[pos[i]].append((f"v_fmac_f32 v{r}, v{NM}, v{cb+i}", tt, ("C", tt)))
    def epi(t):
        ac = ACC + 16 * t
        L = []
        for i in range(8): L.append(f"v_max_f32 v{ac+i}, 0, v{ac+i}")
        if os.environ.get("PKE"):
            for i in range(4): L.append(f"v_pk_mul_f32 v[{ac+8+2*i}:{ac+8+2*i+1}], v[{ac+8+2*i}:{ac+8+2*i+1}], v[{R2}:{R2+1}]")
            for i in range(4): L.append(f"v_pk_mul_f32 v[{ac+2*i}:{ac+2*i+1}], v[{ac+2*i}:{ac+2*i+1}], v[{ac+8+2*i}:{ac+8+2*i+1}]")
        else:
            for i in range(8): L.append(f"v_mul_f32 v{ac+8+i}, v{ac+8+i}, v{R2}")
            for i in range(8): L.append(f"v_mul_f32 v{ac+i}, v{ac+i}, v{ac+8+i}")
        for i in range(4): L.append(f"v_cvt_pk_bf16_f32 v{ac+8+i}, v{ac+2*i}, v{ac+2*i+1}")
        so = 37 if t < 4 else 38
        L.append(f"buffer_store_dwordx4 v[{ac+8}:{ac+11}], v{VA}, s[{sWS}:{sWS+3}], s{so} offen offset:{(t%4)*1024}")
        return L
    tail = []
    for t in range(NTL):
        mt = 196 + 4 * t + 3
        for i, ins in enumerate(epi(t)):
            p = mt + 3 + i // (6 if os.environ.get('PKE') else 8)
            if p < NS: fillq[p].append((ins, t))
            else: tail.append((ins, t))
    a(f"s_waitcnt vmcnt({vm.wait_for({('B',0)})})\ns_barrier")
    stamp_mid(a, 2)
    for m in range(7): read(m)
    last_mfma_pos = {}
    def pos(): return len(a.lines)
    seenA = set(); curchunk = 0
    def emit_fill(item):
        ins = item[0]; tile = item[1]
        if len(item) > 2:
            n = lg.wait_for({item[2]})
            if n < 15 and ("w", item[2]) not in seenA:
                a(f"s_waitcnt lgkmcnt({n})"); seenA.add(("w", item[2]))
        if tile is not None:
            d = pos() - last_mfma_pos[tile]
            if d < 13:
                a(f"s_nop {13 - d - 1}")
        if ins == "DSW":
            a(f"ds_write_b32 v{T+4}, v{CP}"); lg.issue(("W", 0))
        else:
            a(ins)
    for m, (s, t) in enumerate(slots):
        w = f"lgkmcnt({min(15, lg.wait_for({('F', m)}))})"
        need = set()
        if s not in seenA:
            seenA.add(s); need.add(("A", s))
        if m == m0: need.add(("S", 0))
        if need: w = f"vmcnt({vm.wait_for(need)}) " + w
        a(f"s_waitcnt {w}")
        cc = "0" if s == 0 else vr(ACC + 16 * t, 16)
        af = AR + 4 * (s % AD)
        a(f"v_mfma_f32_32x32x16_bf16 {vr(ACC+16*t,16)}, {vr(BF+4*(m%NB),4)}, {vr(af,4)}, {cc}")
        last_mfma_pos[t] = pos() - 1
        for f in loadq[m]: f()
        for item in fillq[m]: emit_fill(item)
        if m + 7 < NS:
            cn = slots[m + 7][0] // 4
            if cn != curchunk:
                curchunk = cn
                lw = ""
                if cn == 4:
                    lw = f" lgkmcnt({min(15, lg.wait_for({('W', 0)}))})"
                a(f"s_waitcnt vmcnt({vm.wait_for({('B', cn)})}){lw}\ns_barrier")
                a(f"v_add_u32 v{VB}, {(cn % R)*SLOT}, v{VA}")
                if os.environ.get("CKS") and cn in (2, 4, 7): stamp_mid(a, {2: 0, 4: 1, 7: 4}[cn])
            read(m + 7)
        else:
            a("s_nop 0")
        for (tt, cb) in csreadq[m]:
            for g in range(4):
                a(f"ds_read_b128 v[{cb+4*g}:{cb+4*g+3}], v{T+5} offset:{128*tt+32*g}")
                lg.issue(("C", tt))
    X = os.environ.get("FX", "")
    if X:
        import re
        i0 = max(i for i, l in enumerate(a.lines) if "s_sub_u32 s98" in l) + 1
        body = a.lines[i0:]
        if "b" in X: body = [l for l in body if "s_barrier" not in l]
        if "A" in X: body = [l for l in body if not ("buffer_load" in l and " lds" not in l)]
        if "B" in X: body = [l for l in body if not ("buffer_load" in l and " lds" in l)]
        if "V" in X: body = [re.sub(r"vmcnt\(\d+\) ?", "", l) if "lgkmcnt" in l else l for l in body if not ("vmcnt" in l and "lgkmcnt" not in l)]
        if "f" in X: body = [l for l in body if "f64" not in l]
        if "c" in X: body = [l for l in body if "v_fmac" not in l]
        if "n" in X: body = [l for l in body if "s_nop" not in l]
        a.lines = a.lines[:i0] + body
    stamp_mid(a, 3)
    for item in tail: emit_fill(item)
    a.label(end)
    stamp_end(a)
    a.label(end + "_real")
    a("s_endpgm")
    return kernel_header(name) + a.text(), kernel_desc(name, 256), LDS
```

```python
from common import *
from k_prep import emit_tile_stats

def gen_proj(variants):
    a = Asm()
    name = variants[0]["name"]
    R = 8; CH = 16384; PRE = int(os.environ.get("PRE", "3"))
    ACC = 0; RES = 48; VLANE = 56; VA = 57; VDMA = 58; VRA = 59; VRB = 60; VRA0 = 61; VRB0 = 62; T = 64; FR = 96
    LDS = R * CH
    sW, sWS, sX = 12, 16, 20
    sRB, sCB, sWAVE = 24, 25, 26
    sNCH, sAOFFP, sARG, sKAW, sRES, sOUT = 40, 41, 42, 43, 44, 45
    sAO, sW0, sW1, sLSLOT, sRSLOT, sCNT, sLCNT = 28, 29, 30, 31, 32, 33, 46
    body = f"{name}_body"; end = f"{name}_end"
    code = ""
    for i, v in enumerate(variants):
        code += kernel_header(v["name"])
        code += f"""    s_mov_b32 s{sNCH}, {v['KS']//4}
    s_mov_b32 s{sAOFFP}, {v['a_off']}
    s_mov_b32 s{sARG}, {v['KS']*1024}
    s_mov_b32 s{sKAW}, {v['w_off']}
    s_mov_b32 s{sRES}, {0 if v['res'] == 'nat' else v['res']}
    s_mov_b32 s{sOUT}, {0 if v['out'] == 'nat' else v['out']}
"""
        if i + 1 < len(variants):
            code += f"    s_branch {body}\n"
    a.label(body)
    a(f"""s_cmp_ge_u32 s2, 256
    s_cbranch_scc1 {end}_real""")
    stamp_begin(a)
    a(f"""s_load_dwordx2 s[8:9], s[0:1], {KA_WS}
    s_load_dwordx2 s[4:5], s[0:1], {KA_OUT}
    s_load_dwordx2 s[6:7], s[0:1], {KA_X}
    v_and_b32 v{VLANE}, 63, v0
    v_lshrrev_b32 v{T}, 6, v0
    s_and_b32 s34, s2, 7
    s_lshr_b32 s35, s2, 3
    v_readfirstlane_b32 s{sWAVE}, v{T}
    s_lshl_b32 s{sRB}, s34, 2
    s_and_b32 s36, s35, 3
    s_add_u32 s{sRB}, s{sRB}, s36
    s_lshr_b32 s{sCB}, s35, 2
    v_lshlrev_b32 v{VA}, 4, v{VLANE}
    s_and_b32 s36, s{sWAVE}, 1
    s_lshr_b32 s37, s{sWAVE}, 1
    s_lshl_b32 s38, s{sRB}, 1
    s_add_u32 s38, s38, s36
    s_mul_i32 s{sAO}, s38, s{sARG}
    s_lshl_b32 s39, s37, 11
    s_add_u32 s{sAO}, s{sAO}, s39
    s_add_u32 s{sAO}, s{sAO}, s{sAOFFP}
    s_mul_i32 s{sW0}, s{sCB}, s{sARG}
    s_lshl_b32 s{sW0}, s{sW0}, 1
    s_lshl_b32 s47, s{sWAVE}, 11
    s_add_u32 s{sW0}, s{sW0}, s47
    s_add_u32 s{sW0}, s{sW0}, s{sKAW}
    s_lshl_b32 s48, s36, 12
    s_add_u32 s48, s48, s39
    s_lshl_b32 s49, s{sWAVE}, 11
    s_add_u32 s49, s49, 8192
    s_mov_b32 s{sLSLOT}, 0
    s_mov_b32 s{sRSLOT}, 0
    s_mov_b32 s{sLCNT}, s{sNCH}
    s_mov_b32 s{sCNT}, s{sNCH}
    s_mov_b32 s18, {WS_SIZE}
    s_mov_b32 s19, 0x00020000
    s_mov_b32 s54, {WS_SIZE}
    s_mov_b32 s55, 0x00020000
    s_waitcnt lgkmcnt(0)
    s_mov_b32 s16, s8
    s_and_b32 s17, s9, 0xffff
    s_mov_b32 s52, s8
    s_and_b32 s53, s9, 0xffff""")
    def ld(q):
        if q == 0:
            a(f"""s_add_u32 m0, s{sLSLOT}, s48
            s_add_u32 s50, s{sLSLOT}, s49
            buffer_load_dwordx4 v{VA}, s[52:55], s{sAO} offen lds""")
        if q == 1:
            a(f"""buffer_load_dwordx4 v{VA}, s[52:55], s{sAO} offen offset:1024 lds
            s_mov_b32 m0, s50
            s_add_u32 s{sAO}, s{sAO}, {0 if os.environ.get('NOA') else 4096}""")
        if q == 2:
            a(f"""buffer_load_dwordx4 v{VA}, s[52:55], s{sW0} offen lds
            s_add_u32 s{sLSLOT}, s{sLSLOT}, {CH}
            s_and_b32 s{sLSLOT}, s{sLSLOT}, {R*CH-1}""")
        if q == 3:
            a(f"""buffer_load_dwordx4 v{VA}, s[52:55], s{sW0} offen offset:1024 lds
            s_add_u32 s{sW0}, s{sW0}, {0 if os.environ.get('NOB') else 8192}
""")
    def loads():
        for q in range(4): ld(q)
    stamp_mid(a, 0)
    for c in range(PRE):
        loads()
    a(f"""s_lshl_b32 s56, s38, 15
    s_lshl_b32 s57, s{sCB}, 12
    s_lshl_b32 s58, s37, 11
    s_add_u32 s57, s57, s58
    s_add_u32 s57, s57, s56
    s_add_u32 s58, s57, s{sRES}
    s_cmp_eq_u32 s{sRES}, 0
    s_cbranch_scc1 {name}_rnat
    buffer_load_dwordx4 v[{RES}:{RES+3}], v{VA}, s[{sWS}:{sWS+3}], s58 offen
    buffer_load_dwordx4 v[{RES+4}:{RES+7}], v{VA}, s[{sWS}:{sWS+3}], s58 offen offset:1024""")
    a.label(f"{name}_rdone")
    a(f"""
    s_lshl_b32 s59, s36, 12
    v_add_u32 v{VRA0}, s59, v{VA}
    s_lshl_b32 s59, s37, 10
    s_add_u32 s59, s59, 8192
    v_add_u32 v{VRB0}, s59, v{VA}""")
    for i in range(16):
        a(f"v_mov_b32 v{ACC+i}, 0")
    stamp_mid(a, 1)
    def rd_setup():
        a(f"""v_add_u32 v{VRA}, s{sRSLOT}, v{VRA0}
        v_add_u32 v{VRB}, s{sRSLOT}, v{VRB0}
        s_add_u32 s{sRSLOT}, s{sRSLOT}, {CH}
        s_and_b32 s{sRSLOT}, s{sRSLOT}, {R*CH-1}""")
    def rd(buf, q):
        af = FR + 32 * buf; bf = af + 16
        a(f"ds_read_b128 v[{af+4*q}:{af+4*q+3}], v{VRA} offset:{q*1024}")
        a(f"ds_read_b128 v[{bf+4*q}:{bf+4*q+3}], v{VRB} offset:{q*2048}")
    def mf(buf, q):
        af = FR + 32 * buf; bf = af + 16
        a(f"v_mfma_f32_32x32x16_bf16 {vr(ACC,16)}, {vr(bf+4*q,4)}, {vr(af+4*q,4)}, {vr(ACC,16)}")
    assert PRE == 3
    def phase(cur, vmw, with_loads):
        a(f"s_waitcnt vmcnt({vmw}) lgkmcnt(0)\ns_barrier")
        rd_setup()
        for q in range(4):
            mf(cur, q)
            rd(1 - cur, q)
            if with_loads: ld(q)
    a(f"s_waitcnt vmcnt({(PRE-1)*4+2})")
    stamp_mid(a, 2)
    a("s_barrier")
    rd_setup()
    for q in range(4):
        rd(0, q); ld(q)
    a(f"s_sub_u32 s{sCNT}, s{sCNT}, {PRE+1}\ns_lshr_b32 s{sCNT}, s{sCNT}, 1")
    loop = f"{name}_loop"
    a.label(loop)
    phase(0, 8, True)
    a(f"s_sub_u32 s{sCNT}, s{sCNT}, 1")
    phase(1, 8, True)
    a(f"""s_cmp_lg_u32 s{sCNT}, 0
    s_cbranch_scc1 {loop}""")
    phase(0, 8, False)
    phase(1, 4, False)
    phase(0, 0, False)
    for q in range(4):
        a(f"s_waitcnt lgkmcnt({2*(3-q)})")
        mf(1, q)
    a("s_nop 1")
    stamp_mid(a, 3)
    U = 80
    a(f"""s_mov_b32 s47, 0xffff0000
    s_cmp_lg_u32 s{sRES}, 0
    s_cbranch_scc1 {name}_noswap
    v_permlane32_swap_b32 v{RES}, v{RES+2}
    v_permlane32_swap_b32 v{RES+1}, v{RES+3}
    v_permlane32_swap_b32 v{RES+4}, v{RES+6}
    v_permlane32_swap_b32 v{RES+5}, v{RES+7}
    s_nop 1""")
    a.label(f"{name}_noswap")
    for i in range(8):
        a(f"v_lshlrev_b32 v{U+2*i}, 16, v{RES+i}\nv_and_b32 v{U+2*i+1}, s47, v{RES+i}")
    for i in range(16):
        a(f"v_add_f32 v{ACC+i}, v{ACC+i}, v{U+i}")
    PK = RES
    for i in range(8):
        a(f"v_cvt_pk_bf16_f32 v{PK+i}, v{ACC+2*i}, v{ACC+2*i+1}")
    nat = f"{name}_nat"
    a(f"""s_cmp_eq_u32 s{sOUT}, 0
    s_cbranch_scc1 {nat}
    s_add_u32 s58, s57, s{sOUT}
    buffer_store_dwordx4 v[{PK}:{PK+3}], v{VA}, s[{sWS}:{sWS+3}], s58 offen
    buffer_store_dwordx4 v[{PK+4}:{PK+7}], v{VA}, s[{sWS}:{sWS+3}], s58 offen offset:1024
    v_and_b32 v{T}, 31, v{VLANE}
    v_lshlrev_b32 v{T}, 3, v{T}
    s_lshr_b32 s58, s57, 3
    s_add_u32 s58, s58, {WS_ST}""")
    for i in range(8):
        a(f"v_lshlrev_b32 v{U+2*i}, 16, v{PK+i}\nv_and_b32 v{U+2*i+1}, s47, v{PK+i}")
    emit_tile_stats(a, U, T + 2, T, sWS, 58)
    a(f"s_branch {end}")
    a.label(nat)
    make_srd(a, sX, 4, 2048 * 1024)
    a(f"""s_lshl_b32 s58, s{sCB}, 7
    s_lshl_b32 s59, s37, 6
    s_add_u32 s58, s58, s59
    s_add_u32 s58, s58, s56
    v_and_b32 v{T}, 31, v{VLANE}
    v_lshlrev_b32 v{T}, 10, v{T}
    v_lshrrev_b32 v{T+1}, 5, v{VLANE}
    v_lshl_add_u32 v{T}, v{T+1}, 4, v{T}
    v_permlane32_swap_b32 v{PK}, v{PK+2}
    v_permlane32_swap_b32 v{PK+1}, v{PK+3}
    v_permlane32_swap_b32 v{PK+4}, v{PK+6}
    v_permlane32_swap_b32 v{PK+5}, v{PK+7}
    s_nop 1
    buffer_store_dwordx4 v[{PK}:{PK+3}], v{T}, s[{sX}:{sX+3}], s58 offen
    buffer_store_dwordx4 v[{PK+4}:{PK+7}], v{T}, s[{sX}:{sX+3}], s58 offen offset:32""")
    a.label(end)
    stamp_end(a)
    a.label(end + "_real")
    a("s_endpgm")
    a.label(f"{name}_rnat")
    a(f"""s_mov_b32 s60, s6
    s_and_b32 s61, s7, 0xffff
    s_mov_b32 s62, {2048*1024}
    s_mov_b32 s63, 0x00020000
    s_lshl_b32 s58, s{sCB}, 7
    s_lshl_b32 s59, s37, 6
    s_add_u32 s58, s58, s59
    s_add_u32 s58, s58, s56
    v_and_b32 v{T}, 31, v{VLANE}
    v_lshlrev_b32 v{T}, 10, v{T}
    v_lshrrev_b32 v{T+1}, 5, v{VLANE}
    v_lshl_add_u32 v{T}, v{T+1}, 4, v{T}
    buffer_load_dwordx4 v[{RES}:{RES+3}], v{T}, s[60:63], s58 offen
    buffer_load_dwordx4 v[{RES+4}:{RES+7}], v{T}, s[60:63], s58 offen offset:32
    s_branch {name}_rdone""")
    desc = "".join(kernel_desc(v["name"], 160) for v in variants)
    return code + a.text(), desc, LDS
```

```python
from common import *
import math

QSCALE = 0.25 * math.log2(math.e)

class VmTracker:
    def __init__(self): self.ops = []
    def issue(self, tag): self.ops.append(tag)
    def wait_for(self, tags):
        last = max(i for i, t in enumerate(self.ops) if t in tags)
        return len(self.ops) - 1 - last

def emit_stats_loads(a, SR, vaddr, srd, soff):
    for i in range(8):
        a(f"buffer_load_dwordx2 v[{SR+2*i}:{SR+2*i+1}], v{vaddr}, s[{srd}:{srd+3}], s{soff} offen offset:{256*i}")

def emit_stats_final(a, SR, T, vMEAN, vRSTD):
    a(f"v_cvt_f64_f32 v[{T}:{T+1}], v{SR}\nv_cvt_f64_f32 v[{T+2}:{T+3}], v{SR+1}")
    for i in range(1, 8):
        a(f"""v_cvt_f64_f32 v[{T+4}:{T+5}], v{SR+2*i}
        v_cvt_f64_f32 v[{T+6}:{T+7}], v{SR+2*i+1}
        v_add_f64 v[{T}:{T+1}], v[{T}:{T+1}], v[{T+4}:{T+5}]
        v_add_f64 v[{T+2}:{T+3}], v[{T+2}:{T+3}], v[{T+6}:{T+7}]""")
    a(f"""v_mov_b32 v{T+4}, v{T}
    v_mov_b32 v{T+5}, v{T+1}
    v_mov_b32 v{T+6}, v{T+2}
    v_mov_b32 v{T+7}, v{T+3}
    s_nop 1
    v_permlane32_swap_b32 v{T}, v{T+4}
    v_permlane32_swap_b32 v{T+1}, v{T+5}
    v_permlane32_swap_b32 v{T+2}, v{T+6}
    v_permlane32_swap_b32 v{T+3}, v{T+7}
    s_nop 1
    v_add_f64 v[{T}:{T+1}], v[{T}:{T+1}], v[{T+4}:{T+5}]
    v_add_f64 v[{T+2}:{T+3}], v[{T+2}:{T+3}], v[{T+6}:{T+7}]
    v_ldexp_f64 v[{T}:{T+1}], v[{T}:{T+1}], -9
    v_ldexp_f64 v[{T+2}:{T+3}], v[{T+2}:{T+3}], -9
    v_fma_f64 v[{T+2}:{T+3}], -v[{T}:{T+1}], v[{T}:{T+1}], v[{T+2}:{T+3}]
    v_cvt_f32_f64 v{vMEAN}, v[{T}:{T+1}]
    v_cvt_f32_f64 v{vRSTD}, v[{T+2}:{T+3}]
    v_max_f32 v{vRSTD}, 0, v{vRSTD}
    v_add_f32 v{vRSTD}, {hex(f32bits(1e-5))}, v{vRSTD}
    v_rsq_f32 v{vRSTD}, v{vRSTD}
    s_nop 0""")

def gen_qkv(names_xoffs):
    a = Asm()
    name = names_xoffs[0][0]
    ACC = 0; BF = 48; BQ = 84; BK = 100; AVv = 116; BV = 132
    AR = 148; AD = 20
    SR = AVv; CP = BV; VLANE = 228; VA = 229; VB0 = 230; VB1 = 231; T = 232
    vMEAN, vRSTD, vNB, vRQ = 248, 249, 250, 251
    CS_OFF = 98304; ST_OFF = CS_OFF + 1024
    LDS = ST_OFF + 1024
    sWS = 12
    sRB, sCB, sWAVE, sRG = 24, 25, 26, 27
    sM0, sWOFF, sAOFF, sXOFF = 30, 31, 32, 33
    body = f"{name}_body"
    end = f"{name}_end"
    code = ""
    for i, (nm, xoff) in enumerate(names_xoffs):
        code += kernel_header(nm) + f"    s_mov_b32 s{sXOFF}, {xoff}\n"
        if i + 1 < len(names_xoffs):
            code += f"    s_branch {body}\n"
    a.label(body)
    a(f"""s_cmp_ge_u32 s2, 256
    s_cbranch_scc1 {end}_real""")
    stamp_begin(a)
    a(f"""s_load_dwordx2 s[8:9], s[0:1], {KA_WS}
    v_and_b32 v{VLANE}, 63, v0
    v_lshrrev_b32 v{T}, 6, v0
    s_and_b32 s28, s2, 7
    s_lshr_b32 s29, s2, 3
    v_readfirstlane_b32 s{sWAVE}, v{T}
    v_lshlrev_b32 v{VA}, 4, v{VLANE}
    s_and_b32 s{sRB}, s28, 3
    s_lshl_b32 s{sRB}, s{sRB}, 2
    s_and_b32 s34, s29, 3
    s_add_u32 s{sRB}, s{sRB}, s34
    s_lshr_b32 s{sCB}, s28, 2
    s_lshl_b32 s{sCB}, s{sCB}, 3
    s_lshr_b32 s34, s29, 2
    s_add_u32 s{sCB}, s{sCB}, s34
    s_lshl_b32 s{sRG}, s{sRB}, 2
    s_add_u32 s{sRG}, s{sRG}, s{sWAVE}
    s_mul_i32 s{sM0}, s{sWAVE}, 3072
    s_mul_i32 s{sWOFF}, s{sCB}, 98304
    s_add_u32 s{sWOFF}, s{sWOFF}, s{sM0}
    s_add_u32 s{sWOFF}, s{sWOFF}, {WS_WQKV}
    s_lshl_b32 s{sAOFF}, s{sRG}, 15
    s_add_u32 s{sAOFF}, s{sAOFF}, s{sXOFF}
    s_mov_b32 s14, {WS_SIZE}
    s_mov_b32 s15, 0x00020000
    s_waitcnt lgkmcnt(0)
    s_mov_b32 s12, s8
    s_and_b32 s13, s9, 0xffff""")
    vm = VmTracker()
    def bdma(c, j):
        if j == 0:
            a(f"s_mov_b32 m0, s{sM0}\ns_add_u32 s{sM0}, s{sM0}, 12288")
        a(f"buffer_load_dwordx4 v{VA}, s[{sWS}:{sWS+3}], s{sWOFF} offen offset:{1024*j} lds")
        if j == 2:
            a(f"s_add_u32 s{sWOFF}, s{sWOFF}, {0 if os.environ.get('NOB') else 12288}")
        vm.issue(("B", c))
    def aload(s):
        r = AR + 4 * (s % AD)
        a(f"buffer_load_dwordx4 v[{r}:{r+3}], v{VA}, s[{sWS}:{sWS+3}], s{sAOFF} offen offset:{(s%4)*1024}")
        if s % 4 == 3:
            a(f"s_add_u32 s{sAOFF}, s{sAOFF}, {0 if os.environ.get('NOA') else 4096}")
        vm.issue(("A", s))
    stamp_mid(a, 0)
    PRE = int(os.environ.get("QPRE", "2"))
    from collections import defaultdict
    for c in range(2):
        for j in range(3): bdma(c, j)
        for q in range(4): aload(4 * c + q)
    a(f"""v_and_b32 v{T}, 31, v{VLANE}
    v_lshrrev_b32 v{T+1}, 5, v{VLANE}
    v_lshlrev_b32 v{T+2}, 11, v{T+1}
    v_lshl_add_u32 v{T+2}, v{T}, 3, v{T+2}
    s_lshl_b32 s34, s{sRG}, 12
    s_add_u32 s34, s34, {WS_ST}
    v_lshlrev_b32 v{T+13}, 5, v0
    s_mul_i32 s35, s{sCB}, 3072
    s_add_u32 s35, s35, {WS_CSQ}
    v_mov_b32 v{VB0}, v{VA}
    v_add_u32 v{VB1}, 49152, v{VA}
    v_lshlrev_b32 v{T+3}, 2, v0
    v_add_u32 v{T+3}, {CS_OFF}, v{T+3}""")
    def small():
        emit_stats_loads(a, SR, T + 2, sWS, 34)
        for i in range(8): vm.issue(("S", 0))
        a(f"""buffer_load_dwordx4 v[{CP}:{CP+3}], v{T+13}, s[{sWS}:{sWS+3}], s35 offen
        buffer_load_dwordx4 v[{CP+4}:{CP+7}], v{T+13}, s[{sWS}:{sWS+3}], s35 offen offset:16""")
        vm.issue(("S", 0)); vm.issue(("S", 0))
    pend = []
    for c in range(2, 8):
        pend += [(c, (lambda c=c, j=j: bdma(c, j))) for j in range(3)]
        pend += [(c, (lambda s=4*c+q: aload(s))) for q in range(4)]
        if c == 3: pend.append((c, small))
    def issue_upto(slot):
        s = slot // 3
        n = 0
        while pend and n < 2:
            c, f = pend[0]
            if c <= s // 4 + PRE and (c - 5) < s // 4:
                f(); pend.pop(0); n += 1
            else:
                break
    def reads(s):
        buf = BF + (s % 3) * 12
        base = VB0 if s < 16 else VB1
        off = (s % 16) * 3072
        for t in range(3):
            a(f"ds_read_b128 v[{buf+4*t}:{buf+4*t+3}], v{base} offset:{off+1024*t}")
    stamp_mid(a, 1)
    a(f"s_waitcnt vmcnt({vm.wait_for({('B',0)})})\ns_barrier")
    stamp_mid(a, 2)
    reads(0)
    def block1():
        emit_stats_final(a, SR, T + 4, vMEAN, vRSTD)
        a(f"""v_add_f32 v{CP}, v{CP}, v{CP+1}
        v_add_f32 v{CP+2}, v{CP+2}, v{CP+3}
        v_add_f32 v{CP+4}, v{CP+4}, v{CP+5}
        v_add_f32 v{CP+6}, v{CP+6}, v{CP+7}
        v_add_f32 v{CP}, v{CP}, v{CP+2}
        v_add_f32 v{CP+4}, v{CP+4}, v{CP+6}
        v_add_f32 v{CP}, v{CP}, v{CP+4}
        ds_write_b32 v{T+3}, v{CP}
        v_mul_f32 v{vNB}, v{vMEAN}, v{vRSTD}
        v_sub_f32 v{vNB}, 0, v{vNB}
        v_mul_f32 v{vRQ}, {hex(f32bits(QSCALE))}, v{vRSTD}
        s_lshl_b32 s34, s{sWAVE}, 8
        s_add_u32 s35, s34, {ST_OFF}
        v_lshl_add_u32 v{T+4}, v{T}, 2, s35
        ds_write_b32 v{T+4}, v{vRSTD}
        ds_write_b32 v{T+4}, v{vNB} offset:128
        v_lshl_add_u32 v{T+5}, v{T+1}, 4, s35
        v_lshlrev_b32 v{T+6}, 4, v{T+1}
        v_add_u32 v{T+6}, {CS_OFF}, v{T+6}
        v_lshlrev_b32 v{T+7}, 2, v{T}
        v_add_u32 v{T+7}, {CS_OFF+256}, v{T+7}
        v_mul_f32 v{T+8}, {hex(f32bits(QSCALE))}, v{vNB}""")
    def block2a():
        for g in range(4):
            a(f"ds_read_b128 v[{BQ+4*g}:{BQ+4*g+3}], v{T+6} offset:{32*g}")
            a(f"ds_read_b128 v[{BK+4*g}:{BK+4*g+3}], v{T+6} offset:{128+32*g}")
        a(f"ds_read_b32 v{T+9}, v{T+7}")
    def block2b():
        for g in range(4):
            a(f"ds_read_b128 v[{AVv+4*g}:{AVv+4*g+3}], v{T+5} offset:{32*g}")
            a(f"ds_read_b128 v[{BV+4*g}:{BV+4*g+3}], v{T+5} offset:{128+32*g}")
    def block3():
        for i in range(16):
            a(f"v_mul_f32 v{BQ+i}, v{BQ+i}, v{T+8}")
        for i in range(16):
            a(f"v_mul_f32 v{BK+i}, v{BK+i}, v{vNB}")
        for i in range(16):
            a(f"v_mul_f32 v{BV+i}, v{BV+i}, v{T+9}")
    for s in range(32):
        c = s // 4
        wA = vm.wait_for({("A", s)})
        if s + 1 < 32:
            if (s + 1) % 4 == 0:
                a(f"s_waitcnt vmcnt({vm.wait_for({('B',(s+1)//4), ('A', s)})}) lgkmcnt(0)\ns_barrier")
                reads(s + 1)
            else:
                reads(s + 1)
                a(f"s_waitcnt vmcnt({wA}) lgkmcnt(3)")
        else:
            a(f"s_waitcnt vmcnt({wA}) lgkmcnt(0)")
        buf = BF + (s % 3) * 12
        af = AR + 4 * (s % AD)
        def C(t): return "0" if s == 0 else vr(ACC + 16 * t, 16)
        a(f"v_mfma_f32_32x32x16_bf16 {vr(ACC,16)}, {vr(buf,4)}, {vr(af,4)}, {C(0)}")
        issue_upto(3 * s)
        a(f"v_mfma_f32_32x32x16_bf16 {vr(ACC+16,16)}, {vr(buf+4,4)}, {vr(af,4)}, {C(1)}")
        issue_upto(3 * s + 1)
        a(f"v_mfma_f32_32x32x16_bf16 {vr(ACC+32,16)}, {vr(af,4)}, {vr(buf+8,4)}, {C(2)}")
        issue_upto(3 * s + 2)
        if s == 17: block1()
        if s == 20: block2a()
        if s == 21: block2b()
        if s == 22: block3()
        if s == 24:
            a(f"""v_bfe_u32 v{T+10}, v{VLANE}, 4, 1
            v_lshlrev_b32 v{T+10}, 16, v{T+10}
            v_and_b32 v{T+11}, 15, v{VLANE}
            v_lshlrev_b32 v{T+11}, 4, v{T+11}
            v_lshlrev_b32 v{T+12}, 8, v{T+1}
            v_add3_u32 v{T+10}, v{T+10}, v{T+11}, v{T+12}
            v_lshrrev_b32 v{T+11}, 2, v{VLANE}
            s_lshl_b32 s37, s{sCB}, 17
            s_lshl_b32 s38, s{sRG}, 10
            s_add_u32 s37, s37, s38
            s_add_u32 s39, s37, {WS_V}
            s_add_u32 s40, s37, {WS_Q}
            s_add_u32 s41, s40, 65536
            s_add_u32 s42, s37, {WS_K}
            s_add_u32 s43, s42, 65536
            s_lshl_b32 s44, s{sCB}, 10
            s_lshl_b32 s45, s{sRG}, 3
            s_add_u32 s44, s44, s45
            s_add_u32 s44, s44, {WS_KMAX}""")
    X = os.environ.get("QX", "")
    if X:
        i0 = max(i for i, l in enumerate(a.lines) if "s_sub_u32 s98" in l) + 1
        body = a.lines[i0:]
        if "b" in X: body = [l for l in body if "s_barrier" not in l]
        if "l" in X: body = [l for l in body if "buffer_load" not in l]
        if "d" in X: body = [l for l in body if "ds_read" not in l]
        if "w" in X: body = [l for l in body if "s_waitcnt" not in l]
        if "m" in X: body = [l for l in body if "mfma" not in l]
        if "f" in X: body = [l for l in body if "f64" not in l]
        if "A" in X: body = [l for l in body if not ("buffer_load" in l and " lds" not in l)]
        if "B" in X: body = [l for l in body if not ("buffer_load" in l and " lds" in l)]
        if "v" in X: body = [l for l in body if not (l.strip().startswith("v_") and "mfma" not in l)]
        a.lines = a.lines[:i0] + body
    stamp_mid(a, 3)
    P = AR
    a("s_nop 7\ns_nop 2")
    for i in range(16):
        a(f"v_fma_f32 v{ACC+16+i}, v{ACC+16+i}, v{vRSTD}, v{BK+i}")
    NA, NB = T + 12, T + 13
    a(f"v_mul_f32 v{NA}, v{ACC+16}, v{ACC+16}\nv_mul_f32 v{NB}, v{ACC+24}, v{ACC+24}")
    for i in range(1, 8):
        a(f"v_fmac_f32 v{NA}, v{ACC+16+i}, v{ACC+16+i}\nv_fmac_f32 v{NB}, v{ACC+24+i}, v{ACC+24+i}")
    a(f"v_mov_b32 v{T+14}, v{NA}\nv_mov_b32 v{T+15}, v{NB}")
    for i in range(8):
        a(f"v_cvt_pk_bf16_f32 v{P+i}, v{ACC+16+2*i}, v{ACC+16+2*i+1}")
    a(f"""v_permlane32_swap_b32 v{NA}, v{T+14}
    v_permlane32_swap_b32 v{NB}, v{T+15}
    buffer_store_dwordx4 v[{P}:{P+3}], v{VA}, s[{sWS}:{sWS+3}], s42 offen
    buffer_store_dwordx4 v[{P+4}:{P+7}], v{VA}, s[{sWS}:{sWS+3}], s43 offen
    v_add_f32 v{NA}, v{NA}, v{T+14}
    v_add_f32 v{NB}, v{NB}, v{T+15}""")
    dpps = ["quad_perm:[1,0,3,2]", "quad_perm:[2,3,0,1]", "row_half_mirror", "row_mirror"]
    for i in range(16):
        a(f"v_fma_f32 v{ACC+i}, v{ACC+i}, v{vRQ}, v{BQ+i}")
        if i % 4 == 3:
            d = dpps[i // 4]
            a(f"v_max_f32_dpp v{NA}, v{NA}, v{NA} {d} row_mask:0xf bank_mask:0xf\nv_max_f32_dpp v{NB}, v{NB}, v{NB} {d} row_mask:0xf bank_mask:0xf")
    for i in range(8):
        a(f"v_cvt_pk_bf16_f32 v{P+8+i}, v{ACC+2*i}, v{ACC+2*i+1}")
    a(f"""buffer_store_dwordx4 v[{P+8}:{P+11}], v{VA}, s[{sWS}:{sWS+3}], s40 offen
    buffer_store_dwordx4 v[{P+12}:{P+15}], v{VA}, s[{sWS}:{sWS+3}], s41 offen""")
    for i in range(16):
        a(f"v_fma_f32 v{ACC+32+i}, v{ACC+32+i}, v{AVv+i}, v{BV+i}")
    for i in range(8):
        a(f"v_cvt_pk_bf16_f32 v{P+16+i}, v{ACC+32+2*i}, v{ACC+32+2*i+1}")
    a(f"""buffer_store_dwordx4 v[{P+16}:{P+19}], v{T+10}, s[{sWS}:{sWS+3}], s39 offen
    buffer_store_dwordx4 v[{P+20}:{P+23}], v{T+10}, s[{sWS}:{sWS+3}], s39 offen offset:512
    s_mov_b64 exec, 0x10001
    buffer_store_dword v{NA}, v{T+11}, s[{sWS}:{sWS+3}], s44 offen
    buffer_store_dword v{NB}, v{T+11}, s[{sWS}:{sWS+3}], s44 offen offset:512""")
    a.label(end)
    stamp_end(a)
    a.label(end + "_real")
    a("s_endpgm")
    desc = "".join(kernel_desc(nm, 256) for nm, _ in names_xoffs)
    return code + a.text(), desc, LDS
```

```python
from common import *
from k_qkv import QSCALE, VmTracker

def stats4_final(a, ST1, ST2, T, vMEAN, vRSTD):
    for i in range(4):
        a(f"v_cvt_f64_f32 v[{T+2*i}:{T+2*i+1}], v{ST1+i}")
    for i in range(4):
        a(f"v_cvt_f64_f32 v[{T+8+2*i}:{T+8+2*i+1}], v{ST2+i}")
    a(f"""v_add_f64 v[{T}:{T+1}], v[{T}:{T+1}], v[{T+2}:{T+3}]
    v_add_f64 v[{T+4}:{T+5}], v[{T+4}:{T+5}], v[{T+6}:{T+7}]
    v_add_f64 v[{T+8}:{T+9}], v[{T+8}:{T+9}], v[{T+10}:{T+11}]
    v_add_f64 v[{T+12}:{T+13}], v[{T+12}:{T+13}], v[{T+14}:{T+15}]
    v_add_f64 v[{T}:{T+1}], v[{T}:{T+1}], v[{T+4}:{T+5}]
    v_add_f64 v[{T+8}:{T+9}], v[{T+8}:{T+9}], v[{T+12}:{T+13}]
    s_nop 1
    v_mov_b32 v{T+2}, v{T}
    v_mov_b32 v{T+3}, v{T+1}
    v_mov_b32 v{T+10}, v{T+8}
    v_mov_b32 v{T+11}, v{T+9}
    s_nop 1
    v_permlane32_swap_b32 v{T}, v{T+2}
    v_permlane32_swap_b32 v{T+1}, v{T+3}
    v_permlane32_swap_b32 v{T+8}, v{T+10}
    v_permlane32_swap_b32 v{T+9}, v{T+11}
    s_nop 1
    v_add_f64 v[{T}:{T+1}], v[{T}:{T+1}], v[{T+2}:{T+3}]
    v_add_f64 v[{T+8}:{T+9}], v[{T+8}:{T+9}], v[{T+10}:{T+11}]
    v_ldexp_f64 v[{T}:{T+1}], v[{T}:{T+1}], -9
    v_ldexp_f64 v[{T+8}:{T+9}], v[{T+8}:{T+9}], -9
    v_fma_f64 v[{T+8}:{T+9}], -v[{T}:{T+1}], v[{T}:{T+1}], v[{T+8}:{T+9}]
    v_cvt_f32_f64 v{vMEAN}, v[{T}:{T+1}]
    v_cvt_f32_f64 v{vRSTD}, v[{T+8}:{T+9}]
    v_max_f32 v{vRSTD}, 0, v{vRSTD}
    v_add_f32 v{vRSTD}, {hex(f32bits(1e-5))}, v{vRSTD}
    v_rsq_f32 v{vRSTD}, v{vRSTD}
    s_nop 0""")

def gen_qkvn(name):
    a = Asm()
    ACC = 0; BF = 48; AF = 84; ST1 = 96; ST2 = 100; CS = 104
    VLANE = 108; VA = 109; VDA = [110, 111]; VDB = 112; VRA = [113, 114, 115, 116, 117, 118, 119, 120]; VRB = [121, 122]
    T = 124; E = 144
    vMEAN, vRSTD = 140, 141
    R = 4; SLOT = 32768
    XC_OFF = R * SLOT
    PV_OFF = XC_OFF + 8192
    LDS = PV_OFF + 2048
    sX, sW, sWS = 12, 16, 20
    sRB, sCB, sWAVE, sRG, sCBT = 24, 25, 26, 27, 28
    sA0, sA1, sB0, sB1, sLA, sONES = 29, 30, 31, 32, 33, 46
    end = f"{name}_end"
    a(f"""s_cmp_ge_u32 s2, 256
    s_cbranch_scc1 {end}_real""")
    stamp_begin(a)
    a(f"""s_load_dwordx4 s[4:7], s[0:1], {KA_X}
    s_load_dwordx2 s[8:9], s[0:1], {KA_WS}
    v_and_b32 v{VLANE}, 63, v0
    v_lshrrev_b32 v{T}, 6, v0
    s_and_b32 s34, s2, 7
    s_lshr_b32 s35, s2, 3
    v_readfirstlane_b32 s{sWAVE}, v{T}
    v_lshlrev_b32 v{VA}, 4, v{VLANE}
    s_and_b32 s{sRB}, s34, 3
    s_lshl_b32 s{sRB}, s{sRB}, 3
    s_and_b32 s36, s35, 7
    s_add_u32 s{sRB}, s{sRB}, s36
    s_lshr_b32 s{sCB}, s34, 2
    s_lshl_b32 s{sCB}, s{sCB}, 2
    s_lshr_b32 s36, s35, 3
    s_add_u32 s{sCB}, s{sCB}, s36
    v_lshrrev_b32 v{T}, 3, v{VLANE}
    v_and_b32 v{T+1}, 7, v{VLANE}
    v_lshrrev_b32 v{T+2}, 4, v{VLANE}
    v_xor_b32 v{T+3}, v{T+1}, v{T+2}
    v_lshlrev_b32 v{T+4}, 10, v{T}
    v_lshl_add_u32 v{VDA[0]}, v{T+3}, 4, v{T+4}
    v_xor_b32 v{T+3}, 4, v{T+3}
    v_lshl_add_u32 v{VDA[1]}, v{T+3}, 4, v{T+4}
    v_and_b32 v{T+2}, 1, v{T+2}
    v_lshlrev_b32 v{T+2}, 2, v{T+2}
    v_xor_b32 v{T+3}, v{T+1}, v{T+2}
    v_mul_u32_u24 v{T+4}, 3072, v{T}
    v_lshl_add_u32 v{VDB}, v{T+3}, 4, v{T+4}
    s_lshl_b32 s{sA0}, s{sRB}, 16
    s_lshl_b32 s36, s{sWAVE}, 14
    s_add_u32 s{sA0}, s{sA0}, s36
    s_add_u32 s{sA1}, s{sA0}, 7168
    s_mul_i32 s{sB0}, s{sWAVE}, {16*3072}
    s_lshl_b32 s36, s{sCB}, 7
    s_add_u32 s{sB0}, s{sB0}, s36
    s_add_u32 s{sB1}, s{sB0}, {8*3072-1024}
    s_lshl_b32 s{sLA}, s{sWAVE}, 11
    s_mov_b32 s14, {2048*1024}
    s_mov_b32 s15, 0x00020000
    s_mov_b32 s18, {512*3072}
    s_mov_b32 s19, 0x00020000
    s_waitcnt lgkmcnt(0)
    s_mov_b32 s12, s4
    s_and_b32 s13, s5, 0xffff
    s_mov_b32 s16, s6
    s_and_b32 s17, s7, 0xffff""")
    vm = VmTracker()
    def ld(c, j):
        base = (c % R) * SLOT
        if j == 0:
            a(f"s_add_u32 m0, s{sLA}, {base}\ns_nop 0")
            a(f"buffer_load_dwordx4 v{VDA[0]}, s[{sX}:{sX+3}], s{sA0} offen lds")
        elif j == 1:
            a(f"buffer_load_dwordx4 v{VDA[1]}, s[{sX}:{sX+3}], s{sA1} offen offset:1024 lds")
            a(f"s_add_u32 s{sA0}, s{sA0}, 128\ns_add_u32 s{sA1}, s{sA1}, 128")
        else:
            blk = (j - 2) // 2
            if j % 2 == 0:
                a(f"s_add_u32 m0, s{sLA}, {base+8192+blk*8192}\ns_add_u32 s47, s{sB0}, {blk*1024}")
                a(f"buffer_load_dwordx4 v{VDB}, s[{sW}:{sW+3}], s47 offen lds")
            else:
                a(f"s_add_u32 s47, s{sB1}, {blk*1024}")
                a(f"buffer_load_dwordx4 v{VDB}, s[{sW}:{sW+3}], s47 offen offset:1024 lds")
                if j == 7:
                    a(f"s_add_u32 s{sB0}, s{sB0}, {64*3072}\ns_add_u32 s{sB1}, s{sB1}, {64*3072}")
        vm.issue(("C", c))
    for j in range(8): ld(0, j)
    for j in range(6): ld(1, j)
    a(f"""s_and_b32 s36, s{sWAVE}, 1
    s_lshr_b32 s37, s{sWAVE}, 1
    s_lshl_b32 s{sRG}, s{sRB}, 1
    s_add_u32 s{sRG}, s{sRG}, s36
    s_lshl_b32 s{sCBT}, s{sCB}, 1
    s_add_u32 s{sCBT}, s{sCBT}, s37
    s_mov_b32 s{sONES}, 0x3f803f80
    s_mov_b32 s48, s36
    s_mov_b32 s49, s37
    s_mov_b32 s20, s8
    s_and_b32 s21, s9, 0xffff
    s_mov_b32 s22, {WS_SIZE}
    s_mov_b32 s23, 0x00020000
    v_and_b32 v{T}, 31, v{VLANE}
    v_lshrrev_b32 v{T+1}, 5, v{VLANE}
    v_bfe_u32 v{T+2}, v{VLANE}, 1, 3
    v_xor_b32 v{T+2}, v{T+2}, v{T+1}
    v_lshlrev_b32 v{T+3}, 7, v{T}
    s_lshl_b32 s38, s36, 12
    v_add_u32 v{T+3}, s38, v{T+3}""")
    for q in range(4):
        a(f"""v_xor_b32 v{T+4}, {2*q}, v{T+2}
        v_lshl_add_u32 v{VRA[q]}, v{T+4}, 4, v{T+3}
        v_add_u32 v{VRA[4+q]}, {2*SLOT}, v{VRA[q]}""")
    a(f"""v_lshlrev_b32 v{T+4}, 3, v{T+1}
    v_bfe_u32 v{T+5}, v{VLANE}, 2, 2
    v_add_u32 v{T+4}, v{T+4}, v{T+5}
    v_lshlrev_b32 v{T+4}, 7, v{T+4}
    v_bfe_u32 v{T+5}, v{VLANE}, 4, 1
    v_lshlrev_b32 v{T+5}, 5, v{T+5}
    v_and_b32 v{T+6}, 3, v{VLANE}
    v_lshlrev_b32 v{T+6}, 3, v{T+6}
    v_bfe_u32 v{T+7}, v{VLANE}, 3, 1
    v_lshlrev_b32 v{T+7}, 6, v{T+7}
    s_lshl_b32 s38, s37, 6
    v_xor_b32 v{T+7}, s38, v{T+7}
    v_add3_u32 v{T+4}, v{T+4}, v{T+5}, v{T+6}
    v_add3_u32 v{VRB[0]}, v{T+4}, v{T+7}, 0
    v_add_u32 v{VRB[0]}, 8192, v{VRB[0]}
    v_add_u32 v{VRB[1]}, {2*SLOT}, v{VRB[0]}""")
    for i in range(4):
        a(f"v_mov_b32 v{ST1+i}, 0\nv_mov_b32 v{ST2+i}, 0")
    for i in range(4):
        a(f"v_mov_b32 v{CS+i}, 0")
    def reads(s):
        c, q = s // 4, s % 4
        sl = c % R
        hi = sl // 2; off = (sl % 2) * SLOT
        af = AF + 4 * (s % 3); bf = BF + 12 * (s % 3)
        a(f"ds_read_b128 v[{af}:{af+3}], v{VRA[4*hi+q]} offset:{off}")
        for t in range(3):
            o = off + t * 8192 + q * 2048
            a(f"ds_read_b64_tr_b16 v[{bf+4*t}:{bf+4*t+1}], v{VRB[hi]} offset:{o}")
            a(f"ds_read_b64_tr_b16 v[{bf+4*t+2}:{bf+4*t+3}], v{VRB[hi]} offset:{o+512}")
    pend = [(1, 6), (1, 7)] + [(c, j) for c in range(2, 8) for j in range(8)]
    allowed = 2
    def issue(n, maxc):
        k = 0
        while pend and k < n and pend[0][0] <= maxc:
            c, j = pend.pop(0); ld(c, j); k += 1
    stamp_mid(a, 1)
    a(f"s_waitcnt vmcnt({vm.wait_for({('C',0)})})\ns_barrier")
    stamp_mid(a, 2)
    reads(0)
    maxc = 2
    for s in range(32):
        if s + 1 < 32:
            if (s + 1) % 4 == 0:
                cn = (s + 1) // 4
                a(f"s_waitcnt vmcnt({vm.wait_for({('C', cn)})})\ns_barrier")
                maxc = cn + 2
            reads(s + 1)
            a("s_waitcnt lgkmcnt(7)")
        else:
            a("s_waitcnt lgkmcnt(0)")
        af = AF + 4 * (s % 3); bf = BF + 12 * (s % 3)
        def C(t): return "0" if s == 0 else vr(ACC + 16 * t, 16)
        a(f"v_mfma_f32_32x32x16_bf16 {vr(ACC,16)}, {vr(bf,4)}, {vr(af,4)}, {C(0)}")
        issue(1, maxc)
        a(f"v_mfma_f32_32x32x16_bf16 {vr(ACC+16,16)}, {vr(bf+4,4)}, {vr(af,4)}, {C(1)}")
        issue(1, maxc)
        a(f"v_mfma_f32_32x32x16_bf16 {vr(ACC+32,16)}, {vr(af,4)}, {vr(bf+8,4)}, {C(2)}")
        issue(1, maxc)
        l1 = a.newlabel(name + "_s"); l2 = a.newlabel(name + "_c")
        a(f"s_cmp_lg_u32 s49, {s & 1}\ns_cbranch_scc1 {l1}")
        for i in range(4):
            a(f"v_dot2c_f32_bf16 v{ST1+i}, s{sONES}, v{af+i}")
            a(f"v_dot2c_f32_bf16 v{ST2+i}, v{af+i}, v{af+i}")
        a.label(l1)
        a(f"s_cmp_lg_u32 s48, {s & 1}\ns_cbranch_scc1 {l2}")
        for i in range(4):
            for t in range(3):
                a(f"v_dot2c_f32_bf16 v{CS+t}, s{sONES}, v{bf+4*t+i}")
        a.label(l2)
    assert not pend
    stamp_mid(a, 3)
    a("s_nop 2")
    X0 = E + 96
    for i in range(4):
        a(f"v_cvt_f64_f32 v[{E+2*i}:{E+2*i+1}], v{ST1+i}")
    for i in range(4):
        a(f"v_cvt_f64_f32 v[{E+8+2*i}:{E+8+2*i+1}], v{ST2+i}")
    a(f"""s_lshl_b32 s34, s{sWAVE}, 11
    s_add_u32 s34, s34, {XC_OFF}
    v_add_u32 v{T+2}, s34, v{VA}
    ds_write_b128 v{T+2}, v[{CS}:{CS+3}] offset:1024
    v_add_f64 v[{E}:{E+1}], v[{E}:{E+1}], v[{E+2}:{E+3}]
    v_add_f64 v[{E+4}:{E+5}], v[{E+4}:{E+5}], v[{E+6}:{E+7}]
    v_add_f64 v[{E+8}:{E+9}], v[{E+8}:{E+9}], v[{E+10}:{E+11}]
    v_add_f64 v[{E+12}:{E+13}], v[{E+12}:{E+13}], v[{E+14}:{E+15}]
    v_add_f64 v[{E}:{E+1}], v[{E}:{E+1}], v[{E+4}:{E+5}]
    v_add_f64 v[{E+2}:{E+3}], v[{E+8}:{E+9}], v[{E+12}:{E+13}]
    v_xor_b32 v{T+3}, 4096, v{T+2}
    v_xor_b32 v{T+4}, 2048, v{T+2}
    ds_write_b128 v{T+2}, v[{E}:{E+3}]
    s_lshl_b32 s34, s{sWAVE}, 9
    s_add_u32 s35, s34, {PV_OFF}
    v_lshl_add_u32 v{T+5}, v{T}, 2, s35
    v_lshl_add_u32 v{T+6}, v{T+1}, 4, s35
    s_waitcnt lgkmcnt(0)
    s_barrier
    ds_read_b128 v[{X0}:{X0+3}], v{T+4} offset:1024
    ds_read_b128 v[{E+4}:{E+7}], v{T+3}
    s_waitcnt lgkmcnt(1)
    v_add_f32 v{CS}, v{CS}, v{X0}
    v_add_f32 v{CS+1}, v{CS+1}, v{X0+1}
    v_add_f32 v{CS+2}, v{CS+2}, v{X0+2}
    v_mov_b32 v{T+2}, v{CS}
    v_mov_b32 v{T+3}, v{CS+1}
    v_mov_b32 v{T+4}, v{CS+2}
    s_nop 1
    v_permlane32_swap_b32 v{CS}, v{T+2}
    v_permlane32_swap_b32 v{CS+1}, v{T+3}
    v_permlane32_swap_b32 v{CS+2}, v{T+4}
    s_nop 1
    v_add_f32 v{CS}, v{CS}, v{T+2}
    v_add_f32 v{CS+1}, v{CS+1}, v{T+3}
    v_add_f32 v{CS+2}, v{CS+2}, v{T+4}
    ds_write_b32 v{T+5}, v{CS} offset:256
    ds_write_b32 v{T+5}, v{CS+1} offset:384""")
    BQ = E + 16; BK = E + 32; AVv = E + 48; BV = E + 64; P = E + 80
    for g in range(4):
        a(f"ds_read_b128 v[{BQ+4*g}:{BQ+4*g+3}], v{T+6} offset:{256+32*g}")
        a(f"ds_read_b128 v[{BK+4*g}:{BK+4*g+3}], v{T+6} offset:{384+32*g}")
    a(f"""s_waitcnt lgkmcnt(10)
    v_add_f64 v[{E}:{E+1}], v[{E}:{E+1}], v[{E+4}:{E+5}]
    v_add_f64 v[{E+2}:{E+3}], v[{E+2}:{E+3}], v[{E+6}:{E+7}]
    s_nop 1
    v_mov_b32 v{E+4}, v{E}
    v_mov_b32 v{E+5}, v{E+1}
    v_mov_b32 v{E+6}, v{E+2}
    v_mov_b32 v{E+7}, v{E+3}
    s_nop 1
    v_permlane32_swap_b32 v{E}, v{E+4}
    v_permlane32_swap_b32 v{E+1}, v{E+5}
    v_permlane32_swap_b32 v{E+2}, v{E+6}
    v_permlane32_swap_b32 v{E+3}, v{E+7}
    s_nop 1
    v_add_f64 v[{E}:{E+1}], v[{E}:{E+1}], v[{E+4}:{E+5}]
    v_add_f64 v[{E+2}:{E+3}], v[{E+2}:{E+3}], v[{E+6}:{E+7}]
    v_ldexp_f64 v[{E}:{E+1}], v[{E}:{E+1}], -9
    v_ldexp_f64 v[{E+2}:{E+3}], v[{E+2}:{E+3}], -9
    v_fma_f64 v[{E+2}:{E+3}], -v[{E}:{E+1}], v[{E}:{E+1}], v[{E+2}:{E+3}]
    v_cvt_f32_f64 v{vMEAN}, v[{E}:{E+1}]
    v_cvt_f32_f64 v{vRSTD}, v[{E+2}:{E+3}]
    v_max_f32 v{vRSTD}, 0, v{vRSTD}
    v_add_f32 v{vRSTD}, {hex(f32bits(1e-5))}, v{vRSTD}
    v_rsq_f32 v{vRSTD}, v{vRSTD}
    s_nop 0""")
    vNB, vRQ, vNQ = T + 7, T + 8, T + 9
    a(f"""v_mul_f32 v{vNB}, v{vMEAN}, v{vRSTD}
    v_sub_f32 v{vNB}, 0, v{vNB}
    ds_write_b32 v{T+5}, v{vRSTD}
    ds_write_b32 v{T+5}, v{vNB} offset:128""")
    for g in range(4):
        a(f"ds_read_b128 v[{AVv+4*g}:{AVv+4*g+3}], v{T+6} offset:{32*g}")
        a(f"ds_read_b128 v[{BV+4*g}:{BV+4*g+3}], v{T+6} offset:{128+32*g}")
    a(f"""v_mul_f32 v{vRQ}, {hex(f32bits(QSCALE))}, v{vRSTD}
    v_mul_f32 v{vNQ}, {hex(f32bits(QSCALE))}, v{vNB}
    v_bfe_u32 v{T+10}, v{VLANE}, 4, 1
    v_lshlrev_b32 v{T+10}, 16, v{T+10}
    v_and_b32 v{T+11}, 15, v{VLANE}
    v_lshlrev_b32 v{T+11}, 4, v{T+11}
    v_lshlrev_b32 v{T+12}, 8, v{T+1}
    v_add3_u32 v{T+10}, v{T+10}, v{T+11}, v{T+12}
    v_lshrrev_b32 v{T+11}, 2, v{VLANE}
    s_lshl_b32 s37, s{sCBT}, 17
    s_lshl_b32 s38, s{sRG}, 10
    s_add_u32 s37, s37, s38
    s_add_u32 s39, s37, {WS_V}
    s_add_u32 s40, s37, {WS_Q}
    s_add_u32 s41, s40, 65536
    s_add_u32 s42, s37, {WS_K}
    s_add_u32 s43, s42, 65536
    s_lshl_b32 s44, s{sCBT}, 10
    s_lshl_b32 s45, s{sRG}, 3
    s_add_u32 s44, s44, s45
    s_add_u32 s44, s44, {WS_KMAX}
    s_waitcnt lgkmcnt(10)""")
    for i in range(16):
        a(f"v_mul_f32 v{BK+i}, v{BK+i}, v{vNB}")
    for i in range(16):
        a(f"v_fma_f32 v{ACC+16+i}, v{ACC+16+i}, v{vRSTD}, v{BK+i}")
    NA, NB = T + 12, T + 13
    a(f"v_mul_f32 v{NA}, v{ACC+16}, v{ACC+16}\nv_mul_f32 v{NB}, v{ACC+24}, v{ACC+24}")
    for i in range(1, 8):
        a(f"v_fmac_f32 v{NA}, v{ACC+16+i}, v{ACC+16+i}\nv_fmac_f32 v{NB}, v{ACC+24+i}, v{ACC+24+i}")
    a(f"v_mov_b32 v{T+14}, v{NA}\nv_mov_b32 v{T+15}, v{NB}")
    for i in range(8):
        a(f"v_cvt_pk_bf16_f32 v{P+i}, v{ACC+16+2*i}, v{ACC+16+2*i+1}")
    a(f"""v_permlane32_swap_b32 v{NA}, v{T+14}
    v_permlane32_swap_b32 v{NB}, v{T+15}
    buffer_store_dwordx4 v[{P}:{P+3}], v{VA}, s[{sWS}:{sWS+3}], s42 offen sc1
    buffer_store_dwordx4 v[{P+4}:{P+7}], v{VA}, s[{sWS}:{sWS+3}], s43 offen sc1
    v_add_f32 v{NA}, v{NA}, v{T+14}
    v_add_f32 v{NB}, v{NB}, v{T+15}""")
    dpps = ["quad_perm:[1,0,3,2]", "quad_perm:[2,3,0,1]", "row_half_mirror", "row_mirror"]
    for i in range(16):
        a(f"v_mul_f32 v{BQ+i}, v{BQ+i}, v{vNQ}")
        if i % 4 == 3:
            d = dpps[i // 4]
            a(f"v_max_f32_dpp v{NA}, v{NA}, v{NA} {d} row_mask:0xf bank_mask:0xf\nv_max_f32_dpp v{NB}, v{NB}, v{NB} {d} row_mask:0xf bank_mask:0xf")
    for i in range(16):
        a(f"v_fma_f32 v{ACC+i}, v{ACC+i}, v{vRQ}, v{BQ+i}")
    for i in range(8):
        a(f"v_cvt_pk_bf16_f32 v{P+8+i}, v{ACC+2*i}, v{ACC+2*i+1}")
    a(f"""buffer_store_dwordx4 v[{P+8}:{P+11}], v{VA}, s[{sWS}:{sWS+3}], s40 offen sc1
    buffer_store_dwordx4 v[{P+12}:{P+15}], v{VA}, s[{sWS}:{sWS+3}], s41 offen sc1
    s_waitcnt lgkmcnt(0)""")
    for i in range(16):
        a(f"v_mul_f32 v{BV+i}, v{BV+i}, v{CS+2}")
    for i in range(16):
        a(f"v_fma_f32 v{ACC+32+i}, v{ACC+32+i}, v{AVv+i}, v{BV+i}")
    for i in range(8):
        a(f"v_cvt_pk_bf16_f32 v{P+16+i}, v{ACC+32+2*i}, v{ACC+32+2*i+1}")
    a(f"""buffer_store_dwordx4 v[{P+16}:{P+19}], v{T+10}, s[{sWS}:{sWS+3}], s39 offen sc1
    buffer_store_dwordx4 v[{P+20}:{P+23}], v{T+10}, s[{sWS}:{sWS+3}], s39 offen offset:512 sc1
    s_mov_b64 exec, 0x10001
    buffer_store_dword v{NA}, v{T+11}, s[{sWS}:{sWS+3}], s44 offen
    buffer_store_dword v{NB}, v{T+11}, s[{sWS}:{sWS+3}], s44 offen offset:512""")
    a.label(end)
    stamp_end(a)
    a.label(end + "_real")
    a("s_endpgm")
    return kernel_header(name) + a.text(), kernel_desc(name, 256), LDS
```

```python
import sys
from common import *
from k_prep import gen_prep
from k_qkv import gen_qkv
from k_qkvn import gen_qkvn
from k_attn import gen_attn
from k_proj import gen_proj
from k_ffn1 import gen_ffn1

HEADER = open("interleave_layers__softmax_full_mha__glu_gated_reglu__prompt.s.ref").read().split("; Override launch")[0]

def build(launches, groups):
    lds = {}
    for code, desc, l, names in groups:
        for n in names: lds[n] = l
    out = HEADER
    for (name, grid, block) in launches:
        out += f"; @launch kernel={name} grid=({grid},1,1) block=({block},1,1) lds={lds[name]}\n"
    out += '.amdgcn_target "amdgcn-amd-amdhsa--gfx950"\n.text\n'
    for code, desc, l, names in groups:
        out += code
    out += '.section .rodata,"a"\n'
    for code, desc, l, names in groups:
        out += desc
    return out

def full():
    groups = []
    groups.append(gen_qkvn("qkv1_kernel") + (["qkv1_kernel"],))
    groups.append(gen_qkv([("qkv2_kernel", WS_X2)]) + (["qkv2_kernel"],))
    groups.append(gen_attn([("attn1_kernel", True), ("attn2_kernel", False)]) + (["attn1_kernel", "attn2_kernel"],))
    pv = [dict(name="wo1_kernel", KS=32, a_off=WS_O, w_off=WS_WO, res='nat', out=WS_X1),
          dict(name="wo2_kernel", KS=32, a_off=WS_O, w_off=WS_WO, res=WS_X2, out=WS_X1),
          dict(name="down1_kernel", KS=112, a_off=WS_H, w_off=WS_WD, res=WS_X1, out=WS_X2),
          dict(name="down2_kernel", KS=112, a_off=WS_H, w_off=WS_WD, res=WS_X1, out='nat')]
    groups.append(gen_proj(pv) + ([v["name"] for v in pv],))
    groups.append(gen_ffn1("ffn1_kernel", WS_X1) + (["ffn1_kernel"],))
    launches = [
                ("qkv1_kernel", 256, 256), ("attn1_kernel", 256, 1024), ("wo1_kernel", 256, 256), ("ffn1_kernel", 256, 256), ("down1_kernel", 256, 256),
                ("qkv2_kernel", 256, 256), ("attn2_kernel", 256, 1024), ("wo2_kernel", 256, 256), ("ffn1_kernel", 256, 256), ("down2_kernel", 256, 256)]
    return launches, groups

if __name__ == "__main__":
    launches, groups = full()
    txt = build(launches, groups)
    import os
    txt = "\n".join((l + " sc1") if ("buffer_store_dwordx4" in l and "s[76:79]" not in l and "s[20:23]" not in l and "sc1" not in l) else l for l in txt.split("\n"))
    open(sys.argv[1], "w").write(txt)
```

```python
from common import *
from k_prep import emit_wunits

def gen_attn(entries):
    a = Asm()
    name = entries[0][0]
    O = 0; CM = 16; S = [32, 48]; P = 64; KF = [72, 76]; VF = [80, 88]; QF = 96
    VKA = 100; VVA = 101; VLANE = 102; VA = 103; T = 104
    STG = 131072
    CNT_OFF = STG + 24576
    LDS = STG + 32768
    sWS = 12
    sHEAD, sQB, sWAVE, sRG, sNOBAR, sIT, sSIDE, sQT, sKH, sNIT, sSECOND = 24, 25, 26, 27, 64, 65, 66, 70, 71, 72, 73
    sVM = 68
    UN = 8
    def emit_vf_init():
        if os.environ.get("ALLONES"):
            for i in range(16): a(f"v_mov_b32 v{VF[0]+i}, 0x3f803f80")
            return
        for i in range(16): a(f"v_mov_b32 v{VF[0]+i}, 0")
        a("s_mov_b32 exec_lo, 0x110000\ns_mov_b32 exec_hi, 0x110000")
        for i in range(16): a(f"v_mov_b32 v{VF[0]+i}, 0x3f803f80")
        a("s_mov_b64 exec, -1")
    body = f"{name}_body"; end = f"{name}_end"; helper = f"{name}_helper"; pro = f"{name}_pro"
    code = ""
    for i, (nm, side) in enumerate(entries):
        code += kernel_header(nm) + f"    s_mov_b32 s{sSIDE}, {int(side)}\n"
        if i + 1 < len(entries):
            code += f"    s_branch {body}\n"
    a.label(body)
    a(f"""s_cmp_ge_u32 s2, 256
    s_cbranch_scc1 {end}_real""")
    stamp_begin(a)
    a(f"""s_load_dwordx2 s[8:9], s[0:1], {KA_WS}
    v_and_b32 v{VLANE}, 63, v0
    v_lshrrev_b32 v{T}, 6, v0
    s_and_b32 s34, s2, 7
    s_lshr_b32 s35, s2, 3
    v_readfirstlane_b32 s{sWAVE}, v{T}
    v_lshlrev_b32 v{VA}, 4, v{VLANE}
    s_lshl_b32 s{sHEAD}, s34, 2
    s_and_b32 s36, s35, 3
    s_add_u32 s{sHEAD}, s{sHEAD}, s36
    s_lshr_b32 s{sQB}, s35, 2
    s_lshl_b32 s36, s{sHEAD}, 16
    s_mov_b32 s14, {WS_SIZE}
    s_mov_b32 s15, 0x00020000
    s_and_b32 s{sQT}, s{sWAVE}, 7
    s_lshr_b32 s{sKH}, s{sWAVE}, 3
    s_lshl_b32 s{sRG}, s{sQB}, 3
    s_add_u32 s{sRG}, s{sRG}, s{sQT}
    s_and_b32 s39, s{sWAVE}, 1
    s_bfe_u32 s40, s{sWAVE}, 0x10001
    s_lshl_b32 s42, s40, 15
    s_lshl_b32 s43, s39, 16
    s_add_u32 s43, s43, s42
    s_lshl_b32 s44, s39, 21
    s_add_u32 s44, s44, s42
    s_add_u32 s44, s44, s36
    s_add_u32 s44, s44, {WS_K}
    s_mov_b32 s{sNOBAR}, 0
    s_cmp_ge_u32 s{sWAVE}, 12
    s_cbranch_scc1 {helper}
    s_bfe_u32 s41, s{sWAVE}, 0x10002
    s_lshl_b32 s41, s41, 11
    s_add_u32 m0, s43, s41
    s_add_u32 s44, s44, s41
    s_waitcnt lgkmcnt(0)
    s_mov_b32 s12, s8
    s_and_b32 s13, s9, 0xffff
    s_cmp_ge_u32 s{sWAVE}, 8
    s_cbranch_scc1 {pro}""")
    for j in range(2):
        a(f"buffer_load_dwordx4 v{VA}, s[{sWS}:{sWS+3}], s44 offen offset:{1024*j} lds")
    a(f"""v_lshlrev_b32 v{T}, 2, v{VLANE}
    v_add_u32 v{T}, {CNT_OFF}, v{T}
    v_mov_b32 v{T+1}, 0
    ds_write_b32 v{T}, v{T+1}""")
    a.label(pro)
    a("s_setprio 3")
    a(f"""s_lshl_b32 s36, s{sHEAD}, 16
    s_lshl_b32 s37, s{sRG}, 10
    s_add_u32 s37, s37, s36
    s_lshl_b32 s38, s{sHEAD}, 9
    s_add_u32 s38, s38, {WS_KMAX}
    v_lshlrev_b32 v{T+1}, 3, v{VLANE}
    buffer_load_dwordx4 v[{QF}:{QF+3}], v{VA}, s[{sWS}:{sWS+3}], s37 offen
    buffer_load_dwordx2 v[{T+2}:{T+3}], v{T+1}, s[{sWS}:{sWS+3}], s38 offen
    s_mov_b32 s{sSECOND}, 0
    s_mov_b32 s{sNIT}, 4
    s_mov_b32 s{sVM}, 0xffff
    s_mov_b32 s{sVM+1}, 0xffff
    v_lshrrev_b32 v{T+4}, 5, v{VLANE}
    v_lshlrev_b32 v{T+4}, 8, v{T+4}
    v_and_b32 v{T+5}, 15, v{VLANE}
    v_lshlrev_b32 v{T+5}, 4, v{T+5}
    v_add_u32 v{T+4}, v{T+4}, v{T+5}
    v_add_u32 v{T+8}, 65536, v{T+4}
    s_lshl_b32 s45, s{sKH}, 15
    v_add_u32 v{VKA}, s45, v{VA}
    v_add_u32 v{VVA}, s45, v{T+8}""")
    emit_vf_init()
    a(f"""v_mov_b32 v{T+6}, 0
    v_mov_b32 v{T+14}, {CNT_OFF}
    s_waitcnt vmcnt(0) lgkmcnt(0)
    v_max_f32 v{T+2}, v{T+2}, v{T+3}""")
    for i in range(4):
        a(f"v_dot2c_f32_bf16 v{T+6}, v{QF+i}, v{QF+i}")
    for dpp in ("quad_perm:[1,0,3,2]", "quad_perm:[2,3,0,1]", "row_half_mirror", "row_mirror"):
        a(f"""s_nop 1
        v_max_f32_dpp v{T+2}, v{T+2}, v{T+2} {dpp} row_mask:0xf bank_mask:0xf""")
    a(f"""v_mov_b32 v{T+7}, v{T+6}
    s_nop 1
    v_permlane32_swap_b32 v{T+6}, v{T+7}
    v_readlane_b32 s46, v{T+2}, 0
    v_readlane_b32 s47, v{T+2}, 16
    v_readlane_b32 s48, v{T+2}, 32
    v_readlane_b32 s49, v{T+2}, 48
    v_add_f32 v{T+6}, v{T+6}, v{T+7}
    s_max_u32 s46, s46, s47
    s_max_u32 s48, s48, s49
    s_max_u32 s46, s46, s48
    s_nop 1
    v_mul_f32 v{T+6}, s46, v{T+6}
    v_sqrt_f32 v{T+6}, v{T+6}
    s_nop 0
    v_mul_f32 v{T+6}, {hex(f32bits(-(1.0 + 2.0**-7)))}, v{T+6}""")
    main = f"{name}_main"
    stamp_mid(a, 1)
    a(f"""s_cmp_lg_u32 s{sNOBAR}, 0
    s_cbranch_scc1 {main}
    s_barrier""")
    a.label(main)
    stamp_mid(a, 2)
    a(f"""ds_read_b128 {vr(KF[0],4)}, v{VKA}
    ds_read_b128 {vr(KF[1],4)}, v{VKA} offset:1024
    s_mov_b64 exec, s[{sVM}:{sVM+1}]
    ds_read_b128 {vr(VF[0],4)}, v{VVA}
    ds_read_b128 {vr(VF[0]+4,4)}, v{VVA} offset:512
    s_mov_b64 exec, -1
    s_mov_b32 s{sIT}, 0""")
    for i in range(16):
        a(f"v_mov_b32 v{CM+i}, v{T+6}")
    for i in range(16):
        a(f"v_mov_b32 v{O+i}, 0")
    for i in range(4):
        a(f"v_mov_b32 v{P+4+i}, 0")
    a(f"""s_waitcnt lgkmcnt(3)
    v_mfma_f32_32x32x16_bf16 {vr(S[0],16)}, {vr(KF[0],4)}, {vr(QF,4)}, {vr(CM,16)}
    s_nop 9""")
    loop = f"{name}_loop"
    a.label(loop)
    for t in range(UN):
        s = S[t % 2]; sn = S[(t + 1) % 2]
        E = [f"v_exp_f32 v{s+i}, v{s+i}" for i in range(16)]
        C = [f"v_cvt_pk_bf16_f32 v{P+i}, v{s+2*i}, v{s+2*i+1}" for i in range(8)]
        if t == 2:
            skip = f"{name}_nopoll"; pl = f"{name}_spoll"
            a(f"""s_cmp_ge_u32 s{sIT}, 2
            s_cbranch_scc1 {skip}
            s_lshl_b32 s50, s{sIT}, 2
            s_add_u32 s50, s50, 4""")
            a.label(pl)
            a(f"""ds_read_b32 v{T+15}, v{T+14} offset:64
            s_waitcnt lgkmcnt(0)
            v_readfirstlane_b32 s51, v{T+15}
            s_nop 3
            s_cmp_lt_u32 s51, s50
            s_cbranch_scc1 {pl}""")
            a.label(skip)
        PR = eval(os.environ.get("PR", "{(1, 4): 2, (3, 0): 1, (3, 6): 0}"))
        for (it_, t_), pr_ in PR.items():
            if t_ == t:
                a(f"""s_cmp_lg_u32 s{sIT}, {it_}
                s_cbranch_scc1 {name}_pr{it_}_{t}
                s_setprio {pr_}""")
                a.label(f"{name}_pr{it_}_{t}")
        a("s_waitcnt lgkmcnt(2)")
        a(f"v_mfma_f32_32x32x16_bf16 {vr(sn,16)}, {vr(KF[(t+1)%2],4)}, {vr(QF,4)}, {vr(CM,16)}")
        a(f"ds_read_b128 {vr(KF[t%2],4)}, v{VKA} offset:{(t+2)*1024}")
        for x in E[:8]: a(x)
        a(f"v_mfma_f32_32x32x16_bf16 {vr(O,16)}, {vr(VF[(t+1)%2]+4,4)}, {vr(P+4,4)}, {vr(O,16)}")
        a(f"""s_mov_b64 exec, s[{sVM}:{sVM+1}]
        ds_read_b128 {vr(VF[(t+1)%2],4)}, v{VVA} offset:{(t+1)*1024}
        ds_read_b128 {vr(VF[(t+1)%2]+4,4)}, v{VVA} offset:{(t+1)*1024+512}
        s_mov_b64 exec, -1""")
        for x in C[:4] + E[8:12]: a(x)
        a("s_waitcnt lgkmcnt(4)")
        a(f"v_mfma_f32_32x32x16_bf16 {vr(O,16)}, {vr(VF[t%2],4)}, {vr(P,4)}, {vr(O,16)}")
        for x in E[12:]: a(x)
        if t == UN - 1:
            a(f"""v_add_u32 v{VKA}, {UN*1024}, v{VKA}
            v_add_u32 v{VVA}, {UN*1024}, v{VVA}
            s_add_u32 s{sIT}, s{sIT}, 1""")
            a(f"s_cmp_lt_u32 s{sIT}, s{sNIT}")
        for x in C[4:]: a(x)
    a(f"s_cbranch_scc1 {loop}")
    a(f"""s_waitcnt lgkmcnt(0)
    v_mfma_f32_32x32x16_bf16 {vr(O,16)}, {vr(VF[1]+4,4)}, {vr(P+4,4)}, {vr(O,16)}""")
    stamp_mid(a, 3)
    fb = f"{name}_fallback"; fin = f"{name}_fin"; second = f"{name}_second"; poll = f"{name}_poll"
    a(f"""s_lshl_b32 s36, s{sRG}, 15
    s_lshl_b32 s37, s{sHEAD}, 10
    s_add_u32 s36, s36, s37
    s_add_u32 s36, s36, {WS_O}
    s_mov_b32 s37, {hex(f32bits(2.0**-40))}
    s_cmp_lg_u32 s{sSECOND}, 0
    s_cbranch_scc1 {name}_fin0
    s_lshl_b32 s38, s{sQT}, 3
    s_add_u32 s38, s38, {CNT_OFF}
    v_mov_b32 v{T+9}, s38
    v_mov_b32 v{T+10}, 1
    s_mul_i32 s39, s{sQT}, 2304
    s_add_u32 s39, s39, {STG}
    s_mov_b64 exec, 1
    ds_add_rtn_u32 v{T+11}, v{T+9}, v{T+10}
    s_mov_b64 exec, -1
    v_add_u32 v{T+12}, s39, v{VA}
    v_lshlrev_b32 v{T+13}, 2, v{VLANE}
    v_add_u32 v{T+13}, s39, v{T+13}
    s_waitcnt lgkmcnt(0)
    v_readfirstlane_b32 s40, v{T+11}
    s_nop 3
    s_cmp_lg_u32 s40, 0
    s_cbranch_scc1 {second}""")
    a.label(f"{name}_sdpoll")
    a(f"""ds_read_b32 v{T+15}, v{T+14} offset:68
    s_waitcnt lgkmcnt(0)
    v_readfirstlane_b32 s51, v{T+15}
    s_nop 3
    s_cmp_lt_u32 s51, 4
    s_cbranch_scc1 {name}_sdpoll
    ds_write_b128 v{T+12}, v[{O}:{O+3}]
    ds_write_b128 v{T+12}, v[{O+4}:{O+7}] offset:1024
    ds_write_b32 v{T+13}, v{O+8} offset:2048
    s_waitcnt lgkmcnt(0)
    ds_write_b32 v{T+9}, v{T+10} offset:4
    s_branch {end}""")
    a.label(second)
    a.label(poll)
    a(f"""ds_read_b32 v{T+11}, v{T+9} offset:4
    s_waitcnt lgkmcnt(0)
    v_readfirstlane_b32 s40, v{T+11}
    s_nop 3
    s_cmp_eq_u32 s40, 0
    s_cbranch_scc1 {poll}
    ds_read_b128 v[{S[0]}:{S[0]+3}], v{T+12}
    ds_read_b128 v[{S[0]+4}:{S[0]+7}], v{T+12} offset:1024
    ds_read_b32 v{S[0]+8}, v{T+13} offset:2048
    s_waitcnt lgkmcnt(0)""")
    for i in range(9):
        a(f"v_add_f32 v{O+i}, v{O+i}, v{S[0]+i}")
    a(f"""v_cmp_nge_f32 vcc, v{O+8}, s37
    s_nop 4
    s_cbranch_vccnz {fb}""")
    a.label(f"{name}_fin0")
    a(f"s_nop 6\nv_rcp_f32 v{O+9}, v{O+8}\ns_nop 0")
    for i in range(8):
        a(f"v_mul_f32 v{O+i}, v{O+i}, v{O+9}")
    for i in range(4):
        a(f"v_cvt_pk_bf16_f32 v{P+i}, v{O+2*i}, v{O+2*i+1}")
    a(f"buffer_store_dwordx4 v[{P}:{P+3}], v{VA}, s[{sWS}:{sWS+3}], s36 offen")
    a.label(end)
    stamp_end(a)
    a.label(end + "_real")
    a("s_endpgm")
    a.label(fb)
    floop = f"{name}_fbloop"
    MX = T + 9
    a(f"""s_mov_b32 s{sSECOND}, 1
    s_mov_b32 s{sNOBAR}, 1
    s_mov_b32 s{sNIT}, 8
    v_mov_b32 v{MX}, 0xff800000
    v_mov_b32 v{T+10}, v{VA}
    s_mov_b32 s38, 0""")
    a.label(floop)
    a(f"""ds_read_b128 {vr(KF[0],4)}, v{T+10}
    v_add_u32 v{T+10}, 1024, v{T+10}
    s_waitcnt lgkmcnt(0)
    v_mfma_f32_32x32x16_bf16 {vr(S[0],16)}, {vr(KF[0],4)}, {vr(QF,4)}, 0
    s_nop 15
    s_nop 3""")
    for i in range(8):
        a(f"v_max3_f32 v{MX}, v{S[0]+2*i}, v{S[0]+2*i+1}, v{MX}")
    a(f"""s_add_u32 s38, s38, 1
    s_cmp_lt_u32 s38, 64
    s_cbranch_scc1 {floop}
    v_mov_b32 v{T+10}, v{MX}
    s_nop 1
    v_permlane32_swap_b32 v{MX}, v{T+10}
    s_nop 1
    v_max_f32 v{MX}, v{MX}, v{T+10}
    v_sub_f32 v{T+6}, 0, v{MX}
    v_mov_b32 v{VKA}, v{VA}
    v_mov_b32 v{VVA}, v{T+8}""")
    emit_vf_init()
    a(f"s_branch {main}")
    a.label(helper)
    a(f"""s_load_dwordx2 s[6:7], s[0:1], {KA_WQKV}
    s_load_dwordx4 s[28:31], s[0:1], {KA_WG}
    s_load_dwordx2 s[60:61], s[0:1], {KA_WO}
    s_load_dwordx2 s[62:63], s[0:1], {KA_WD}
    s_add_u32 s43, s43, 4096
    s_add_u32 s44, s44, 4096
    s_mov_b32 s{sNOBAR}, 1
    s_setprio 3
    v_mov_b32 v{T+14}, {CNT_OFF}
    v_mov_b32 v{T+15}, 1
    s_waitcnt lgkmcnt(0)
    s_mov_b32 s12, s8
    s_and_b32 s13, s9, 0xffff""")
    def dma4():
        a(f"s_mov_b32 m0, s43\ns_add_u32 s43, s43, 4096")
        for j in range(4):
            a(f"buffer_load_dwordx4 v{VA}, s[{sWS}:{sWS+3}], s44 offen offset:{1024*j} lds")
        a("s_add_u32 s44, s44, 4096")
    dma4(); dma4()
    a("s_barrier")
    dma4(); dma4()
    a(f"""s_waitcnt vmcnt(8)
    s_mov_b64 exec, 1
    ds_add_u32 v{T+14}, v{T+15} offset:64
    s_mov_b64 exec, -1""")
    dma4(); dma4(); dma4()
    hdone = f"{name}_hdone"
    a(f"""s_waitcnt vmcnt(0)
    s_mov_b64 exec, 1
    ds_add_u32 v{T+14}, v{T+15} offset:64
    s_mov_b64 exec, -1
    s_cmp_eq_u32 s{sSIDE}, 0
    s_cbranch_scc1 {hdone}
    s_sub_u32 s45, s{sWAVE}, 12
    s_lshl_b32 s34, s45, 13
    s_add_u32 s34, s34, {STG}
    s_lshl_b32 s67, s45, 8
    s_add_u32 s67, s67, s2
    s_mov_b32 s33, 0x3f803f80
    s_cmp_ge_u32 s67, 768
    s_cbranch_scc1 {hdone}""")
    a.label(f"{name}_wloop")
    emit_wunits(a, name + "_w", f"{name}_wnext", VLANE, T, VA, 0, sWS, 67)
    a.label(f"{name}_wnext")
    a(f"""s_mov_b64 exec, -1
    s_add_u32 s67, s67, 768
    s_cmp_lt_u32 s67, 928
    s_cbranch_scc1 {name}_wloop""")
    a.label(hdone)
    a(f"""s_mov_b64 exec, -1
    s_cmp_ge_u32 s2, 4
    s_cbranch_scc1 {name}_nozero
    s_cmp_lg_u32 s{sWAVE}, 15
    s_cbranch_scc1 {name}_nozero
    v_mov_b32 v0, 0
    v_mov_b32 v1, 0
    v_mov_b32 v2, 0
    v_mov_b32 v3, 0
    s_lshl_b32 s45, s2, 12
    s_add_u32 s45, s45, {WS_FLAG}
    buffer_store_dwordx4 v[0:3], v{VA}, s[{sWS}:{sWS+3}], s45 offen
    buffer_store_dwordx4 v[0:3], v{VA}, s[{sWS}:{sWS+3}], s45 offen offset:1024""")
    a.label(f"{name}_nozero")
    a(f"""s_mov_b64 exec, 1
    ds_add_u32 v{T+14}, v{T+15} offset:68
    s_mov_b64 exec, -1
    s_branch {pro}""")
    desc = "".join(kernel_desc(nm, 128) for nm, _ in entries)
    return code + a.text(), desc, LDS
```

```python
from common import *
from k_qkv import emit_stats_final, VmTracker, QSCALE
from collections import defaultdict

VLANE = 252; VA = 253; VT = 254
sWS = 12; sWAVE = 70; sLAYER = 71; sFLG = 72; sPOLL = 73; sSPIN = 74
SC = " sc1"
PF = 76 if not STAMP else 76

def tile_stats(a, V, T, vaddr, soff):
    a(f"v_add_f32 v{T}, v{V}, v{V+1}\nv_mul_f32 v{T+1}, v{V}, v{V}")
    a(f"v_fmac_f32 v{T+1}, v{V+1}, v{V+1}")
    for i in range(2, 16):
        a(f"v_add_f32 v{T}, v{T}, v{V+i}\nv_fmac_f32 v{T+1}, v{V+i}, v{V+i}")
    a(f"""v_mov_b32 v{T+2}, v{T}
    v_mov_b32 v{T+3}, v{T+1}
    s_nop 1
    v_permlane32_swap_b32 v{T}, v{T+2}
    v_permlane32_swap_b32 v{T+1}, v{T+3}
    s_nop 1
    v_add_f32 v{T}, v{T}, v{T+2}
    v_add_f32 v{T+1}, v{T+1}, v{T+3}
    s_mov_b64 exec, 0xffffffff
    buffer_store_dwordx2 v[{T}:{T+1}], v{vaddr}, s[{sWS}:{sWS+3}], s{soff} offen sc1
    s_mov_b64 exec, -1""")

ATOM = not os.environ.get("NOATOM")
SIGOP = (f"s_and_b32 s{sFLG}, s{sFLG}, 0xffffff80\nbuffer_atomic_add v{VT+1}, v{VT}, s[{sWS}:{sWS+3}], s{sFLG} offen sc1" if ATOM else
         f"buffer_store_byte v{VT+1}, v{VT}, s[{sWS}:{sWS+3}], s{sFLG} offen sc1")
def signal(a, name, n_after):
    l = a.newlabel(name + "_sig")
    a(f"s_waitcnt vmcnt({n_after})")
    if os.environ.get("HST") and not hasattr(signal, "done"): stamp_mid(a, 2)
    a("s_barrier")
    if os.environ.get("HST") and not hasattr(signal, "done"): stamp_mid(a, 3); signal.done = 1
    a(f"""s_cmp_lg_u32 s{sWAVE}, 0
    s_cbranch_scc1 {l}
    v_mov_b32 v{VT}, 0
    v_mov_b32 v{VT+1}, 1
    s_mov_b64 exec, 1
    {SIGOP}
    s_mov_b64 exec, -1""")
    a.label(l)

def poll(a, name):
    l = a.newlabel(name + "_poll"); d = a.newlabel(name + "_pok")
    S0 = int(os.environ.get("PS0", "0")); S1 = int(os.environ.get("PS1", "2"))
    a(f"""s_cmp_lg_u32 s{sWAVE}, 0
    s_cbranch_scc1 {d}
    s_add_u32 s66, s8, s{sPOLL}
    s_addc_u32 s67, s9, 0
    s_mov_b32 s{sSPIN}, 0
    s_sleep {S0}""")
    a.label(l)
    if ATOM:
        a(f"""s_load_dword s16, s[66:67], 0 glc
        s_add_u32 s{sSPIN}, s{sSPIN}, 1
        s_waitcnt lgkmcnt(0)
        s_cmp_eq_u32 s16, 16""")
    else:
        a(f"""s_load_dwordx4 s[16:19], s[66:67], 0 glc
        s_add_u32 s{sSPIN}, s{sSPIN}, 1
        s_waitcnt lgkmcnt(0)
        s_and_b64 s[16:17], s[16:17], s[18:19]
        s_and_b32 s16, s16, s17
        s_cmp_eq_u32 s16, 0x01010101""")
    a(f"""s_cbranch_scc1 {d}
    s_sleep {S1}
    s_cmp_lt_u32 s{sSPIN}, 0x40000
    s_cbranch_scc1 {l}""")
    a.label(d)
    a("s_barrier")

CSF_OFF = 131072
CSQ_OFF = 131072 + 1024
STQ_OFF = 131072 + 2048
def cs_issue(a):
    a(f"""s_lshr_b32 s50, s2, 1
    s_and_b32 s50, s50, 3
    s_lshl_b32 s50, s50, 2
    s_lshr_b32 s51, s2, 6
    s_add_u32 s50, s50, s51
    s_mul_i32 s50, s50, {224*64}
    s_add_u32 s50, s50, {WS_CSG}
    s_bfe_u32 s51, s2, 0x10002
    s_lshl_b32 s51, s51, 3
    s_lshr_b32 s52, s2, 5
    s_add_u32 s51, s51, s52
    s_mul_i32 s51, s51, 3072
    s_add_u32 s51, s51, {WS_CSQ}
    s_lshl_b32 s52, s{sWAVE}, 6
    v_add_u32 v220, s52, v{VLANE}
    v_lshlrev_b32 v221, 6, v220""")
    for i in range(4):
        a(f"buffer_load_dwordx4 v[{196+4*i}:{199+4*i}], v221, s[{sWS}:{sWS+3}], s50 offen offset:{16*i}")
    a("v_lshlrev_b32 v221, 5, v220")
    for i in range(2):
        a(f"buffer_load_dwordx4 v[{212+4*i}:{215+4*i}], v221, s[{sWS}:{sWS+3}], s51 offen offset:{16*i}")
def cs_reduce(a):
    CP = 196
    for i in range(12): a(f"v_add_f32 v{CP+2*i}, v{CP+2*i}, v{CP+2*i+1}")
    for i in range(6): a(f"v_add_f32 v{CP+4*i}, v{CP+4*i}, v{CP+4*i+2}")
    a(f"""v_add_f32 v{CP}, v{CP}, v{CP+4}
    v_add_f32 v{CP+8}, v{CP+8}, v{CP+12}
    v_add_f32 v{CP+16}, v{CP+16}, v{CP+20}
    v_add_f32 v{CP}, v{CP}, v{CP+8}
    v_lshlrev_b32 v220, 2, v220
    v_add_u32 v220, {CSF_OFF}, v220
    ds_write_b32 v220, v{CP}
    ds_write_b32 v220, v{CP+16} offset:1024""")

class Proj:
    R = 8; CH = 16384
    def __init__(self, a, name, KS, a_off, w_off):
        self.a = a; self.name = name; self.KS = KS; self.NCH = KS // 4; self.a_off = a_off; self.w_off = w_off
        self.vm = VmTracker()
        self.sRB, self.sCB, self.sG, self.sT, self.sRG = 24, 25, 36, 37, 38
        self.sAO, self.sW0, self.sLA, self.sLB = 28, 29, 48, 49
        self.nb = 0; self.na = 0
    def setup(self):
        a = self.a; ARG = self.KS * 1024
        a(f"""s_and_b32 s34, s2, 7
        s_lshr_b32 s35, s2, 3
        s_lshl_b32 s{self.sRB}, s34, 2
        s_and_b32 s39, s35, 3
        s_add_u32 s{self.sRB}, s{self.sRB}, s39
        s_lshr_b32 s{self.sCB}, s35, 2
        s_and_b32 s{self.sG}, s{sWAVE}, 1
        s_lshr_b32 s{self.sT}, s{sWAVE}, 1
        s_lshl_b32 s{self.sRG}, s{self.sRB}, 1
        s_add_u32 s{self.sRG}, s{self.sRG}, s{self.sG}
        s_mul_i32 s{self.sAO}, s{self.sRG}, {ARG}
        s_lshl_b32 s39, s{self.sT}, 11
        s_add_u32 s{self.sAO}, s{self.sAO}, s39
        s_add_u32 s{self.sAO}, s{self.sAO}, {self.a_off}
        s_mul_i32 s{self.sW0}, s{self.sCB}, {2*ARG}
        s_lshl_b32 s47, s{sWAVE}, 11
        s_add_u32 s{self.sW0}, s{self.sW0}, s47
        s_add_u32 s{self.sW0}, s{self.sW0}, {self.w_off}
        s_lshl_b32 s{self.sLA}, s{self.sG}, 12
        s_add_u32 s{self.sLA}, s{self.sLA}, s39
        s_add_u32 s{self.sLB}, s47, 8192""")
    def ldA(self, half, sc=""):
        a = self.a; c = self.na
        if half == 0:
            a(f"s_add_u32 m0, s{self.sLA}, {(c % self.R) * self.CH}\ns_nop 0")
            a(f"buffer_load_dwordx4 v{VA}, s[{sWS}:{sWS+3}], s{self.sAO} offen{sc} lds")
        else:
            a(f"buffer_load_dwordx4 v{VA}, s[{sWS}:{sWS+3}], s{self.sAO} offen offset:1024{sc} lds")
            a(f"s_add_u32 s{self.sAO}, s{self.sAO}, 4096")
            self.na += 1
        self.vm.issue(("A", c))
    def ldB(self, half):
        a = self.a; c = self.nb
        if half == 0:
            a(f"s_add_u32 m0, s{self.sLB}, {(c % self.R) * self.CH}\ns_nop 0")
            a(f"buffer_load_dwordx4 v{VA}, s[{sWS}:{sWS+3}], s{self.sW0} offen lds")
        else:
            a(f"buffer_load_dwordx4 v{VA}, s[{sWS}:{sWS+3}], s{self.sW0} offen offset:1024 lds")
            a(f"s_add_u32 s{self.sW0}, s{self.sW0}, 8192")
            self.nb += 1
        self.vm.issue(("B", c))
    def main(self, res_emit, sc, PA):
        a = self.a; vm = self.vm; NCH = self.NCH
        ACC = 0; FR = 96; VRA = [59, 60]; VRB = [61, 62]
        for c in range(PA):
            self.ldA(0, sc); self.ldA(1, sc)
            if self.nb <= c: self.ldB(0); self.ldB(1)
        if self.bahead:
            while self.nb < self.R: self.ldB(0); self.ldB(1)
        a(f"""s_lshl_b32 s56, s{self.sRG}, 15
        s_lshl_b32 s57, s{self.sCB}, 12
        s_lshl_b32 s58, s{self.sT}, 11
        s_add_u32 s57, s57, s58
        s_add_u32 s57, s57, s56""")
        res_emit(); vm.issue(("R", 0)); vm.issue(("R", 0))
        a(f"""s_lshl_b32 s59, s{self.sG}, 12
        v_add_u32 v{VRA[0]}, s59, v{VA}
        v_add_u32 v{VRA[1]}, 65536, v{VRA[0]}
        s_lshl_b32 s59, s{self.sT}, 10
        s_add_u32 s59, s59, 8192
        v_add_u32 v{VRB[0]}, s59, v{VA}
        v_add_u32 v{VRB[1]}, 65536, v{VRB[0]}""")
        def rd(c, q):
            af = FR + 32 * (c % 2); bf = af + 16
            sl = c % self.R; hi = sl // 4; off = (sl % 4) * self.CH
            a(f"ds_read_b128 v[{af+4*q}:{af+4*q+3}], v{VRA[hi]} offset:{off+q*1024}")
            a(f"ds_read_b128 v[{bf+4*q}:{bf+4*q+3}], v{VRB[hi]} offset:{off+q*2048}")
        def mf(c, q):
            af = FR + 32 * (c % 2); bf = af + 16
            cc = "0" if (c == 0 and q == 0) else vr(ACC, 16)
            a(f"v_mfma_f32_32x32x16_bf16 {vr(ACC,16)}, {vr(bf+4*q,4)}, {vr(af+4*q,4)}, {cc}")
        def lds_for(k, q):
            if q < 2:
                if self.na < NCH and self.na <= k + 1 + PA: self.ldA(q, sc)
            else:
                lim = k + self.R if self.bahead else k + 1 + PA
                if self.nb < NCH and self.nb <= lim: self.ldB(q - 2)
        a(f"s_waitcnt vmcnt({vm.wait_for({('A',0),('B',0)})})\ns_barrier")
        for q in range(4):
            rd(0, q); lds_for(-1, q)
        for k in range(NCH - 1):
            a(f"s_waitcnt vmcnt({vm.wait_for({('A',k+1),('B',k+1)})}) lgkmcnt(0)\ns_barrier")
            for q in range(4):
                mf(k, q); rd(k + 1, q); lds_for(k, q)
            if getattr(self, "cs_hook", False):
                if k == 3:
                    cs_issue(a)
                    for _ in range(6): vm.issue(("CS", 0))
        for q in range(4):
            a(f"s_waitcnt lgkmcnt({2*(3-q)})")
            mf(NCH - 1, q)
        a("s_barrier")
    def epilogue_common(self):
        a = self.a; ACC = 0; RES = 48; U = 80
        a("s_mov_b32 s47, 0xffff0000")
        for i in range(8):
            a(f"v_lshlrev_b32 v{U+2*i}, 16, v{RES+i}\nv_and_b32 v{U+2*i+1}, s47, v{RES+i}")
        for i in range(16):
            a(f"v_add_f32 v{ACC+i}, v{ACC+i}, v{U+i}")
        for i in range(8):
            a(f"v_cvt_pk_bf16_f32 v{RES+i}, v{ACC+2*i}, v{ACC+2*i+1}")
    def store_tiled(self, out_off, st_off, phase):
        a = self.a; PK = 48; U = 80; T = 64
        a(f"""s_add_u32 s58, s57, {out_off}
        buffer_store_dwordx4 v[{PK}:{PK+3}], v{VA}, s[{sWS}:{sWS+3}], s58 offen sc1
        buffer_store_dwordx4 v[{PK+4}:{PK+7}], v{VA}, s[{sWS}:{sWS+3}], s58 offen offset:1024 sc1
        v_and_b32 v{T}, 31, v{VLANE}
        v_lshlrev_b32 v{T}, 3, v{T}
        s_lshr_b32 s58, s57, 3
        s_add_u32 s58, s58, {st_off}""")
        for i in range(8):
            a(f"v_lshlrev_b32 v{U+2*i}, 16, v{PK+i}\nv_and_b32 v{U+2*i+1}, s47, v{PK+i}")
        tile_stats(a, U, T + 2, T, 58)
        a(f"""s_lshr_b32 s58, s{self.sRB}, 1
        s_lshl_b32 s58, s58, 7
        s_and_b32 s59, s{self.sRB}, 1
        s_lshl_b32 s59, s59, 3
        s_add_u32 s59, s59, s{self.sCB}
        s_add_u32 s{sFLG}, s58, s59
        s_add_u32 s{sFLG}, s{sFLG}, {WS_FLAG + phase*4096}""")

def gen_blk(entries):
    a = Asm()
    name = entries[0][0]
    body = f"{name}_body"; end = f"{name}_end"
    code = ""
    for i, (nm, layer) in enumerate(entries):
        code += kernel_header(nm) + f"    s_mov_b32 s{sLAYER}, {layer}\n"
        if i + 1 < len(entries):
            code += f"    s_branch {body}\n"
    a.label(body)
    a(f"""s_cmp_ge_u32 s2, 256
    s_cbranch_scc1 {end}_real""")
    stamp_begin(a)
    a(f"""s_load_dwordx2 s[8:9], s[0:1], {KA_WS}
    s_load_dwordx2 s[4:5], s[0:1], {KA_OUT}
    s_load_dwordx2 s[6:7], s[0:1], {KA_X}
    v_and_b32 v{VLANE}, 63, v0
    v_lshrrev_b32 v{VT}, 6, v0
    v_lshlrev_b32 v{VA}, 4, v{VLANE}
    v_readfirstlane_b32 s{sWAVE}, v{VT}
    s_mov_b32 s14, {WS_SIZE}
    s_mov_b32 s15, 0x00020000""")
    P = Proj(a, name + "_wo", 32, WS_O, WS_WO); P.bahead = False; P.cs_hook = True
    P.setup()
    a(f"""s_waitcnt lgkmcnt(0)
    s_mov_b32 s12, s8
    s_and_b32 s13, s9, 0xffff""")
    RES = 48; T = 64
    def res_wo():
        l1 = f"{name}_rnat"; l2 = f"{name}_rdone"
        a(f"""s_cmp_eq_u32 s{sLAYER}, 0
        s_cbranch_scc1 {l1}
        s_add_u32 s58, s57, {WS_X2}
        buffer_load_dwordx4 v[{RES}:{RES+3}], v{VA}, s[{sWS}:{sWS+3}], s58 offen
        buffer_load_dwordx4 v[{RES+4}:{RES+7}], v{VA}, s[{sWS}:{sWS+3}], s58 offen offset:1024
        s_branch {l2}""")
        a.label(l1)
        a(f"""s_mov_b32 s60, s6
        s_and_b32 s61, s7, 0xffff
        s_mov_b32 s62, {2048*1024}
        s_mov_b32 s63, 0x00020000
        s_lshl_b32 s58, s{P.sCB}, 7
        s_lshl_b32 s59, s{P.sT}, 6
        s_add_u32 s58, s58, s59
        s_add_u32 s58, s58, s56
        v_and_b32 v{T}, 31, v{VLANE}
        v_lshlrev_b32 v{T}, 10, v{T}
        v_lshrrev_b32 v{T+1}, 5, v{VLANE}
        v_lshl_add_u32 v{T}, v{T+1}, 4, v{T}
        buffer_load_dwordx4 v[{RES}:{RES+3}], v{T}, s[60:63], s58 offen
        buffer_load_dwordx4 v[{RES+4}:{RES+7}], v{T}, s[60:63], s58 offen offset:32""")
        a.label(l2)
    P.main(res_wo, "", 3)
    a(f"""s_cmp_lg_u32 s{sLAYER}, 0
    s_cbranch_scc1 {name}_noswap
    v_permlane32_swap_b32 v{RES}, v{RES+2}
    v_permlane32_swap_b32 v{RES+1}, v{RES+3}
    v_permlane32_swap_b32 v{RES+4}, v{RES+6}
    v_permlane32_swap_b32 v{RES+5}, v{RES+7}
    s_nop 1""")
    a.label(f"{name}_noswap")
    P.epilogue_common()
    P.store_tiled(WS_X1, WS_ST, 0)
    if not os.environ.get("STSET") and not os.environ.get("FST"): stamp_mid(a, 0)
    lds_ffn = emit_ffn1(a, name)
    if not os.environ.get("FST") and not os.environ.get("HST"): stamp_mid(a, 2)
    D = emit_ffn1.down
    def res_dn():
        a(f"""s_add_u32 s58, s57, {WS_X1}
        buffer_load_dwordx4 v[{RES}:{RES+3}], v{VA}, s[{sWS}:{sWS+3}], s58 offen sc1
        buffer_load_dwordx4 v[{RES+4}:{RES+7}], v{VA}, s[{sWS}:{sWS+3}], s58 offen offset:1024 sc1""")
    D.main(res_dn, SC, 4)
    D.epilogue_common()
    nat = f"{name}_nat"
    a(f"""s_cmp_lg_u32 s{sLAYER}, 0
    s_cbranch_scc1 {nat}""")
    D.store_tiled(WS_X2, WS_ST2, 2)
    if not os.environ.get("STSET") and not os.environ.get("FST") and not os.environ.get("HST"): stamp_mid(a, 3)
    lds_qkv = emit_qkv(a, name)
    a(f"s_branch {end}")
    a.label(nat)
    PK = 48
    a(f"""s_mov_b32 s20, s4
    s_and_b32 s21, s5, 0xffff
    s_mov_b32 s22, {2048*1024}
    s_mov_b32 s23, 0x00020000
    s_lshl_b32 s58, s{D.sCB}, 7
    s_lshl_b32 s59, s{D.sT}, 6
    s_add_u32 s58, s58, s59
    s_add_u32 s58, s58, s56
    v_and_b32 v{T}, 31, v{VLANE}
    v_lshlrev_b32 v{T}, 10, v{T}
    v_lshrrev_b32 v{T+1}, 5, v{VLANE}
    v_lshl_add_u32 v{T}, v{T+1}, 4, v{T}
    v_permlane32_swap_b32 v{PK}, v{PK+2}
    v_permlane32_swap_b32 v{PK+1}, v{PK+3}
    v_permlane32_swap_b32 v{PK+4}, v{PK+6}
    v_permlane32_swap_b32 v{PK+5}, v{PK+7}
    s_nop 1
    buffer_store_dwordx4 v[{PK}:{PK+3}], v{T}, s[20:23], s58 offen
    buffer_store_dwordx4 v[{PK+4}:{PK+7}], v{T}, s[20:23], s58 offen offset:32""")
    a.label(end)
    stamp_end(a)
    a.label(end + "_real")
    a("s_endpgm")
    desc = "".join(kernel_desc(nm, 384, accum=256) for nm, _ in entries)
    return code + a.text(), desc, max(lds_ffn, lds_qkv, 131072)

def emit_ffn1(a, name):
    NB = 9; LA = 7
    ACC = 0; BF = 112; CT = 148; SR = 180; CP = 196
    VB = [230, 231]; T = 232
    vMEAN, vRSTD = 246, 247; NM = 248; R2 = 250
    R = 4; SLOT = 32768
    CS_OFF = CSF_OFF
    LDS = STQ_OFF + 1024
    sRB, sCB, sRG = 24, 25, 27
    sLW, sW1, sAOFF, sW2 = 28, 29, 30, 31
    a(f"""s_and_b32 s34, s2, 7
    s_lshr_b32 s35, s2, 3
    s_and_b32 s{sRB}, s34, 1
    s_lshl_b32 s{sRB}, s{sRB}, 3
    s_and_b32 s36, s35, 7
    s_add_u32 s{sRB}, s{sRB}, s36
    s_lshr_b32 s{sCB}, s34, 1
    s_lshl_b32 s{sCB}, s{sCB}, 2
    s_lshr_b32 s36, s35, 3
    s_add_u32 s{sCB}, s{sCB}, s36
    s_lshl_b32 s{sRG}, s{sRB}, 2
    s_add_u32 s{sRG}, s{sRG}, s{sWAVE}
    s_lshl_b32 s{sLW}, s{sWAVE}, 10
    s_mul_i32 s{sW1}, s{sCB}, {32*7168}
    s_add_u32 s{sW1}, s{sW1}, {WS_WGU}
    s_mul_i32 s{sW2}, s{sWAVE}, 7168
    s_add_u32 s{sW2}, s{sW2}, s{sW1}
    s_add_u32 s{sW1}, s{sW1}, s{sLW}
    s_lshl_b32 s{sAOFF}, s{sRG}, 15
    s_add_u32 s{sAOFF}, s{sAOFF}, {WS_X1}
    s_lshl_b32 s{sPOLL}, s{sRB}, 7
    s_add_u32 s{sPOLL}, s{sPOLL}, {WS_FLAG}""")
    vm = VmTracker(); lg = VmTracker()
    def bdma(c, j):
        a(f"s_add_u32 m0, s{sLW}, {(c % R)*SLOT + 4096*j}")
        if c < 4:
            a(f"s_add_u32 s41, s{sW1}, {(8*c + j)*7168}")
        else:
            a(f"s_add_u32 s41, s{sW2}, {c*1024 + j*28672}")
        a(f"buffer_load_dwordx4 v{VA}, s[{sWS}:{sWS+3}], s41 offen lds")
        vm.issue(("B", c))
    def aload(s):
        a(f"buffer_load_dwordx4 a[{4*s}:{4*s+3}], v{VA}, s[{sWS}:{sWS+3}], s{sAOFF} offen offset:{(s%4)*1024} sc1")
        if s % 4 == 3:
            a(f"s_add_u32 s{sAOFF}, s{sAOFF}, 4096")
        vm.issue(("A", s))
    NP1 = int(os.environ.get("FNP1", "2"))
    NPRE = int(os.environ.get("FPRE", "4"))
    pre = [(c, j) for c in range(NP1) for j in range(8)]
    for (c, j) in pre[:NPRE]: bdma(c, j)
    signal(a, name, min(NPRE, len(pre)))
    cs_reduce(a)
    a(f"""v_and_b32 v{T}, 31, v{VLANE}
    v_lshrrev_b32 v{T+1}, 5, v{VLANE}
    v_lshlrev_b32 v{T+2}, 11, v{T+1}
    v_lshl_add_u32 v{T+2}, v{T}, 3, v{T+2}
    s_lshl_b32 s34, s{sRG}, 12
    s_add_u32 s34, s34, {WS_ST}
    s_lshl_b32 s36, s{sWAVE}, 6
    v_add_u32 v{T+4}, s36, v{VLANE}
    v_lshlrev_b32 v{T+3}, 6, v{T+4}
    s_mul_i32 s35, s{sCB}, {224*64}
    s_add_u32 s35, s35, {WS_CSG}
    v_lshlrev_b32 v{T+4}, 2, v{T+4}
    v_add_u32 v{T+4}, {CS_OFF}, v{T+4}
    v_lshlrev_b32 v{T+5}, 4, v{T+1}
    v_add_u32 v{T+5}, {CS_OFF}, v{T+5}
    v_mov_b32 v{VB[0]}, v{VA}
    v_add_u32 v{VB[1]}, {2*SLOT}, v{VA}
    s_mul_i32 s37, s{sRG}, {112*1024}
    s_mul_i32 s38, s{sCB}, {7*1024}
    s_add_u32 s37, s37, s38
    s_add_u32 s37, s37, {WS_H}
    s_add_u32 s38, s37, 4096
    s_lshl_b32 s40, s{sRB}, 7
    s_add_u32 s40, s40, s{sCB}
    s_add_u32 s40, s40, {WS_FLAG + 4096}""")
    for (c, j) in pre[NPRE:]: bdma(c, j)
    a(f"s_waitcnt vmcnt({vm.wait_for({('B', 0)})}) lgkmcnt(0)")
    if os.environ.get("HST"): stamp_mid(a, 4)
    poll(a, name)
    stamp_mid(a, 1)
    a(f"s_mov_b32 s{sFLG}, s40")
    APRE = 12
    for q in range(APRE): aload(q)
    slots = [(s, t) for s in range(32) for t in range(4)] + [(s, t) for t in range(4, 7) for s in range(32)]
    NS = len(slots)
    def accof(t): return ACC + 16 * t
    def read(m):
        c = m // 32; p = m % 32
        b = BF + 4 * (m % NB)
        sl = c % R
        a(f"ds_read_b128 v[{b}:{b+3}], v{VB[sl//2]} offset:{(sl%2)*SLOT + 1024*p}")
        lg.issue(("F", m))
    loadq = defaultdict(list)
    def small_st(i):
        a(f"buffer_load_dwordx2 v[{SR+2*i}:{SR+2*i+1}], v{T+2}, s[{sWS}:{sWS+3}], s34 offen offset:{256*i} sc1")
        vm.issue(("S", 0))
    for s_ in range(APRE, 32):
        loadq[(s_ - APRE) * 4 + 1].append(lambda s_=s_: aload(s_))
    for c in range(NP1, 4):
        for j in range(8): loadq[3 + (c - NP1) * 32 + 4 * j].append(lambda c=c, j=j: bdma(c, j))
    for i in range(8): loadq[82 + i].append(lambda i=i: small_st(i))
    for c in range(4, 7):
        base = (c - 2) * 32 - LA + 2
        if c == 4: base += 1
        for j in range(8): loadq[base + 4 * j].append(lambda c=c, j=j: bdma(c, j))
    fillq = defaultdict(list)
    sub = Asm()
    emit_stats_final(sub, SR, T + 6, vMEAN, vRSTD)
    sub(f"""v_sub_f32 v{NM}, 0, v{vMEAN}
    v_mul_f32 v{R2}, v{vRSTD}, v{vRSTD}""")
    blockA = [l.strip() for l in sub.lines]
    m0 = 100
    for i, ins in enumerate(blockA): fillq[m0 + i // 3].append((ins, None))
    endA = m0 + (len(blockA) - 1) // 3
    assert endA < 120
    csreadq = defaultdict(list)
    def cs_at(slot, t, buf):
        csreadq[slot].append((t, CT + 16 * buf))
    for k, t in enumerate((4, 5, 6)):
        first = 128 + 32 * k
        cs_at(first - 14, t, 0)
        for i in range(16):
            fillq[first - 7 + i // 4].append((f"v_mul_f32 v{accof(t)+i}, v{NM}, v{CT+i}", None, ("C", t)))
    def epi(t, corr):
        ac = accof(t); L = []
        if corr:
            for i in range(16): L.append((f"v_fmac_f32 v{ac+i}, v{NM}, v{CT+16+i}", t, ("C", t)))
        for i in range(8): L.append((f"v_max_f32 v{ac+i}, 0, v{ac+i}", t))
        for i in range(8): L.append((f"v_mul_f32 v{ac+8+i}, v{ac+8+i}, v{R2}", t))
        for i in range(8): L.append((f"v_mul_f32 v{ac+i}, v{ac+i}, v{ac+8+i}", t))
        for i in range(4): L.append((f"v_cvt_pk_bf16_f32 v{ac+8+i}, v{ac+2*i}, v{ac+2*i+1}", t))
        so = 37 if t < 4 else 38
        L.append((f"buffer_store_dwordx4 v[{ac+8}:{ac+11}], v{VA}, s[{sWS}:{sWS+3}], s{so} offen offset:{(t%4)*1024} sc1", t))
        return L
    starts = [132, 160 + 1, 176 + 1, 192 + 12]
    starts = [131, 146 + 14, 146 + 29 + 13, 0]
    busy = set()
    for k in range(3):
        for x in range(128 + 32 * k - 7, 128 + 32 * k - 3): busy.add(x)
    cur = 131
    order = [(0, True, 131), (1, True, 131), (4, False, 164), (2, True, 131), (3, True, 131), (5, False, 196)]
    for (t, corr, earliest) in order:
        cur = max(cur, earliest)
        if corr: cs_at(cur - 5, t, 1)
        L = epi(t, corr)
        i = 0
        while i < len(L):
            if cur in busy: cur += 1; continue
            for it in L[i:i+3]: fillq[cur].append(it)
            i += 3; cur += 1
        cur += 0
    assert cur <= NS, cur
    tail = epi(6, False)
    for m in range(LA): read(m)
    last_mfma_pos = {}
    def pos(): return len(a.lines)
    seen = set()
    def emit_fill(item):
        ins = item[0]; tile = item[1]
        if len(item) > 2:
            n = lg.wait_for({item[2]})
            if n < 15 and ("w", item[2]) not in seen:
                a(f"s_waitcnt lgkmcnt({n})"); seen.add(("w", item[2]))
        if tile is not None:
            d = pos() - last_mfma_pos[tile]
            if d < 13:
                a(f"s_nop {13 - d - 1}")
        a(ins)
        if "buffer_store" in ins: vm.issue(("ST", 0))
    for m, (s, t) in enumerate(slots):
        w = f"lgkmcnt({min(15, lg.wait_for({('F', m)}))})"
        need = set()
        if s not in seen:
            seen.add(s); need.add(("A", s))
        if m == m0: need.add(("S", 0))
        if need: w = f"vmcnt({min(63, vm.wait_for(need))}) " + w
        a(f"s_waitcnt {w}")
        cc = "0" if (s == 0 and t < 4) else vr(accof(t), 16)
        a(f"v_mfma_f32_32x32x16_bf16 {vr(accof(t),16)}, {vr(BF+4*(m%NB),4)}, a[{4*s}:{4*s+3}], {cc}")
        last_mfma_pos[t] = pos() - 1
        if os.environ.get("FST") and m in (0, 64, 128, 192): stamp_mid(a, {0: 0, 64: 2, 128: 3, 192: 4}[m])
        for f in loadq[m]: f()
        for item in fillq[m]: emit_fill(item)
        if m + LA < NS:
            if (m + LA) % 32 == 0:
                cn = (m + LA) // 32
                a(f"s_waitcnt vmcnt({min(63, vm.wait_for({('B', cn)}))})\ns_barrier")
            read(m + LA)
        else:
            a("s_nop 0")
        for (tt, cb) in csreadq[m]:
            for g in range(4):
                a(f"ds_read_b128 v[{cb+4*g}:{cb+4*g+3}], v{T+5} offset:{128*tt+32*g}")
                lg.issue(("C", tt))
    if os.environ.get("STSET"): stamp_mid(a, 0)
    a("s_barrier")
    for item in tail: emit_fill(item)
    D = Proj(a, name + "_dn", 112, WS_H, WS_WD); D.bahead = True
    D.setup()
    a(f"""s_lshr_b32 s{sPOLL}, s{D.sRB}, 1
    s_lshl_b32 s{sPOLL}, s{sPOLL}, 7
    s_add_u32 s{sPOLL}, s{sPOLL}, {WS_FLAG + 4096}""")
    DPRE = int(os.environ.get("DPRE", "2"))
    for c in range(DPRE): D.ldB(0); D.ldB(1)
    signal(a, name, 2 * DPRE)
    for c in range(8 - DPRE): D.ldB(0); D.ldB(1)
    poll(a, name)
    emit_ffn1.down = D
    return LDS

def emit_qkv(a, name):
    ACC = 0; BF = 48; BQ = 84; BK = 100; AVv = 116; BV = 132
    AR = 148; AD = 20
    SR = AVv; CP = BV; VB0 = 230; VB1 = 231; T = 232
    vMEAN, vRSTD, vNB, vRQ = 248, 249, 250, 251
    CS_OFF = CSQ_OFF; ST_OFF = STQ_OFF
    LDS = ST_OFF + 1024
    sRB, sCB, sRG = 24, 25, 27
    sM0, sWOFF, sAOFF = 30, 31, 32
    a(f"""s_and_b32 s28, s2, 7
    s_lshr_b32 s29, s2, 3
    s_and_b32 s{sRB}, s28, 3
    s_lshl_b32 s{sRB}, s{sRB}, 2
    s_and_b32 s34, s29, 3
    s_add_u32 s{sRB}, s{sRB}, s34
    s_lshr_b32 s{sCB}, s28, 2
    s_lshl_b32 s{sCB}, s{sCB}, 3
    s_lshr_b32 s34, s29, 2
    s_add_u32 s{sCB}, s{sCB}, s34
    s_lshl_b32 s{sRG}, s{sRB}, 2
    s_add_u32 s{sRG}, s{sRG}, s{sWAVE}
    s_mul_i32 s{sM0}, s{sWAVE}, 3072
    s_mul_i32 s{sWOFF}, s{sCB}, 98304
    s_add_u32 s{sWOFF}, s{sWOFF}, s{sM0}
    s_add_u32 s{sWOFF}, s{sWOFF}, {WS_WQKV}
    s_lshl_b32 s{sAOFF}, s{sRG}, 15
    s_add_u32 s{sAOFF}, s{sAOFF}, {WS_X2}
    s_lshl_b32 s{sPOLL}, s{sRB}, 7
    s_add_u32 s{sPOLL}, s{sPOLL}, {WS_FLAG + 8192}""")
    def bdma(c):
        a(f"s_mov_b32 m0, s{sM0}\ns_add_u32 s{sM0}, s{sM0}, 12288")
        for j in range(3):
            a(f"buffer_load_dwordx4 v{VA}, s[{sWS}:{sWS+3}], s{sWOFF} offen offset:{1024*j} lds")
        a(f"s_add_u32 s{sWOFF}, s{sWOFF}, 12288")
    bdma(0); bdma(1)
    signal(a, name, 6)
    a(f"""v_and_b32 v{T}, 31, v{VLANE}
    v_lshrrev_b32 v{T+1}, 5, v{VLANE}
    v_lshlrev_b32 v{T+2}, 11, v{T+1}
    v_lshl_add_u32 v{T+2}, v{T}, 3, v{T+2}
    s_lshl_b32 s34, s{sRG}, 12
    s_add_u32 s34, s34, {WS_ST2}
    s_lshl_b32 s36, s{sWAVE}, 6
    v_add_u32 v{T+3}, s36, v{VLANE}
    v_lshlrev_b32 v{T+13}, 5, v{T+3}
    s_mul_i32 s35, s{sCB}, 3072
    s_add_u32 s35, s35, {WS_CSQ}
""")
    vm = VmTracker()
    for c in range(2, 8):
        bdma(c)
        for _ in range(3): vm.issue(("B", c))
    a(f"""v_mov_b32 v{VB0}, v{VA}
    v_add_u32 v{VB1}, 49152, v{VA}
    v_lshlrev_b32 v{T+3}, 2, v{T+3}
    v_add_u32 v{T+3}, {CS_OFF}, v{T+3}
    s_lshl_b32 s36, s{sWAVE}, 8
    s_add_u32 s35, s36, {ST_OFF}
    v_lshl_add_u32 v{T+4}, v{T}, 2, s35
    v_lshl_add_u32 v{T+5}, v{T+1}, 4, s35
    v_lshlrev_b32 v{T+6}, 4, v{T+1}
    v_add_u32 v{T+6}, {CS_OFF}, v{T+6}
    v_lshlrev_b32 v{T+7}, 2, v{T}
    v_add_u32 v{T+7}, {CS_OFF+256}, v{T+7}
    v_bfe_u32 v{T+10}, v{VLANE}, 4, 1
    v_lshlrev_b32 v{T+10}, 16, v{T+10}
    v_and_b32 v{T+11}, 15, v{VLANE}
    v_lshlrev_b32 v{T+11}, 4, v{T+11}
    v_lshlrev_b32 v{T+12}, 8, v{T+1}
    v_add3_u32 v{T+10}, v{T+10}, v{T+11}, v{T+12}
    v_lshrrev_b32 v{T+11}, 2, v{VLANE}
    s_lshl_b32 s37, s{sCB}, 17
    s_lshl_b32 s38, s{sRG}, 10
    s_add_u32 s37, s37, s38
    s_add_u32 s39, s37, {WS_V}
    s_add_u32 s40, s37, {WS_Q}
    s_add_u32 s41, s40, 65536
    s_add_u32 s42, s37, {WS_K}
    s_add_u32 s43, s42, 65536
    s_lshl_b32 s44, s{sCB}, 10
    s_lshl_b32 s45, s{sRG}, 3
    s_add_u32 s44, s44, s45
    s_add_u32 s44, s44, {WS_KMAX}
    s_waitcnt vmcnt(18)""")
    for g in range(4):
        a(f"ds_read_b128 v[{BQ+4*g}:{BQ+4*g+3}], v{T+6} offset:{32*g}")
        a(f"ds_read_b128 v[{BK+4*g}:{BK+4*g+3}], v{T+6} offset:{128+32*g}")
    a(f"ds_read_b32 v{T+9}, v{T+7}")
    poll(a, name)
    if not os.environ.get('FST') and not os.environ.get('HST'): stamp_mid(a, 4)
    def aload(s):
        r = AR + 4 * (s % AD)
        a(f"buffer_load_dwordx4 v[{r}:{r+3}], v{VA}, s[{sWS}:{sWS+3}], s{sAOFF} offen offset:{(s%4)*1024} sc1")
        if s % 4 == 3:
            a(f"s_add_u32 s{sAOFF}, s{sAOFF}, 4096")
        vm.issue(("A", s))
    APRE = 13
    for s in range(APRE): aload(s)
    def reads(s):
        buf = BF + (s % 3) * 12
        base = VB0 if s < 16 else VB1
        off = (s % 16) * 3072
        for t in range(3):
            a(f"ds_read_b128 v[{buf+4*t}:{buf+4*t+3}], v{base} offset:{off+1024*t}")
    a("s_waitcnt lgkmcnt(0)")
    reads(0)
    E2 = 216
    for s in range(32):
        wA = vm.wait_for({("A", s)})
        if s == 14: wA = min(wA, vm.wait_for({("S", 0)}))
        if s + 1 < 32:
            if s + 1 == 8:
                a("s_barrier")
            reads(s + 1)
            a(f"s_waitcnt vmcnt({wA}) lgkmcnt(3)")
        else:
            a(f"s_waitcnt vmcnt({wA}) lgkmcnt(0)")
        buf = BF + (s % 3) * 12
        af = AR + 4 * (s % AD)
        def C(t): return "0" if s == 0 else vr(ACC + 16 * t, 16)
        a(f"v_mfma_f32_32x32x16_bf16 {vr(ACC,16)}, {vr(buf,4)}, {vr(af,4)}, {C(0)}")
        if s + APRE < 32: aload(s + APRE)
        a(f"v_mfma_f32_32x32x16_bf16 {vr(ACC+16,16)}, {vr(buf+4,4)}, {vr(af,4)}, {C(1)}")
        if s < 4:
            for i in (2 * s, 2 * s + 1):
                a(f"buffer_load_dwordx2 v[{SR+2*i}:{SR+2*i+1}], v{T+2}, s[{sWS}:{sWS+3}], s34 offen offset:{256*i} sc1")
                vm.issue(("S", 0))
        a(f"v_mfma_f32_32x32x16_bf16 {vr(ACC+32,16)}, {vr(af,4)}, {vr(buf+8,4)}, {C(2)}")
        if s == 14:
            emit_stats_final(a, SR, BV + 8, vMEAN, vRSTD)
            a(f"""v_mul_f32 v{vNB}, v{vMEAN}, v{vRSTD}
            v_sub_f32 v{vNB}, 0, v{vNB}
            v_mul_f32 v{vRQ}, {hex(f32bits(QSCALE))}, v{vRSTD}
            ds_write_b32 v{T+4}, v{vRSTD}
            ds_write_b32 v{T+4}, v{vNB} offset:128
            v_mul_f32 v{T+8}, {hex(f32bits(QSCALE))}, v{vNB}""")
        if s == 16:
            for g in range(4):
                a(f"ds_read_b128 v[{AVv+4*g}:{AVv+4*g+3}], v{T+5} offset:{32*g}")
                a(f"ds_read_b128 v[{BV+4*g}:{BV+4*g+3}], v{T+5} offset:{128+32*g}")
        if s == 18:
            for i in range(16): a(f"v_mul_f32 v{BQ+i}, v{BQ+i}, v{T+8}")
        if s == 20:
            for i in range(16): a(f"v_mul_f32 v{BK+i}, v{BK+i}, v{vNB}")
        if s == 22:
            for i in range(16): a(f"v_mul_f32 v{BV+i}, v{BV+i}, v{T+9}")
    P = AR
    if os.environ.get("STSET"): stamp_mid(a, 3)
    a("s_nop 7\ns_nop 2")
    for i in range(16):
        a(f"v_fma_f32 v{ACC+16+i}, v{ACC+16+i}, v{vRSTD}, v{BK+i}")
    NA, NB = T + 12, T + 13
    a(f"v_mul_f32 v{NA}, v{ACC+16}, v{ACC+16}\nv_mul_f32 v{NB}, v{ACC+24}, v{ACC+24}")
    for i in range(1, 8):
        a(f"v_fmac_f32 v{NA}, v{ACC+16+i}, v{ACC+16+i}\nv_fmac_f32 v{NB}, v{ACC+24+i}, v{ACC+24+i}")
    a(f"v_mov_b32 v{T+14}, v{NA}\nv_mov_b32 v{T+15}, v{NB}")
    for i in range(8):
        a(f"v_cvt_pk_bf16_f32 v{P+i}, v{ACC+16+2*i}, v{ACC+16+2*i+1}")
    a(f"""v_permlane32_swap_b32 v{NA}, v{T+14}
    v_permlane32_swap_b32 v{NB}, v{T+15}
    buffer_store_dwordx4 v[{P}:{P+3}], v{VA}, s[{sWS}:{sWS+3}], s42 offen sc1
    buffer_store_dwordx4 v[{P+4}:{P+7}], v{VA}, s[{sWS}:{sWS+3}], s43 offen sc1
    v_add_f32 v{NA}, v{NA}, v{T+14}
    v_add_f32 v{NB}, v{NB}, v{T+15}""")
    dpps = ["quad_perm:[1,0,3,2]", "quad_perm:[2,3,0,1]", "row_half_mirror", "row_mirror"]
    for i in range(16):
        a(f"v_fma_f32 v{ACC+i}, v{ACC+i}, v{vRQ}, v{BQ+i}")
        if i % 4 == 3:
            d = dpps[i // 4]
            a(f"v_max_f32_dpp v{NA}, v{NA}, v{NA} {d} row_mask:0xf bank_mask:0xf\nv_max_f32_dpp v{NB}, v{NB}, v{NB} {d} row_mask:0xf bank_mask:0xf")
    for i in range(8):
        a(f"v_cvt_pk_bf16_f32 v{P+8+i}, v{ACC+2*i}, v{ACC+2*i+1}")
    a(f"""buffer_store_dwordx4 v[{P+8}:{P+11}], v{VA}, s[{sWS}:{sWS+3}], s40 offen sc1
    buffer_store_dwordx4 v[{P+12}:{P+15}], v{VA}, s[{sWS}:{sWS+3}], s41 offen sc1""")
    for i in range(16):
        a(f"v_fma_f32 v{ACC+32+i}, v{ACC+32+i}, v{AVv+i}, v{BV+i}")
    for i in range(8):
        a(f"v_cvt_pk_bf16_f32 v{P+16+i}, v{ACC+32+2*i}, v{ACC+32+2*i+1}")
    a(f"""buffer_store_dwordx4 v[{P+16}:{P+19}], v{T+10}, s[{sWS}:{sWS+3}], s39 offen sc1
    buffer_store_dwordx4 v[{P+20}:{P+23}], v{T+10}, s[{sWS}:{sWS+3}], s39 offen offset:512 sc1
    s_mov_b64 exec, 0x10001
    buffer_store_dword v{NA}, v{T+11}, s[{sWS}:{sWS+3}], s44 offen
    buffer_store_dword v{NB}, v{T+11}, s[{sWS}:{sWS+3}], s44 offen offset:512""")
    return LDS
```

```python
import sys
from common import *
from k_prep import gen_prep
from k_qkv import gen_qkv
from k_qkvn import gen_qkvn
from k_attn import gen_attn
from k_proj import gen_proj
from k_ffn1 import gen_ffn1

HEADER = open("interleave_layers__softmax_full_mha__glu_gated_reglu__prompt.s.ref").read().split("; Override launch")[0]

def build(launches, groups):
    lds = {}
    for code, desc, l, names in groups:
        for n in names: lds[n] = l
    out = HEADER
    for (name, grid, block) in launches:
        out += f"; @launch kernel={name} grid=({grid},1,1) block=({block},1,1) lds={lds[name]}\n"
    out += '.amdgcn_target "amdgcn-amd-amdhsa--gfx950"\n.text\n'
    for code, desc, l, names in groups:
        out += code
    out += '.section .rodata,"a"\n'
    for code, desc, l, names in groups:
        out += desc
    return out

def fused():
    from k_blk import gen_blk
    groups = []
    groups.append(gen_qkvn("qkv1_kernel") + (["qkv1_kernel"],))
    groups.append(gen_attn([("attn1_kernel", True), ("attn2_kernel", False)]) + (["attn1_kernel", "attn2_kernel"],))
    groups.append(gen_blk([("blk1_kernel", 0), ("blk2_kernel", 1)]) + (["blk1_kernel", "blk2_kernel"],))
    launches = [("qkv1_kernel", 256, 256), ("attn1_kernel", 256, 1024), ("blk1_kernel", 256, 256), ("attn2_kernel", 256, 1024), ("blk2_kernel", 256, 256)]
    return launches, groups

def full():
    groups = []
    groups.append(gen_qkvn("qkv1_kernel") + (["qkv1_kernel"],))
    groups.append(gen_qkv([("qkv2_kernel", WS_X2)]) + (["qkv2_kernel"],))
    groups.append(gen_attn([("attn1_kernel", True), ("attn2_kernel", False)]) + (["attn1_kernel", "attn2_kernel"],))
    pv = [dict(name="wo1_kernel", KS=32, a_off=WS_O, w_off=WS_WO, res='nat', out=WS_X1),
          dict(name="wo2_kernel", KS=32, a_off=WS_O, w_off=WS_WO, res=WS_X2, out=WS_X1),
          dict(name="down1_kernel", KS=112, a_off=WS_H, w_off=WS_WD, res=WS_X1, out=WS_X2),
          dict(name="down2_kernel", KS=112, a_off=WS_H, w_off=WS_WD, res=WS_X1, out='nat')]
    groups.append(gen_proj(pv) + ([v["name"] for v in pv],))
    groups.append(gen_ffn1("ffn1_kernel", WS_X1) + (["ffn1_kernel"],))
    launches = [
                ("qkv1_kernel", 256, 256), ("attn1_kernel", 256, 1024), ("wo1_kernel", 256, 256), ("ffn1_kernel", 256, 256), ("down1_kernel", 256, 256),
                ("qkv2_kernel", 256, 256), ("attn2_kernel", 256, 1024), ("wo2_kernel", 256, 256), ("ffn1_kernel", 256, 256), ("down2_kernel", 256, 256)]
    return launches, groups

if __name__ == "__main__":
    import os
    launches, groups = full() if os.environ.get('UNFUSED') else fused()
    txt = build(launches, groups)
    import os
    txt = "\n".join((l + " sc1") if ("buffer_store_dwordx4" in l and "s[76:79]" not in l and "s[20:23]" not in l and "sc1" not in l) else l for l in txt.split("\n"))
    open(sys.argv[1], "w").write(txt)
```

```python
from common import *
from k_qkv import emit_stats_final, VmTracker, QSCALE
from collections import defaultdict

VLANE = 252; VA = 253; VT = 254
sWS = 12; sWAVE = 70; sLAYER = 71; sFLG = 72; sPOLL = 73; sSPIN = 74
SC = " sc1"
PF = 76 if not STAMP else 76

def tile_stats(a, V, T, vaddr, soff):
    a(f"v_add_f32 v{T}, v{V}, v{V+1}\nv_mul_f32 v{T+1}, v{V}, v{V}")
    a(f"v_fmac_f32 v{T+1}, v{V+1}, v{V+1}")
    for i in range(2, 16):
        a(f"v_add_f32 v{T}, v{T}, v{V+i}\nv_fmac_f32 v{T+1}, v{V+i}, v{V+i}")
    a(f"""v_mov_b32 v{T+2}, v{T}
    v_mov_b32 v{T+3}, v{T+1}
    s_nop 1
    v_permlane32_swap_b32 v{T}, v{T+2}
    v_permlane32_swap_b32 v{T+1}, v{T+3}
    s_nop 1
    v_add_f32 v{T}, v{T}, v{T+2}
    v_add_f32 v{T+1}, v{T+1}, v{T+3}
    s_mov_b64 exec, 0xffffffff
    buffer_store_dwordx2 v[{T}:{T+1}], v{vaddr}, s[{sWS}:{sWS+3}], s{soff} offen sc1
    s_mov_b64 exec, -1""")

ATOM = not os.environ.get("NOATOM")
SIGOP = (f"s_and_b32 s{sFLG}, s{sFLG}, 0xffffff80\nbuffer_atomic_add v{VT+1}, v{VT}, s[{sWS}:{sWS+3}], s{sFLG} offen sc1" if ATOM else
         f"buffer_store_byte v{VT+1}, v{VT}, s[{sWS}:{sWS+3}], s{sFLG} offen sc1")
def signal(a, name, n_after):
    l = a.newlabel(name + "_sig")
    a(f"s_waitcnt vmcnt({n_after})")
    if os.environ.get("HST") and not hasattr(signal, "done"): stamp_mid(a, 2)
    a("s_barrier")
    if os.environ.get("HST") and not hasattr(signal, "done"): stamp_mid(a, 3); signal.done = 1
    a(f"""s_cmp_lg_u32 s{sWAVE}, 0
    s_cbranch_scc1 {l}
    v_mov_b32 v{VT}, 0
    v_mov_b32 v{VT+1}, 1
    s_mov_b64 exec, 1
    {SIGOP}
    s_mov_b64 exec, -1""")
    a.label(l)

def poll(a, name):
    l = a.newlabel(name + "_poll"); d = a.newlabel(name + "_pok")
    S0 = int(os.environ.get("PS0", "0")); S1 = int(os.environ.get("PS1", "2"))
    a(f"""s_cmp_lg_u32 s{sWAVE}, 0
    s_cbranch_scc1 {d}
    s_add_u32 s66, s8, s{sPOLL}
    s_addc_u32 s67, s9, 0
    s_mov_b32 s{sSPIN}, 0
    s_sleep {S0}""")
    a.label(l)
    if ATOM:
        a(f"""s_load_dword s16, s[66:67], 0 glc
        s_add_u32 s{sSPIN}, s{sSPIN}, 1
        s_waitcnt lgkmcnt(0)
        s_cmp_eq_u32 s16, 16""")
    else:
        a(f"""s_load_dwordx4 s[16:19], s[66:67], 0 glc
        s_add_u32 s{sSPIN}, s{sSPIN}, 1
        s_waitcnt lgkmcnt(0)
        s_and_b64 s[16:17], s[16:17], s[18:19]
        s_and_b32 s16, s16, s17
        s_cmp_eq_u32 s16, 0x01010101""")
    a(f"""s_cbranch_scc1 {d}
    s_sleep {S1}
    s_cmp_lt_u32 s{sSPIN}, 0x40000
    s_cbranch_scc1 {l}""")
    a.label(d)
    a("s_barrier")

CSF_OFF = 155648
CSQ_OFF = 155648 + 1024
STQ_OFF = 155648 + 2048
FMAP = int(os.environ.get("FMAP", "3")); QMAP = int(os.environ.get("QMAP", "2"))
def map16(a, lr, sRB, sCB, t):
    xr = 4 - lr
    a(f"""s_and_b32 s{t}, s2, 7
    s_lshr_b32 s{t+1}, s2, 3
    s_and_b32 s{sRB}, s{t}, {(1 << xr) - 1}
    s_lshl_b32 s{sRB}, s{sRB}, {lr}
    s_lshr_b32 s{sCB}, s{t}, {xr}
    s_lshl_b32 s{sCB}, s{sCB}, {5 - lr}
    s_and_b32 s{t}, s{t+1}, {(1 << lr) - 1}
    s_add_u32 s{sRB}, s{sRB}, s{t}
    s_lshr_b32 s{t+1}, s{t+1}, {lr}
    s_add_u32 s{sCB}, s{sCB}, s{t+1}""")
def cs_issue(a):
    map16(a, FMAP, 43, 40, 44)
    map16(a, QMAP, 43, 41, 44)
    a(f"""s_mul_i32 s40, s40, {224*64}
    s_add_u32 s40, s40, {WS_CSG}
    s_mul_i32 s41, s41, 3072
    s_add_u32 s41, s41, {WS_CSQ}
    s_lshl_b32 s42, s{sWAVE}, 6
    v_add_u32 v220, s42, v{VLANE}
    v_lshlrev_b32 v221, 6, v220""")
    for i in range(4):
        a(f"buffer_load_dwordx4 v[{196+4*i}:{199+4*i}], v221, s[{sWS}:{sWS+3}], s40 offen offset:{16*i}")
    a("v_lshlrev_b32 v221, 5, v220")
    for i in range(2):
        a(f"buffer_load_dwordx4 v[{212+4*i}:{215+4*i}], v221, s[{sWS}:{sWS+3}], s41 offen offset:{16*i}")
def cs_reduce(a):
    CP = 196
    for i in range(12): a(f"v_add_f32 v{CP+2*i}, v{CP+2*i}, v{CP+2*i+1}")
    for i in range(6): a(f"v_add_f32 v{CP+4*i}, v{CP+4*i}, v{CP+4*i+2}")
    a(f"""v_add_f32 v{CP}, v{CP}, v{CP+4}
    v_add_f32 v{CP+8}, v{CP+8}, v{CP+12}
    v_add_f32 v{CP+16}, v{CP+16}, v{CP+20}
    v_add_f32 v{CP}, v{CP}, v{CP+8}
    v_lshlrev_b32 v220, 2, v220
    v_add_u32 v220, {CSF_OFF}, v220
    ds_write_b32 v220, v{CP}
    ds_write_b32 v220, v{CP+16} offset:1024""")

class Proj:
    def __init__(self, a, name, KS, a_off, w_off, atab, btab):
        self.a = a; self.name = name; self.KS = KS; self.NCH = KS // 4; self.a_off = a_off; self.w_off = w_off
        self.vm = VmTracker()
        self.sRB, self.sCB, self.sG, self.sT, self.sRG = 50, 51, 52, 53, 54
        self.sAO, self.sW0, self.sLA, self.sLB = 55, 64, 65, 68
        self.nb = 0; self.na = 0
        self.freeA = list(atab); self.freeB = list(btab); self.addrA = {}; self.addrB = {}; self.pool = []
    def setup(self):
        a = self.a; ARG = self.KS * 1024
        a(f"""s_and_b32 s{self.sRB}, s2, 7
        s_lshr_b32 s{self.sCB}, s2, 3
        s_lshl_b32 s{self.sRB}, s{self.sRB}, 2
        s_and_b32 s69, s{self.sCB}, 3
        s_add_u32 s{self.sRB}, s{self.sRB}, s69
        s_lshr_b32 s{self.sCB}, s{self.sCB}, 2
        s_and_b32 s{self.sG}, s{sWAVE}, 1
        s_lshr_b32 s{self.sT}, s{sWAVE}, 1
        s_lshl_b32 s{self.sRG}, s{self.sRB}, 1
        s_add_u32 s{self.sRG}, s{self.sRG}, s{self.sG}
        s_mul_i32 s{self.sAO}, s{self.sRG}, {ARG}
        s_lshl_b32 s69, s{self.sT}, 11
        s_add_u32 s{self.sAO}, s{self.sAO}, s69
        s_add_u32 s{self.sAO}, s{self.sAO}, {self.a_off}
        s_lshl_b32 s{self.sLA}, s{self.sG}, 12
        s_add_u32 s{self.sLA}, s{self.sLA}, s69
        s_mul_i32 s{self.sW0}, s{self.sCB}, {2*ARG}
        s_lshl_b32 s{self.sLB}, s{sWAVE}, 11
        s_add_u32 s{self.sW0}, s{self.sW0}, s{self.sLB}
        s_add_u32 s{self.sW0}, s{self.sW0}, {self.w_off}""")
    def ldA(self, half, sc=""):
        a = self.a; c = self.na
        if half == 0:
            self.addrA[c] = self.freeA.pop(0) if self.freeA else self.pool.pop(0)
            a(f"s_add_u32 m0, s{self.sLA}, {self.addrA[c]}\ns_nop 0")
            a(f"buffer_load_dwordx4 v{VA}, s[{sWS}:{sWS+3}], s{self.sAO} offen{sc} lds")
        else:
            a(f"buffer_load_dwordx4 v{VA}, s[{sWS}:{sWS+3}], s{self.sAO} offen offset:1024{sc} lds")
            a(f"s_add_u32 s{self.sAO}, s{self.sAO}, 4096")
            self.na += 1
        self.vm.issue(("A", c))
    def ldB(self, half):
        a = self.a; c = self.nb
        if half == 0:
            self.addrB[c] = self.freeB.pop(0) if self.freeB else self.pool.pop(0)
            a(f"s_add_u32 m0, s{self.sLB}, {self.addrB[c]}\ns_nop 0")
            a(f"buffer_load_dwordx4 v{VA}, s[{sWS}:{sWS+3}], s{self.sW0} offen lds")
        else:
            a(f"buffer_load_dwordx4 v{VA}, s[{sWS}:{sWS+3}], s{self.sW0} offen offset:1024 lds")
            a(f"s_add_u32 s{self.sW0}, s{self.sW0}, 8192")
            self.nb += 1
        self.vm.issue(("B", c))
    def main(self, res_emit, sc, PA):
        a = self.a; vm = self.vm; NCH = self.NCH
        ACC = 0; FR = 96; VRA = [56, 57, 58]; VRB = [59, 60, 61]
        for c in range(PA):
            self.ldA(0, sc); self.ldA(1, sc)
            if self.nb <= c: self.ldB(0); self.ldB(1)
        if self.bahead and not getattr(self, "late", None):
            while self.freeB: self.ldB(0); self.ldB(1)
        self.pool = self.freeA + self.freeB; self.freeA = []; self.freeB = []
        a(f"""s_lshl_b32 s56, s{self.sRG}, 15
        s_lshl_b32 s57, s{self.sCB}, 12
        s_lshl_b32 s58, s{self.sT}, 11
        s_add_u32 s57, s57, s58
        s_add_u32 s57, s57, s56""")
        res_emit(); vm.issue(("R", 0)); vm.issue(("R", 0))
        a(f"""s_lshl_b32 s59, s{self.sG}, 12
        v_add_u32 v{VRA[0]}, s59, v{VA}
        v_add_u32 v{VRA[1]}, 57344, v{VRA[0]}
        v_add_u32 v{VRA[2]}, 114688, v{VRA[0]}
        s_lshl_b32 s59, s{self.sT}, 10
        v_add_u32 v{VRB[0]}, s59, v{VA}
        v_add_u32 v{VRB[1]}, 57344, v{VRB[0]}
        v_add_u32 v{VRB[2]}, 114688, v{VRB[0]}""")
        def rd(c, q):
            af = FR + 32 * (c % 2); bf = af + 16
            oa = self.addrA[c]; ob = self.addrB[c]
            a(f"ds_read_b128 v[{af+4*q}:{af+4*q+3}], v{VRA[oa//57344]} offset:{oa%57344+q*1024}")
            a(f"ds_read_b128 v[{bf+4*q}:{bf+4*q+3}], v{VRB[ob//57344]} offset:{ob%57344+q*2048}")
        def mf(c, q):
            af = FR + 32 * (c % 2); bf = af + 16
            cc = "0" if (c == 0 and q == 0) else vr(ACC, 16)
            a(f"v_mfma_f32_32x32x16_bf16 {vr(ACC,16)}, {vr(bf+4*q,4)}, {vr(af+4*q,4)}, {cc}")
        DA = self.DA; DB = self.DB
        self.cur = None
        def lds_for(k, q):
            if q % 2 == 0:
                self.cur = None
                if self.pool:
                    wantA = self.na < self.alim and self.na <= k + DA
                    wantB = self.nb < NCH and self.nb <= k + DB
                    urgentB = self.nb < NCH and self.nb <= self.na
                    if wantB and (urgentB and q == 2 or not wantA): self.cur = "B"
                    elif wantA: self.cur = "A"
                    elif wantB: self.cur = "B"
            if self.cur == "A": self.ldA(q % 2, sc)
            if self.cur == "B": self.ldB(q % 2)
        late = getattr(self, "late", None)
        if late:
            signal(a, late[0], min(63, vm.wait_for({('A',0),('B',0)})))
        else:
            a(f"s_waitcnt vmcnt({min(63, vm.wait_for({('A',0),('B',0)}))})\ns_barrier")
        self.alim = late[1] if late else NCH
        for q in range(4):
            rd(0, q); lds_for(-1, q)
        for k in range(NCH - 1):
            if late and self.na == self.alim and self.alim < NCH:
                a(f"s_waitcnt vmcnt({min(63, vm.wait_for({('A',k+1),('B',k+1)}))}) lgkmcnt(0)")
                poll(a, late[0])
                self.alim = NCH
            else:
                a(f"s_waitcnt vmcnt({min(63, vm.wait_for({('A',k+1),('B',k+1)}))})\ns_barrier")
            if k >= 1: self.pool += [self.addrA[k-1], self.addrB[k-1]]
            for q in range(4):
                a("s_waitcnt lgkmcnt(6)")
                mf(k, q); rd(k + 1, q); lds_for(k, q)
            if getattr(self, "cs_hook", False):
                if k == 3:
                    cs_issue(a)
                    for _ in range(6): vm.issue(("CS", 0))
        for q in range(4):
            a(f"s_waitcnt lgkmcnt({2*(3-q)})")
            mf(NCH - 1, q)
        a("s_barrier")
    def epilogue_common(self, vscale=None):
        a = self.a; ACC = 0; RES = 48; U = 80
        a("s_mov_b32 s47, 0xffff0000")
        for i in range(8):
            a(f"v_lshlrev_b32 v{U+2*i}, 16, v{RES+i}\nv_and_b32 v{U+2*i+1}, s47, v{RES+i}")
        for i in range(16):
            a(f"v_add_f32 v{ACC+i}, v{ACC+i}, v{U+i}" if vscale is None else f"v_fma_f32 v{ACC+i}, v{ACC+i}, v{vscale}, v{U+i}")
        for i in range(8):
            a(f"v_cvt_pk_bf16_f32 v{RES+i}, v{ACC+2*i}, v{ACC+2*i+1}")
    def store_tiled(self, out_off, st_off, phase):
        a = self.a; PK = 48; U = 80; T = 64
        a(f"""s_add_u32 s58, s57, {out_off}
        buffer_store_dwordx4 v[{PK}:{PK+3}], v{VA}, s[{sWS}:{sWS+3}], s58 offen sc1
        buffer_store_dwordx4 v[{PK+4}:{PK+7}], v{VA}, s[{sWS}:{sWS+3}], s58 offen offset:1024 sc1
        v_and_b32 v{T}, 31, v{VLANE}
        v_lshlrev_b32 v{T}, 3, v{T}
        s_lshr_b32 s58, s57, 3
        s_add_u32 s58, s58, {st_off}""")
        for i in range(8):
            a(f"v_lshlrev_b32 v{U+2*i}, 16, v{PK+i}\nv_and_b32 v{U+2*i+1}, s47, v{PK+i}")
        tile_stats(a, U, T + 2, T, 58)
        a(f"""s_lshr_b32 s58, s{self.sRB}, 1
        s_lshl_b32 s58, s58, 7
        s_and_b32 s59, s{self.sRB}, 1
        s_lshl_b32 s59, s59, 3
        s_add_u32 s59, s59, s{self.sCB}
        s_add_u32 s{sFLG}, s58, s59
        s_add_u32 s{sFLG}, s{sFLG}, {WS_FLAG + phase*4096}""")

def gen_blk(entries):
    a = Asm()
    name = entries[0][0]
    body = f"{name}_body"; end = f"{name}_end"
    code = ""
    for i, (nm, layer) in enumerate(entries):
        code += kernel_header(nm) + f"    s_mov_b32 s{sLAYER}, {layer}\n"
        if i + 1 < len(entries):
            code += f"    s_branch {body}\n"
    a.label(body)
    a(f"""s_cmp_ge_u32 s2, 256
    s_cbranch_scc1 {end}_real""")
    stamp_begin(a)
    a(f"""s_load_dwordx2 s[8:9], s[0:1], {KA_WS}
    s_load_dwordx2 s[4:5], s[0:1], {KA_OUT}
    s_load_dwordx2 s[6:7], s[0:1], {KA_X}
    v_and_b32 v{VLANE}, 63, v0
    v_lshrrev_b32 v{VT}, 6, v0
    v_lshlrev_b32 v{VA}, 4, v{VLANE}
    v_readfirstlane_b32 s{sWAVE}, v{VT}
    s_mov_b32 s14, {WS_SIZE}
    s_mov_b32 s15, 0x00020000""")
    P = Proj(a, name + "_wo", 32, WS_O, WS_WO, [16384*i for i in range(8)], [16384*i + 8192 for i in range(8)]); P.bahead = False; P.cs_hook = True; P.DA = 4; P.DB = 4
    P.setup()
    a(f"""s_waitcnt lgkmcnt(0)
    s_mov_b32 s12, s8
    s_and_b32 s13, s9, 0xffff""")
    RES = 48; T = 64
    def res_wo():
        l1 = f"{name}_rnat"; l2 = f"{name}_rdone"
        a(f"""s_cmp_eq_u32 s{sLAYER}, 0
        s_cbranch_scc1 {l1}
        s_add_u32 s58, s57, {WS_X2}
        buffer_load_dwordx4 v[{RES}:{RES+3}], v{VA}, s[{sWS}:{sWS+3}], s58 offen
        buffer_load_dwordx4 v[{RES+4}:{RES+7}], v{VA}, s[{sWS}:{sWS+3}], s58 offen offset:1024
        s_branch {l2}""")
        a.label(l1)
        a(f"""s_mov_b32 s60, s6
        s_and_b32 s61, s7, 0xffff
        s_mov_b32 s62, {2048*1024}
        s_mov_b32 s63, 0x00020000
        s_lshl_b32 s58, s{P.sCB}, 7
        s_lshl_b32 s59, s{P.sT}, 6
        s_add_u32 s58, s58, s59
        s_add_u32 s58, s58, s56
        v_and_b32 v{T}, 31, v{VLANE}
        v_lshlrev_b32 v{T}, 10, v{T}
        v_lshrrev_b32 v{T+1}, 5, v{VLANE}
        v_lshl_add_u32 v{T}, v{T+1}, 4, v{T}
        buffer_load_dwordx4 v[{RES}:{RES+3}], v{T}, s[60:63], s58 offen
        buffer_load_dwordx4 v[{RES+4}:{RES+7}], v{T}, s[60:63], s58 offen offset:32""")
        a.label(l2)
    P.main(res_wo, "", 3)
    a(f"""s_cmp_lg_u32 s{sLAYER}, 0
    s_cbranch_scc1 {name}_noswap
    v_permlane32_swap_b32 v{RES}, v{RES+2}
    v_permlane32_swap_b32 v{RES+1}, v{RES+3}
    v_permlane32_swap_b32 v{RES+4}, v{RES+6}
    v_permlane32_swap_b32 v{RES+5}, v{RES+7}
    s_nop 1""")
    a.label(f"{name}_noswap")
    P.epilogue_common()
    P.store_tiled(WS_X1, WS_ST, 0)
    if not os.environ.get("STSET") and not os.environ.get("FST"): stamp_mid(a, 0)
    lds_ffn = emit_ffn1(a, name)
    if not os.environ.get("FST") and not os.environ.get("HST"): stamp_mid(a, 2)
    D = emit_ffn1.down
    def res_dn():
        a(f"""s_add_u32 s58, s57, {WS_X1}
        buffer_load_dwordx4 v[{RES}:{RES+3}], v{VA}, s[{sWS}:{sWS+3}], s58 offen sc1
        buffer_load_dwordx4 v[{RES+4}:{RES+7}], v{VA}, s[{sWS}:{sWS+3}], s58 offen offset:1024 sc1
        v_and_b32 v{T+8}, 31, v{VLANE}
        v_lshlrev_b32 v{T+8}, 2, v{T+8}
        s_lshl_b32 s58, s{D.sRG}, 7
        s_add_u32 s58, s58, {WS_R2}
        buffer_load_dword v{T+9}, v{T+8}, s[{sWS}:{sWS+3}], s58 offen sc1""")
        D.vm.issue(("R", 0))
    D.main(res_dn, SC, 5)
    D.epilogue_common(T + 9)
    nat = f"{name}_nat"
    a(f"""s_cmp_lg_u32 s{sLAYER}, 0
    s_cbranch_scc1 {nat}""")
    D.store_tiled(WS_X2, WS_ST2, 2)
    if not os.environ.get("STSET") and not os.environ.get("FST") and not os.environ.get("HST"): stamp_mid(a, 3)
    lds_qkv = emit_qkv(a, name)
    a(f"s_branch {end}")
    a.label(nat)
    PK = 48
    a(f"""s_mov_b32 s20, s4
    s_and_b32 s21, s5, 0xffff
    s_mov_b32 s22, {2048*1024}
    s_mov_b32 s23, 0x00020000
    s_lshl_b32 s58, s{D.sCB}, 7
    s_lshl_b32 s59, s{D.sT}, 6
    s_add_u32 s58, s58, s59
    s_add_u32 s58, s58, s56
    v_and_b32 v{T}, 31, v{VLANE}
    v_lshlrev_b32 v{T}, 10, v{T}
    v_lshrrev_b32 v{T+1}, 5, v{VLANE}
    v_lshl_add_u32 v{T}, v{T+1}, 4, v{T}
    v_permlane32_swap_b32 v{PK}, v{PK+2}
    v_permlane32_swap_b32 v{PK+1}, v{PK+3}
    v_permlane32_swap_b32 v{PK+4}, v{PK+6}
    v_permlane32_swap_b32 v{PK+5}, v{PK+7}
    s_nop 1
    buffer_store_dwordx4 v[{PK}:{PK+3}], v{T}, s[20:23], s58 offen
    buffer_store_dwordx4 v[{PK+4}:{PK+7}], v{T}, s[20:23], s58 offen offset:32""")
    a.label(end)
    stamp_end(a)
    a.label(end + "_real")
    a("s_endpgm")
    desc = "".join(kernel_desc(nm, 384, accum=256) for nm, _ in entries)
    return code + a.text(), desc, max(lds_ffn, lds_qkv, 131072)

def emit_ffn1(a, name):
    NB = 9; LA = 7; NT1 = 3
    ACC = 0; BF = 112; CT = 148; SR = 180
    VB = [229, 230, 231]; T = 232
    vMEAN, vRSTD = 246, 247; NM = 248; R2 = 250
    CS_OFF = CSF_OFF
    LDS = STQ_OFF + 1024
    K = 1024
    caddr = [0, 24*K, 48*K, 72*K, 96*K, 0, 32*K, 64*K]
    cfirst = [0, 24, 48, 72, 96, 128, 160, 192]
    sRB, sCB, sRG = 24, 25, 27
    sL1, sW1, sAOFF, sW2, sL2 = 28, 29, 30, 31, 32
    map16(a, FMAP, sRB, sCB, 34)
    a(f"""s_lshl_b32 s{sRG}, s{sRB}, 2
    s_add_u32 s{sRG}, s{sRG}, s{sWAVE}
    s_mul_i32 s{sL1}, s{sWAVE}, 6144
    s_lshl_b32 s{sL2}, s{sWAVE}, 10
    s_mul_i32 s36, s{sCB}, {32*7168}
    s_add_u32 s36, s36, {WS_WGU}
    s_mul_i32 s{sW2}, s{sWAVE}, 7168
    s_lshl_b32 s{sW1}, s{sW2}, 1
    s_add_u32 s{sW2}, s{sW2}, s36
    s_add_u32 s{sW1}, s{sW1}, s36
    s_lshl_b32 s{sAOFF}, s{sRG}, 15
    s_add_u32 s{sAOFF}, s{sAOFF}, {WS_X1}
    s_lshl_b32 s{sPOLL}, s{sRB}, 7
    s_add_u32 s{sPOLL}, s{sPOLL}, {WS_FLAG}""")
    vm = VmTracker(); lg = VmTracker()
    def bdma(c, j):
        if c < 4:
            i, t = j // 3, j % 3
            a(f"s_add_u32 m0, s{sL1}, {caddr[c] + 3072*i}")
            a(f"s_add_u32 s41, s{sW1}, {(8*c + i)*7168}")
            a(f"buffer_load_dwordx4 v{VA}, s[{sWS}:{sWS+3}], s41 offen offset:{1024*t} lds")
        else:
            a(f"s_add_u32 m0, s{sL2}, {caddr[c] + 4096*j}")
            a(f"s_add_u32 s41, s{sW2}, {(c-1)*1024 + j*28672}")
            a(f"buffer_load_dwordx4 v{VA}, s[{sWS}:{sWS+3}], s41 offen lds")
        vm.issue(("B", c))
    def npieces(c): return 6 if c < 4 else 8
    def aload(s):
        a(f"buffer_load_dwordx4 a[{4*s}:{4*s+3}], v{VA}, s[{sWS}:{sWS+3}], s{sAOFF} offen offset:{(s%4)*1024} sc1")
        if s % 4 == 3:
            a(f"s_add_u32 s{sAOFF}, s{sAOFF}, 4096")
        vm.issue(("A", s))
    NP1 = int(os.environ.get("FNP1", "3"))
    NPRE = int(os.environ.get("FPRE", "4"))
    pre = [(c, j) for c in range(NP1) for j in range(6)]
    for (c, j) in pre[:NPRE]: bdma(c, j)
    signal(a, name, NPRE)
    cs_reduce(a)
    a(f"""v_and_b32 v{T}, 31, v{VLANE}
    v_lshrrev_b32 v{T+1}, 5, v{VLANE}
    v_lshlrev_b32 v{T+2}, 11, v{T+1}
    v_lshl_add_u32 v{T+2}, v{T}, 3, v{T+2}
    v_lshlrev_b32 v{T+3}, 2, v{T}
    s_lshl_b32 s34, s{sRG}, 12
    s_add_u32 s34, s34, {WS_ST}
    v_lshlrev_b32 v{T+5}, 4, v{T+1}
    v_add_u32 v{T+5}, {CS_OFF}, v{T+5}
    v_mov_b32 v{VB[0]}, v{VA}
    v_add_u32 v{VB[1]}, {48*K}, v{VA}
    v_add_u32 v{VB[2]}, {96*K}, v{VA}
    s_mul_i32 s37, s{sRG}, {112*1024}
    s_add_u32 s37, s37, {WS_H}
    s_mul_i32 s38, s{sCB}, 3072
    s_add_u32 s38, s38, s37
    s_add_u32 s38, s38, 65536
    s_lshl_b32 s43, s{sCB}, 12
    s_add_u32 s37, s37, s43
    s_lshl_b32 s40, s{sRB}, 7
    s_add_u32 s40, s40, s{sCB}
    s_add_u32 s40, s40, {WS_FLAG + 4096}
    s_lshl_b32 s39, s{sRG}, 7
    s_add_u32 s39, s39, {WS_R2}
    s_mov_b32 s42, {WS_SIZE}
    s_cmp_eq_u32 s{sCB}, 0
    s_cselect_b32 s39, s39, s42""")
    for (c, j) in pre[NPRE:]: bdma(c, j)
    a(f"s_waitcnt vmcnt({vm.wait_for({('B', 0)})}) lgkmcnt(0)")
    if os.environ.get("HST"): stamp_mid(a, 4)
    poll(a, name)
    stamp_mid(a, 1)
    a(f"s_mov_b32 s{sFLG}, s40")
    APRE = 13
    for q in range(APRE): aload(q)
    slots = [(s, t) for s in range(32) for t in range(NT1)] + [(s, t) for t in range(NT1, 7) for s in range(32)]
    NS = len(slots)
    def accof(t): return ACC + 16 * t
    def chunk_of(m): return max(c for c in range(8) if cfirst[c] <= m)
    def read(m):
        c = chunk_of(m); ad = caddr[c] + 1024 * (m - cfirst[c])
        b = BF + 4 * (m % NB)
        a(f"ds_read_b128 v[{b}:{b+3}], v{VB[ad//(48*K)]} offset:{ad % (48*K)}")
        lg.issue(("F", m))
    loadq = defaultdict(list)
    def small_st(i):
        a(f"buffer_load_dwordx2 v[{SR+2*i}:{SR+2*i+1}], v{T+2}, s[{sWS}:{sWS+3}], s34 offen offset:{256*i} sc1")
        vm.issue(("S", 0))
    for s_ in range(APRE, 32):
        loadq[(s_ - APRE) * 3 + 1].append(lambda s_=s_: aload(s_))
    x = 2
    for c in range(NP1, 4):
        for j in range(6): loadq[x].append(lambda c=c, j=j: bdma(c, j)); x += 3
    for i in range(8): loadq[x].append(lambda i=i: small_st(i)); x += 3
    x = max(x, 56)
    for j in range(8): loadq[x].append(lambda j=j: bdma(4, j)); x += 2
    for c in (5, 6, 7):
        x = max(x, cfirst[c - 2] - LA + 2)
        for j in range(8): loadq[x].append(lambda c=c, j=j: bdma(c, j)); x += 3
    btab = [128*K + 8192*i for i in range(3)] + [96*K + 8192*i for i in range(4)] + [8192*i for i in range(4)] + [32*K + 8192*i for i in range(3)]
    atab = [56*K + 8192*i for i in range(5)]
    D = Proj(a, name + "_dn", 112, WS_H, WS_WD, atab, btab); D.bahead = True; D.DA = int(os.environ.get('DDA', '6')); D.DB = int(os.environ.get('DDB', '8'))
    def dB():
        D.ldB(0); D.ldB(1); vm.issue(("DB", 0)); vm.issue(("DB", 0))
    loadq[149].append(D.setup)
    EB = int(os.environ.get("EARLYB", "11"))
    bslots = [150, 153, 156] + [160, 164, 168, 172] + [188, 192, 196, 200]
    assert x <= 150, x
    for i in range(EB): loadq[bslots[i]].append(dB)
    fillq = defaultdict(list)
    sub = Asm()
    emit_stats_final(sub, SR, T + 6, vMEAN, vRSTD)
    sub(f"""v_sub_f32 v{NM}, 0, v{vMEAN}
    v_mul_f32 v{R2}, v{vRSTD}, v{vRSTD}
    buffer_store_dword v{R2}, v{T+3}, s[{sWS}:{sWS+3}], s39 offen sc1""")
    blockA = [l.strip() for l in sub.lines]
    m0 = 66
    for i, ins in enumerate(blockA): fillq[m0 + i // 2].append((ins, None))
    endA = m0 + (len(blockA) - 1) // 2
    assert endA < 87, endA
    csreadq = defaultdict(list)
    def cs_at(slot, t, buf): csreadq[slot].append((t, CT + 16 * buf))
    busy = set()
    for t in range(NT1, 7):
        first = cfirst[t + 1]
        cs_at(first - 15, t, 0)
        for i in range(16):
            fillq[first - 9 + i // 3].append((f"v_mul_f32 v{accof(t)+i}, v{NM}, v{CT+i}", None, ("C", t)))
        for y in range(first - 9, first - 3): busy.add(y)
    def epi(t, corr):
        ac = accof(t); L = []
        if corr:
            for i in range(16): L.append((f"v_fmac_f32 v{ac+i}, v{NM}, v{CT+16+i}", t, ("C", t)))
        for i in range(8): L.append((f"v_max_f32 v{ac+i}, 0, v{ac+i}", t))
        for i in range(8): L.append((f"v_mul_f32 v{ac+i}, v{ac+i}, v{ac+8+i}", t))
        for i in range(4): L.append((f"v_cvt_pk_bf16_f32 v{ac+8+i}, v{ac+2*i}, v{ac+2*i+1}", t))
        so = 37 if t < 4 else 38
        L.append((f"buffer_store_dwordx4 v[{ac+8}:{ac+11}], v{VA}, s[{sWS}:{sWS+3}], s{so} offen offset:{(t%4)*1024} sc1", t))
        return L
    cur = 99
    FPS = int(os.environ.get("FPS", "2"))
    order = [(0, True, 99), (1, True, 99), (3, False, 132), (2, True, 99), (4, False, 164), (5, False, 196)]
    for (t, corr, earliest) in order:
        cur = max(cur, earliest)
        if corr: cs_at(cur - 5, t, 1)
        L = epi(t, corr)
        i = 0
        while i < len(L):
            if cur in busy: cur += 1; continue
            for it in L[i:i+FPS]: fillq[cur].append(it)
            i += FPS; cur += 1
    assert cur <= NS, cur
    tail = epi(6, False)
    for m in range(LA): read(m)
    last_mfma_pos = {}
    def pos(): return len(a.lines)
    seen = set()
    def emit_fill(item):
        ins = item[0]; tile = item[1]
        if len(item) > 2:
            n = lg.wait_for({item[2]})
            if n < 15 and ("w", item[2]) not in seen:
                a(f"s_waitcnt lgkmcnt({n})"); seen.add(("w", item[2]))
        if tile is not None:
            d = pos() - last_mfma_pos[tile]
            if d < 13:
                a(f"s_nop {13 - d - 1}")
        a(ins)
        if "buffer_store" in ins: vm.issue(("ST", tile if tile is not None else 0))
    for m, (s, t) in enumerate(slots):
        need = set()
        if s not in seen:
            seen.add(s); need.add(("A", s))
        if m == m0: need.add(("S", 0))
        w = ""
        if m % 2 == 0:
            tags = {("F", m)} | ({("F", m + 1)} if m + 1 < NS else set())
            w = f"lgkmcnt({min(15, lg.wait_for(tags))})"
        if need: w = f"vmcnt({min(63, vm.wait_for(need))}) " + w
        if w: a(f"s_waitcnt {w}")
        cc = "0" if (s == 0 and t < NT1) else vr(accof(t), 16)
        a(f"v_mfma_f32_32x32x16_bf16 {vr(accof(t),16)}, {vr(BF+4*(m%NB),4)}, a[{4*s}:{4*s+3}], {cc}")
        last_mfma_pos[t] = pos() - 1
        if os.environ.get("FST") and m in (0, 64, 128, 192): stamp_mid(a, {0: 0, 64: 2, 128: 3, 192: 4}[m])
        for f in loadq[m]: f()
        for item in fillq[m]: emit_fill(item)
        if m + LA < NS:
            if (m + LA) in cfirst:
                cn = cfirst.index(m + LA)
                tags = {('B', cn)}
                if cn == 7:
                    tags |= {("ST", 0), ("ST", 1), ("ST", 2), ("ST", 3)}
                    assert all(tg in vm.ops for tg in tags) and vm.ops.count(("ST", 0)) == 2
                a(f"s_waitcnt vmcnt({min(63, vm.wait_for(tags))})\ns_barrier")
                if cn == 7:
                    l = a.newlabel(name + "_es")
                    a(f"""s_cmp_lg_u32 s{sWAVE}, 0
                    s_cbranch_scc1 {l}
                    v_mov_b32 v{VT}, 0
                    v_mov_b32 v{VT+1}, 1
                    s_and_b32 s43, s{sFLG}, 0xffffff80
                    s_add_u32 s43, s43, 8192
                    s_mov_b64 exec, 1
                    buffer_atomic_add v{VT+1}, v{VT}, s[{sWS}:{sWS+3}], s43 offen sc1
                    s_mov_b64 exec, -1""")
                    a.label(l)
            read(m + LA)
        else:
            a("s_nop 0")
        for (tt, cb) in csreadq[m]:
            for g in range(4):
                a(f"ds_read_b128 v[{cb+4*g}:{cb+4*g+3}], v{T+5} offset:{128*tt+32*g}")
                lg.issue(("C", tt))
    if os.environ.get("STSET"): stamp_mid(a, 0)
    a("s_barrier")
    for item in tail: emit_fill(item)
    a(f"""s_lshr_b32 s{sPOLL}, s{D.sRB}, 1
    s_lshl_b32 s{sPOLL}, s{sPOLL}, 7
    s_add_u32 s{sPOLL}, s{sPOLL}, {WS_FLAG + 3*4096}""")
    poll(a, name)
    a(f"s_sub_u32 s{sPOLL}, s{sPOLL}, 8192")
    D.late = (name, 16)
    emit_ffn1.down = D
    return LDS

def emit_qkv(a, name):
    ACC = 0; BF = 48; BQ = 84; BK = 100; AVv = 116; BV = 132
    AR = 148; AD = 20
    SR = AVv; CP = BV; VB0 = 230; VB1 = 231; T = 232
    vMEAN, vRSTD, vNB, vRQ = 248, 249, 250, 251
    CS_OFF = CSQ_OFF; ST_OFF = STQ_OFF
    LDS = ST_OFF + 1024
    sRB, sCB, sRG = 24, 25, 27
    sM0, sWOFF, sAOFF = 30, 31, 32
    map16(a, QMAP, sRB, sCB, 34)
    a(f"""s_lshl_b32 s{sRG}, s{sRB}, 2
    s_add_u32 s{sRG}, s{sRG}, s{sWAVE}
    s_mul_i32 s{sM0}, s{sWAVE}, 3072
    s_mul_i32 s{sWOFF}, s{sCB}, 98304
    s_add_u32 s{sWOFF}, s{sWOFF}, s{sM0}
    s_add_u32 s{sWOFF}, s{sWOFF}, {WS_WQKV}
    s_lshl_b32 s{sAOFF}, s{sRG}, 15
    s_add_u32 s{sAOFF}, s{sAOFF}, {WS_X2}
    s_lshl_b32 s{sPOLL}, s{sRB}, 7
    s_add_u32 s{sPOLL}, s{sPOLL}, {WS_FLAG + 8192}""")
    def bdma(c):
        a(f"s_mov_b32 m0, s{sM0}\ns_add_u32 s{sM0}, s{sM0}, 12288")
        for j in range(3):
            a(f"buffer_load_dwordx4 v{VA}, s[{sWS}:{sWS+3}], s{sWOFF} offen offset:{1024*j} lds")
        a(f"s_add_u32 s{sWOFF}, s{sWOFF}, 12288")
    bdma(0); bdma(1)
    signal(a, name, 6)
    a(f"""v_and_b32 v{T}, 31, v{VLANE}
    v_lshrrev_b32 v{T+1}, 5, v{VLANE}
    v_lshlrev_b32 v{T+2}, 11, v{T+1}
    v_lshl_add_u32 v{T+2}, v{T}, 3, v{T+2}
    s_lshl_b32 s34, s{sRG}, 12
    s_add_u32 s34, s34, {WS_ST2}
    s_lshl_b32 s36, s{sWAVE}, 6
    v_add_u32 v{T+3}, s36, v{VLANE}
    v_lshlrev_b32 v{T+13}, 5, v{T+3}
    s_mul_i32 s35, s{sCB}, 3072
    s_add_u32 s35, s35, {WS_CSQ}
""")
    vm = VmTracker()
    for c in range(2, 8):
        bdma(c)
        for _ in range(3): vm.issue(("B", c))
    a(f"""v_mov_b32 v{VB0}, v{VA}
    v_add_u32 v{VB1}, 49152, v{VA}
    v_lshlrev_b32 v{T+3}, 2, v{T+3}
    v_add_u32 v{T+3}, {CS_OFF}, v{T+3}
    s_lshl_b32 s36, s{sWAVE}, 8
    s_add_u32 s35, s36, {ST_OFF}
    v_lshl_add_u32 v{T+4}, v{T}, 2, s35
    v_lshl_add_u32 v{T+5}, v{T+1}, 4, s35
    v_lshlrev_b32 v{T+6}, 4, v{T+1}
    v_add_u32 v{T+6}, {CS_OFF}, v{T+6}
    v_lshlrev_b32 v{T+7}, 2, v{T}
    v_add_u32 v{T+7}, {CS_OFF+256}, v{T+7}
    v_bfe_u32 v{T+10}, v{VLANE}, 4, 1
    v_lshlrev_b32 v{T+10}, 16, v{T+10}
    v_and_b32 v{T+11}, 15, v{VLANE}
    v_lshlrev_b32 v{T+11}, 4, v{T+11}
    v_lshlrev_b32 v{T+12}, 8, v{T+1}
    v_add3_u32 v{T+10}, v{T+10}, v{T+11}, v{T+12}
    v_lshrrev_b32 v{T+11}, 2, v{VLANE}
    s_lshl_b32 s37, s{sCB}, 17
    s_lshl_b32 s38, s{sRG}, 10
    s_add_u32 s37, s37, s38
    s_add_u32 s39, s37, {WS_V}
    s_add_u32 s40, s37, {WS_Q}
    s_add_u32 s41, s40, 65536
    s_add_u32 s42, s37, {WS_K}
    s_add_u32 s43, s42, 65536
    s_lshl_b32 s44, s{sCB}, 10
    s_lshl_b32 s45, s{sRG}, 3
    s_add_u32 s44, s44, s45
    s_add_u32 s44, s44, {WS_KMAX}
    s_waitcnt vmcnt(18)""")
    for g in range(4):
        a(f"ds_read_b128 v[{BQ+4*g}:{BQ+4*g+3}], v{T+6} offset:{32*g}")
        a(f"ds_read_b128 v[{BK+4*g}:{BK+4*g+3}], v{T+6} offset:{128+32*g}")
    a(f"ds_read_b32 v{T+9}, v{T+7}")
    poll(a, name)
    if not os.environ.get('FST') and not os.environ.get('HST'): stamp_mid(a, 4)
    def aload(s):
        r = AR + 4 * (s % AD)
        a(f"buffer_load_dwordx4 v[{r}:{r+3}], v{VA}, s[{sWS}:{sWS+3}], s{sAOFF} offen offset:{(s%4)*1024} sc1")
        if s % 4 == 3:
            a(f"s_add_u32 s{sAOFF}, s{sAOFF}, 4096")
        vm.issue(("A", s))
    APRE = 13
    for s in range(APRE): aload(s)
    def reads(s):
        buf = BF + (s % 3) * 12
        base = VB0 if s < 16 else VB1
        off = (s % 16) * 3072
        for t in range(3):
            a(f"ds_read_b128 v[{buf+4*t}:{buf+4*t+3}], v{base} offset:{off+1024*t}")
    a("s_waitcnt lgkmcnt(0)")
    reads(0)
    E2 = 216
    for s in range(32):
        wA = vm.wait_for({("A", s)})
        if s == 14: wA = min(wA, vm.wait_for({("S", 0)}))
        if s + 1 < 32:
            if s + 1 == 8:
                a("s_barrier")
            reads(s + 1)
            a(f"s_waitcnt vmcnt({wA}) lgkmcnt(3)")
        else:
            a(f"s_waitcnt vmcnt({wA}) lgkmcnt(0)")
        buf = BF + (s % 3) * 12
        af = AR + 4 * (s % AD)
        def C(t): return "0" if s == 0 else vr(ACC + 16 * t, 16)
        a(f"v_mfma_f32_32x32x16_bf16 {vr(ACC,16)}, {vr(buf,4)}, {vr(af,4)}, {C(0)}")
        if s + APRE < 32: aload(s + APRE)
        a(f"v_mfma_f32_32x32x16_bf16 {vr(ACC+16,16)}, {vr(buf+4,4)}, {vr(af,4)}, {C(1)}")
        if s < 4:
            for i in (2 * s, 2 * s + 1):
                a(f"buffer_load_dwordx2 v[{SR+2*i}:{SR+2*i+1}], v{T+2}, s[{sWS}:{sWS+3}], s34 offen offset:{256*i} sc1")
                vm.issue(("S", 0))
        a(f"v_mfma_f32_32x32x16_bf16 {vr(ACC+32,16)}, {vr(af,4)}, {vr(buf+8,4)}, {C(2)}")
        if s == 14:
            emit_stats_final(a, SR, BV + 8, vMEAN, vRSTD)
            a(f"""v_mul_f32 v{vNB}, v{vMEAN}, v{vRSTD}
            v_sub_f32 v{vNB}, 0, v{vNB}
            v_mul_f32 v{vRQ}, {hex(f32bits(QSCALE))}, v{vRSTD}
            ds_write_b32 v{T+4}, v{vRSTD}
            ds_write_b32 v{T+4}, v{vNB} offset:128
            v_mul_f32 v{T+8}, {hex(f32bits(QSCALE))}, v{vNB}""")
        if s == 16:
            for g in range(4):
                a(f"ds_read_b128 v[{AVv+4*g}:{AVv+4*g+3}], v{T+5} offset:{32*g}")
                a(f"ds_read_b128 v[{BV+4*g}:{BV+4*g+3}], v{T+5} offset:{128+32*g}")
        if s == 18:
            for i in range(16): a(f"v_mul_f32 v{BQ+i}, v{BQ+i}, v{T+8}")
        if s == 20:
            for i in range(16): a(f"v_mul_f32 v{BK+i}, v{BK+i}, v{vNB}")
        if s == 22:
            for i in range(16): a(f"v_mul_f32 v{BV+i}, v{BV+i}, v{T+9}")
    P = AR
    if os.environ.get("STSET"): stamp_mid(a, 3)
    a("s_nop 7\ns_nop 2")
    for i in range(16):
        a(f"v_fma_f32 v{ACC+16+i}, v{ACC+16+i}, v{vRSTD}, v{BK+i}")
    NA, NB = T + 12, T + 13
    a(f"v_mul_f32 v{NA}, v{ACC+16}, v{ACC+16}\nv_mul_f32 v{NB}, v{ACC+24}, v{ACC+24}")
    for i in range(1, 8):
        a(f"v_fmac_f32 v{NA}, v{ACC+16+i}, v{ACC+16+i}\nv_fmac_f32 v{NB}, v{ACC+24+i}, v{ACC+24+i}")
    a(f"v_mov_b32 v{T+14}, v{NA}\nv_mov_b32 v{T+15}, v{NB}")
    for i in range(8):
        a(f"v_cvt_pk_bf16_f32 v{P+i}, v{ACC+16+2*i}, v{ACC+16+2*i+1}")
    a(f"""v_permlane32_swap_b32 v{NA}, v{T+14}
    v_permlane32_swap_b32 v{NB}, v{T+15}
    buffer_store_dwordx4 v[{P}:{P+3}], v{VA}, s[{sWS}:{sWS+3}], s42 offen sc1
    buffer_store_dwordx4 v[{P+4}:{P+7}], v{VA}, s[{sWS}:{sWS+3}], s43 offen sc1
    v_add_f32 v{NA}, v{NA}, v{T+14}
    v_add_f32 v{NB}, v{NB}, v{T+15}""")
    dpps = ["quad_perm:[1,0,3,2]", "quad_perm:[2,3,0,1]", "row_half_mirror", "row_mirror"]
    for i in range(16):
        a(f"v_fma_f32 v{ACC+i}, v{ACC+i}, v{vRQ}, v{BQ+i}")
        if i % 4 == 3:
            d = dpps[i // 4]
            a(f"v_max_f32_dpp v{NA}, v{NA}, v{NA} {d} row_mask:0xf bank_mask:0xf\nv_max_f32_dpp v{NB}, v{NB}, v{NB} {d} row_mask:0xf bank_mask:0xf")
    for i in range(8):
        a(f"v_cvt_pk_bf16_f32 v{P+8+i}, v{ACC+2*i}, v{ACC+2*i+1}")
    a(f"""buffer_store_dwordx4 v[{P+8}:{P+11}], v{VA}, s[{sWS}:{sWS+3}], s40 offen sc1
    buffer_store_dwordx4 v[{P+12}:{P+15}], v{VA}, s[{sWS}:{sWS+3}], s41 offen sc1""")
    for i in range(16):
        a(f"v_fma_f32 v{ACC+32+i}, v{ACC+32+i}, v{AVv+i}, v{BV+i}")
    for i in range(8):
        a(f"v_cvt_pk_bf16_f32 v{P+16+i}, v{ACC+32+2*i}, v{ACC+32+2*i+1}")
    a(f"""buffer_store_dwordx4 v[{P+16}:{P+19}], v{T+10}, s[{sWS}:{sWS+3}], s39 offen sc1
    buffer_store_dwordx4 v[{P+20}:{P+23}], v{T+10}, s[{sWS}:{sWS+3}], s39 offen offset:512 sc1
    s_mov_b64 exec, 0x10001
    buffer_store_dword v{NA}, v{T+11}, s[{sWS}:{sWS+3}], s44 offen
    buffer_store_dword v{NB}, v{T+11}, s[{sWS}:{sWS+3}], s44 offen offset:512""")
    return LDS
```

```python
from common import *

def emit_tile_stats(a, V, T, vaddr, srd, soff):
    a(f"v_add_f32 v{T}, v{V}, v{V+1}\nv_mul_f32 v{T+1}, v{V}, v{V}")
    a(f"v_fmac_f32 v{T+1}, v{V+1}, v{V+1}")
    for i in range(2, 16):
        a(f"v_add_f32 v{T}, v{T}, v{V+i}\nv_fmac_f32 v{T+1}, v{V+i}, v{V+i}")
    a(f"""v_mov_b32 v{T+2}, v{T}
    v_mov_b32 v{T+3}, v{T+1}
    s_nop 1
    v_permlane32_swap_b32 v{T}, v{T+2}
    v_permlane32_swap_b32 v{T+1}, v{T+3}
    s_nop 1
    v_add_f32 v{T}, v{T}, v{T+2}
    v_add_f32 v{T+1}, v{T+1}, v{T+3}
    s_mov_b64 exec, 0xffffffff
    buffer_store_dwordx2 v[{T}:{T+1}], v{vaddr}, s[{srd}:{srd+3}], s{soff} offen
    s_mov_b64 exec, -1""")

def emit_wunits(a, name, end, VLANE, T, VA, F, sWS, sU):
    sW, sW2 = 16, 20
    lgu = f"{name}_gu"; lq = f"{name}_q"; lgo = f"{name}_go"
    a(f"""v_lshrrev_b32 v{T}, 3, v{VLANE}
    v_and_b32 v{T+1}, 7, v{VLANE}
    v_bfe_u32 v{T+2}, v{VLANE}, 4, 1
    v_lshlrev_b32 v{T+2}, 2, v{T+2}
    v_xor_b32 v{T+1}, v{T+1}, v{T+2}
    v_lshlrev_b32 v{T+1}, 4, v{T+1}
    v_lshrrev_b32 v{T+3}, 5, v{VLANE}
    v_lshlrev_b32 v{T+3}, 2, v{T+3}
    v_bfe_u32 v{T+4}, v{VLANE}, 2, 2
    v_add_u32 v{T+3}, v{T+3}, v{T+4}
    v_lshlrev_b32 v{T+3}, 7, v{T+3}
    v_and_b32 v{T+5}, 3, v{VLANE}
    v_lshlrev_b32 v{T+5}, 3, v{T+5}
    v_bfe_u32 v{T+6}, v{VLANE}, 3, 1
    v_lshlrev_b32 v{T+6}, 6, v{T+6}
    v_bfe_u32 v{T+4}, v{VLANE}, 4, 1
    v_add3_u32 v{T+3}, v{T+3}, v{T+5}, s34
    s_cmp_lt_u32 s{sU}, 448
    s_cbranch_scc1 {lgu}
    s_cmp_lt_u32 s{sU}, 640
    s_cbranch_scc1 {lq}""")
    a(f"""s_mov_b32 s18, {1792*1024}
    s_mov_b32 s42, 704
    s_mov_b32 s43, {112*2048}
    s_mov_b32 s44, {WS_WD}
    s_cmp_lt_u32 s{sU}, 704
    s_cselect_b32 s16, s60, s62
    s_cselect_b32 s17, s61, s63
    s_cselect_b32 s18, {512*1024}, s18
    s_cselect_b32 s42, 640, s42
    s_cselect_b32 s43, {32*2048}, s43
    s_cselect_b32 s44, {WS_WO}, s44
    s_and_b32 s17, s17, 0xffff
    s_mov_b32 s19, 0x00020000
    s_sub_u32 s42, s{sU}, s42
    s_lshr_b32 s35, s42, 3
    s_and_b32 s36, s42, 7
    s_mov_b32 s45, 1024
    s_mul_i32 s40, s36, s43
    s_lshl_b32 s41, s35, 13
    s_add_u32 s40, s40, s41
    s_add_u32 s40, s40, s44
    s_mov_b32 s46, 1024
    s_mov_b32 s47, 2048
    s_mov_b32 s48, {WS_DUMMY}
    s_branch {lgo}""")
    a.label(lq)
    make_srd(a, sW, 6, 512 * 1536 * 2)
    a(f"""s_sub_u32 s42, s{sU}, 448
    s_mul_i32 s35, s42, 2731
    s_lshr_b32 s35, s35, 16
    s_mul_i32 s36, s35, 24
    s_sub_u32 s36, s42, s36
    s_mov_b32 s45, 3072
    s_lshr_b32 s38, s36, 3
    s_and_b32 s39, s36, 7
    s_mul_i32 s40, s39, {2*32*3*1024}
    s_mul_i32 s41, s35, {4*3*1024}
    s_add_u32 s40, s40, s41
    s_lshl_b32 s41, s38, 10
    s_add_u32 s40, s40, s41
    s_add_u32 s40, s40, {WS_WQKV}
    s_mov_b32 s46, {32*3*1024}
    s_mov_b32 s47, 3072
    s_lshl_b32 s48, s35, 2
    s_mul_i32 s41, s39, {2*96*32}
    s_add_u32 s48, s48, s41
    s_lshl_b32 s41, s38, 10
    s_add_u32 s48, s48, s41
    s_add_u32 s48, s48, {WS_CSQ}""")
    a.label(lgo)
    a(f"""v_mul_lo_u32 v{T}, v{T}, s45
    v_add_u32 v{T}, v{T}, v{T+1}
    s_lshl_b32 s49, s45, 6
    s_mul_i32 s37, s35, s49
    s_lshl_b32 s38, s36, 7
    s_add_u32 s37, s37, s38
    s_lshl_b32 s49, s45, 3""")
    for j in range(8):
        a(f"""s_add_u32 m0, s34, {1024*j}
        s_nop 0
        buffer_load_dwordx4 v{T}, s[{sW}:{sW+3}], s37 offen lds
        s_add_u32 s37, s37, s49""")
    a(f"""v_lshlrev_b32 v{T+4}, 5, v{T+4}
    v_add_u32 v{T+4}, v{T+4}, v{T+6}
    v_add_u32 v{T+5}, v{T+3}, v{T+4}
    v_xor_b32 v{T+4}, 64, v{T+4}
    v_add_u32 v{T+6}, v{T+3}, v{T+4}
    v_mov_b32 v{F+32}, 0
    v_mov_b32 v{F+33}, 0
    s_mov_b32 s50, s40
    s_add_u32 s51, s50, s47
    s_add_u32 s52, s51, s47
    s_add_u32 s53, s52, s47
    s_cmp_lt_u32 s{sU}, 704
    s_cbranch_scc1 {name}_nowd
    s_mul_i32 s54, s36, {112*2048}
    s_add_u32 s54, s54, {WS_WD}""")
    for q in range(4):
        a(f"""s_lshl_b32 s55, s35, 2
        s_add_u32 s55, s55, {q}
        s_mul_i32 s56, s55, 9363
        s_lshr_b32 s56, s56, 16
        s_mul_i32 s57, s56, 7
        s_sub_u32 s55, s55, s57
        s_lshl_b32 s57, s56, 2
        s_add_u32 s57, s57, s55
        s_mul_i32 s56, s56, 3
        s_add_u32 s56, s56, s55
        s_add_u32 s56, s56, 60
        s_cmp_lt_u32 s55, 4
        s_cselect_b32 s57, s57, s56
        s_lshl_b32 s57, s57, 11
        s_add_u32 s{50+q}, s54, s57""")
    a.label(f"{name}_nowd")
    a("s_waitcnt vmcnt(0)")
    for q in range(4):
        for t in range(2):
            r = F + 8 * q + 4 * t
            a(f"ds_read_b64_tr_b16 v[{r}:{r+1}], v{T+5+t} offset:{q*2048}")
            a(f"ds_read_b64_tr_b16 v[{r+2}:{r+3}], v{T+5+t} offset:{q*2048+1024}")
    a("s_waitcnt lgkmcnt(0)")
    for q in range(4):
        for t in range(2):
            r = F + 8 * q + 4 * t
            a(f"buffer_store_dwordx4 v[{r}:{r+3}], v{VA}, s[{sWS}:{sWS+3}], s{50+q} offen")
            for i in range(4):
                a(f"v_dot2c_f32_bf16 v{F+32+t}, s33, v{r+i}")
            a(f"s_add_u32 s{50+q}, s{50+q}, s46")
    a(f"""s_cmp_ge_u32 s{sU}, 640
    s_cbranch_scc1 {end}
    s_nop 1
    v_mov_b32 v{F+34}, v{F+32}
    v_mov_b32 v{F+35}, v{F+33}
    s_nop 1
    v_permlane32_swap_b32 v{F+32}, v{F+34}
    v_permlane32_swap_b32 v{F+33}, v{F+35}
    s_nop 1
    v_add_f32 v{F+32}, v{F+32}, v{F+34}
    v_add_f32 v{F+33}, v{F+33}, v{F+35}
    v_lshlrev_b32 v{T}, 5, v{VLANE}
    s_mov_b64 exec, 0xffffffff
    buffer_store_dword v{F+32}, v{T}, s[{sWS}:{sWS+3}], s48 offen
    buffer_store_dword v{F+33}, v{T}, s[{sWS}:{sWS+3}], s48 offen offset:3072
    s_branch {end}""")
    a.label(lgu)
    make_srd(a, sW, 28, 512 * 1792 * 2)
    make_srd(a, sW2, 30, 512 * 1792 * 2)
    a(f"""s_mov_b32 s42, s{sU}
    s_mul_i32 s35, s42, 2341
    s_lshr_b32 s35, s35, 16
    s_mul_i32 s36, s35, 28
    s_sub_u32 s36, s42, s36
    v_mul_u32_u24 v{T}, 3584, v{T}
    v_add_u32 v{T}, v{T}, v{T+1}
    s_mul_i32 s37, s35, {32*3584}
    s_lshl_b32 s38, s36, 7
    s_add_u32 s37, s37, s38""")
    for j in range(4):
        a(f"""s_add_u32 m0, s34, {1024*j}
        s_nop 0
        buffer_load_dwordx4 v{T}, s[{sW}:{sW+3}], s37 offen lds
        s_add_u32 m0, s34, {4096+1024*j}
        s_nop 0
        buffer_load_dwordx4 v{T}, s[{sW2}:{sW2+3}], s37 offen lds
        s_add_u32 s37, s37, {8*3584}""")
    a(f"""v_lshlrev_b32 v{T+4}, 12, v{T+4}
    v_add3_u32 v{T+5}, v{T+3}, v{T+4}, v{T+6}
    v_xor_b32 v{T+6}, 64, v{T+6}
    v_add3_u32 v{T+6}, v{T+3}, v{T+4}, v{T+6}""")
    for i in range(4):
        a(f"v_mov_b32 v{F+32+i}, 0")
    for i in range(4):
        a(f"""s_lshl_b32 s43, s36, 2
        s_add_u32 s43, s43, {i}
        s_mul_i32 s44, s43, 9363
        s_lshr_b32 s44, s44, 16
        s_mul_i32 s45, s44, 7
        s_sub_u32 s45, s43, s45
        s_mul_i32 s{46+i}, s44, {32*7*1024}
        s_lshl_b32 s54, s45, 10
        s_add_u32 s{46+i}, s{46+i}, s54
        s_mul_i32 s54, s35, {2*7*1024}
        s_add_u32 s{46+i}, s{46+i}, s54
        s_add_u32 s{46+i}, s{46+i}, {WS_WGU}
        s_add_u32 s{56+i}, s{46+i}, 7168""")
    a(f"""s_lshl_b32 s50, s35, 2
    s_lshl_b32 s51, s36, 13
    s_add_u32 s50, s50, s51
    s_add_u32 s50, s50, {WS_CSG}
    s_add_u32 s51, s50, 4096
    s_waitcnt vmcnt(0)""")
    for q in range(2):
        for i in range(4):
            r = F + 16 * q + 4 * i
            base = T + 5 + (i >> 1)
            off = q * 2048 + (i & 1) * 32
            a(f"ds_read_b64_tr_b16 v[{r}:{r+1}], v{base} offset:{off}")
            a(f"ds_read_b64_tr_b16 v[{r+2}:{r+3}], v{base} offset:{off+1024}")
    a("s_waitcnt lgkmcnt(0)")
    for q in range(2):
        for i in range(4):
            r = F + 16 * q + 4 * i
            a(f"buffer_store_dwordx4 v[{r}:{r+3}], v{VA}, s[{sWS}:{sWS+3}], s{(46 if q == 0 else 56)+i} offen")
            for e in range(4):
                a(f"v_dot2c_f32_bf16 v{F+32+i}, s33, v{r+e}")
    a("s_nop 2")
    for i in range(4):
        a(f"v_mov_b32 v{F+36+i}, v{F+32+i}")
    a("s_nop 1")
    for i in range(4):
        a(f"v_permlane32_swap_b32 v{F+32+i}, v{F+36+i}")
    a("s_nop 1")
    for i in range(4):
        a(f"v_add_f32 v{F+32+i}, v{F+32+i}, v{F+36+i}")
    a(f"v_lshlrev_b32 v{T}, 6, v{VLANE}\ns_mov_b64 exec, 0xffffffff")
    for i in range(4):
        a(f"buffer_store_dword v{F+32+i}, v{T}, s[{sWS}:{sWS+3}], s{50+(i>>1)} offen offset:{2048*(i&1)}")
    a(f"s_branch {end}")

STM = os.environ.get('STM', '')
def gen_prep(name):
    a = Asm()
    VLANE = 1; T = 2; VA = 10; F = 16
    sWS, sW, sW2 = 12, 16, 20
    sWAVE, sU = 24, 25
    end = f"{name}_end"
    a(f"""s_cmp_ge_u32 s2, 256
    s_cbranch_scc1 {end}_real""")
    stamp_begin(a)
    a(f"""s_load_dwordx4 s[4:7], s[0:1], {KA_X}
    s_load_dwordx4 s[28:31], s[0:1], {KA_WG}
    s_load_dwordx2 s[8:9], s[0:1], {KA_WS}
    s_load_dwordx2 s[60:61], s[0:1], {KA_WO}
    s_load_dwordx2 s[62:63], s[0:1], {KA_WD}
    v_and_b32 v{VLANE}, 63, v0
    v_lshrrev_b32 v{T}, 6, v0
    v_lshlrev_b32 v{VA}, 4, v{VLANE}
    v_readfirstlane_b32 s{sWAVE}, v{T}
    s_mov_b32 s33, 0x3f803f80
    s_add_u32 s{sU}, s2, 448
    s_mov_b32 s34, 0
    s_waitcnt lgkmcnt(0)""")
    make_srd(a, sWS, 8, WS_SIZE)
    lx = f"{name}_x"; lgu = f"{name}_gu"; lq = f"{name}_q"; lwo = f"{name}_wo"; lgo = f"{name}_go"
    a(f"""s_cmp_lg_u32 s{sWAVE}, 0
    s_cbranch_scc1 {lx}
    s_cmp_ge_u32 s{sU}, 640
    s_cbranch_scc1 {end}""")
    emit_wunits(a, name, end, VLANE, T, VA, F, sWS, sU)
    a.label(lx)
    make_srd(a, sW, 4, 2048 * 1024)
    a(f"""s_lshl_b32 s35, s2, 2
    s_add_u32 s35, s35, s{sWAVE}
    s_sub_u32 s35, s35, 1
    s_lshr_b32 s36, s35, 4
    s_and_b32 s37, s35, 15
    v_and_b32 v{T}, 31, v{VLANE}
    v_lshlrev_b32 v{T+1}, 10, v{T}
    v_lshrrev_b32 v{T+2}, 5, v{VLANE}
    v_lshl_add_u32 v{T+1}, v{T+2}, 4, v{T+1}
    s_lshl_b32 s38, s36, 15
    s_lshl_b32 s39, s37, 6
    s_add_u32 s39, s39, s38
    buffer_load_dwordx4 v[{F}:{F+3}], v{T+1}, s[{sW}:{sW+3}], s39 offen
    buffer_load_dwordx4 v[{F+4}:{F+7}], v{T+1}, s[{sW}:{sW+3}], s39 offen offset:32
    s_lshl_b32 s40, s37, 11
    s_add_u32 s40, s40, s38
    s_add_u32 s40, s40, {WS_X0}
    s_lshl_b32 s41, s35, 8
    s_add_u32 s41, s41, {WS_ST}
    v_lshlrev_b32 v{T+3}, 3, v{T}
    s_mov_b32 s42, 0xffff0000
    s_waitcnt vmcnt(0)
    v_permlane32_swap_b32 v{F}, v{F+2}
    v_permlane32_swap_b32 v{F+1}, v{F+3}
    v_permlane32_swap_b32 v{F+4}, v{F+6}
    v_permlane32_swap_b32 v{F+5}, v{F+7}
    s_nop 1
    buffer_store_dwordx4 v[{F}:{F+3}], v{VA}, s[{sWS}:{sWS+3}], s40 offen
    buffer_store_dwordx4 v[{F+4}:{F+7}], v{VA}, s[{sWS}:{sWS+3}], s40 offen offset:1024""")
    U = F + 8
    for i in range(8):
        a(f"v_lshlrev_b32 v{U+2*i}, 16, v{F+i}\nv_and_b32 v{U+2*i+1}, s42, v{F+i}")
    emit_tile_stats(a, U, T + 4, T + 3, sWS, 41)
    a.lines = [(l + ' ' + STM) if 'buffer_store' in l else l for l in a.lines]
    a.label(end)
    stamp_end(a)
    a.label(end + "_real")
    a("s_endpgm")
    return kernel_header(name) + a.text(), kernel_desc(name, 64), 8192
```

```python
from common import *
import math

QSCALE = 0.25 * math.log2(math.e)

class VmTracker:
    def __init__(self): self.ops = []
    def issue(self, tag): self.ops.append(tag)
    def wait_for(self, tags):
        last = max(i for i, t in enumerate(self.ops) if t in tags)
        return len(self.ops) - 1 - last

def emit_stats_loads(a, SR, vaddr, srd, soff):
    for i in range(8):
        a(f"buffer_load_dwordx2 v[{SR+2*i}:{SR+2*i+1}], v{vaddr}, s[{srd}:{srd+3}], s{soff} offen offset:{256*i}")

def emit_stats_final(a, SR, T, vMEAN, vRSTD):
    for g in (0, 8):
        a(f"""v_add_f32 v{SR+g}, v{SR+g}, v{SR+g+2}
        v_add_f32 v{SR+g+1}, v{SR+g+1}, v{SR+g+3}
        v_add_f32 v{SR+g+4}, v{SR+g+4}, v{SR+g+6}
        v_add_f32 v{SR+g+5}, v{SR+g+5}, v{SR+g+7}
        v_add_f32 v{SR+g}, v{SR+g}, v{SR+g+4}
        v_add_f32 v{SR+g+1}, v{SR+g+1}, v{SR+g+5}""")
    a(f"""v_cvt_f64_f32 v[{T}:{T+1}], v{SR}
    v_cvt_f64_f32 v[{T+2}:{T+3}], v{SR+1}
    v_cvt_f64_f32 v[{T+4}:{T+5}], v{SR+8}
    v_cvt_f64_f32 v[{T+6}:{T+7}], v{SR+9}
    v_add_f64 v[{T}:{T+1}], v[{T}:{T+1}], v[{T+4}:{T+5}]
    v_add_f64 v[{T+2}:{T+3}], v[{T+2}:{T+3}], v[{T+6}:{T+7}]""")
    a(f"""v_mov_b32 v{T+4}, v{T}
    v_mov_b32 v{T+5}, v{T+1}
    v_mov_b32 v{T+6}, v{T+2}
    v_mov_b32 v{T+7}, v{T+3}
    s_nop 1
    v_permlane32_swap_b32 v{T}, v{T+4}
    v_permlane32_swap_b32 v{T+1}, v{T+5}
    v_permlane32_swap_b32 v{T+2}, v{T+6}
    v_permlane32_swap_b32 v{T+3}, v{T+7}
    s_nop 1
    v_add_f64 v[{T}:{T+1}], v[{T}:{T+1}], v[{T+4}:{T+5}]
    v_add_f64 v[{T+2}:{T+3}], v[{T+2}:{T+3}], v[{T+6}:{T+7}]
    v_ldexp_f64 v[{T}:{T+1}], v[{T}:{T+1}], -9
    v_ldexp_f64 v[{T+2}:{T+3}], v[{T+2}:{T+3}], -9
    v_fma_f64 v[{T+2}:{T+3}], -v[{T}:{T+1}], v[{T}:{T+1}], v[{T+2}:{T+3}]
    v_cvt_f32_f64 v{vMEAN}, v[{T}:{T+1}]
    v_cvt_f32_f64 v{vRSTD}, v[{T+2}:{T+3}]
    v_max_f32 v{vRSTD}, 0, v{vRSTD}
    v_add_f32 v{vRSTD}, {hex(f32bits(1e-5))}, v{vRSTD}
    v_rsq_f32 v{vRSTD}, v{vRSTD}
    s_nop 0""")

def gen_qkv(names_xoffs):
    a = Asm()
    name = names_xoffs[0][0]
    ACC = 0; BF = 48; BQ = 84; BK = 100; AVv = 116; BV = 132
    AR = 148; AD = 20
    SR = AVv; CP = BV; VLANE = 228; VA = 229; VB0 = 230; VB1 = 231; T = 232
    vMEAN, vRSTD, vNB, vRQ = 248, 249, 250, 251
    CS_OFF = 98304; ST_OFF = CS_OFF + 1024
    LDS = ST_OFF + 1024
    sWS = 12
    sRB, sCB, sWAVE, sRG = 24, 25, 26, 27
    sM0, sWOFF, sAOFF, sXOFF = 30, 31, 32, 33
    body = f"{name}_body"
    end = f"{name}_end"
    code = ""
    for i, (nm, xoff) in enumerate(names_xoffs):
        code += kernel_header(nm) + f"    s_mov_b32 s{sXOFF}, {xoff}\n"
        if i + 1 < len(names_xoffs):
            code += f"    s_branch {body}\n"
    a.label(body)
    a(f"""s_cmp_ge_u32 s2, 256
    s_cbranch_scc1 {end}_real""")
    stamp_begin(a)
    a(f"""s_load_dwordx2 s[8:9], s[0:1], {KA_WS}
    v_and_b32 v{VLANE}, 63, v0
    v_lshrrev_b32 v{T}, 6, v0
    s_and_b32 s28, s2, 7
    s_lshr_b32 s29, s2, 3
    v_readfirstlane_b32 s{sWAVE}, v{T}
    v_lshlrev_b32 v{VA}, 4, v{VLANE}
    s_and_b32 s{sRB}, s28, 3
    s_lshl_b32 s{sRB}, s{sRB}, 2
    s_and_b32 s34, s29, 3
    s_add_u32 s{sRB}, s{sRB}, s34
    s_lshr_b32 s{sCB}, s28, 2
    s_lshl_b32 s{sCB}, s{sCB}, 3
    s_lshr_b32 s34, s29, 2
    s_add_u32 s{sCB}, s{sCB}, s34
    s_lshl_b32 s{sRG}, s{sRB}, 2
    s_add_u32 s{sRG}, s{sRG}, s{sWAVE}
    s_mul_i32 s{sM0}, s{sWAVE}, 3072
    s_mul_i32 s{sWOFF}, s{sCB}, 98304
    s_add_u32 s{sWOFF}, s{sWOFF}, s{sM0}
    s_add_u32 s{sWOFF}, s{sWOFF}, {WS_WQKV}
    s_lshl_b32 s{sAOFF}, s{sRG}, 15
    s_add_u32 s{sAOFF}, s{sAOFF}, s{sXOFF}
    s_mov_b32 s14, {WS_SIZE}
    s_mov_b32 s15, 0x00020000
    s_waitcnt lgkmcnt(0)
    s_mov_b32 s12, s8
    s_and_b32 s13, s9, 0xffff""")
    vm = VmTracker()
    def bdma(c, j):
        if j == 0:
            a(f"s_mov_b32 m0, s{sM0}\ns_add_u32 s{sM0}, s{sM0}, 12288")
        a(f"buffer_load_dwordx4 v{VA}, s[{sWS}:{sWS+3}], s{sWOFF} offen offset:{1024*j} lds")
        if j == 2:
            a(f"s_add_u32 s{sWOFF}, s{sWOFF}, {0 if os.environ.get('NOB') else 12288}")
        vm.issue(("B", c))
    def aload(s):
        r = AR + 4 * (s % AD)
        a(f"buffer_load_dwordx4 v[{r}:{r+3}], v{VA}, s[{sWS}:{sWS+3}], s{sAOFF} offen offset:{(s%4)*1024}")
        if s % 4 == 3:
            a(f"s_add_u32 s{sAOFF}, s{sAOFF}, {0 if os.environ.get('NOA') else 4096}")
        vm.issue(("A", s))
    stamp_mid(a, 0)
    PRE = int(os.environ.get("QPRE", "2"))
    from collections import defaultdict
    for c in range(2):
        for j in range(3): bdma(c, j)
        for q in range(4): aload(4 * c + q)
    a(f"""v_and_b32 v{T}, 31, v{VLANE}
    v_lshrrev_b32 v{T+1}, 5, v{VLANE}
    v_lshlrev_b32 v{T+2}, 11, v{T+1}
    v_lshl_add_u32 v{T+2}, v{T}, 3, v{T+2}
    s_lshl_b32 s34, s{sRG}, 12
    s_add_u32 s34, s34, {WS_ST}
    v_lshlrev_b32 v{T+13}, 5, v0
    s_mul_i32 s35, s{sCB}, 3072
    s_add_u32 s35, s35, {WS_CSQ}
    v_mov_b32 v{VB0}, v{VA}
    v_add_u32 v{VB1}, 49152, v{VA}
    v_lshlrev_b32 v{T+3}, 2, v0
    v_add_u32 v{T+3}, {CS_OFF}, v{T+3}""")
    def small():
        emit_stats_loads(a, SR, T + 2, sWS, 34)
        for i in range(8): vm.issue(("S", 0))
        a(f"""buffer_load_dwordx4 v[{CP}:{CP+3}], v{T+13}, s[{sWS}:{sWS+3}], s35 offen
        buffer_load_dwordx4 v[{CP+4}:{CP+7}], v{T+13}, s[{sWS}:{sWS+3}], s35 offen offset:16""")
        vm.issue(("S", 0)); vm.issue(("S", 0))
    pend = []
    for c in range(2, 8):
        pend += [(c, (lambda c=c, j=j: bdma(c, j))) for j in range(3)]
        pend += [(c, (lambda s=4*c+q: aload(s))) for q in range(4)]
        if c == 3: pend.append((c, small))
    def issue_upto(slot):
        s = slot // 3
        n = 0
        while pend and n < 2:
            c, f = pend[0]
            if c <= s // 4 + PRE and (c - 5) < s // 4:
                f(); pend.pop(0); n += 1
            else:
                break
    def reads(s):
        buf = BF + (s % 3) * 12
        base = VB0 if s < 16 else VB1
        off = (s % 16) * 3072
        for t in range(3):
            a(f"ds_read_b128 v[{buf+4*t}:{buf+4*t+3}], v{base} offset:{off+1024*t}")
    stamp_mid(a, 1)
    a(f"s_waitcnt vmcnt({vm.wait_for({('B',0)})})\ns_barrier")
    stamp_mid(a, 2)
    reads(0)
    def block1():
        emit_stats_final(a, SR, T + 4, vMEAN, vRSTD)
        a(f"""v_add_f32 v{CP}, v{CP}, v{CP+1}
        v_add_f32 v{CP+2}, v{CP+2}, v{CP+3}
        v_add_f32 v{CP+4}, v{CP+4}, v{CP+5}
        v_add_f32 v{CP+6}, v{CP+6}, v{CP+7}
        v_add_f32 v{CP}, v{CP}, v{CP+2}
        v_add_f32 v{CP+4}, v{CP+4}, v{CP+6}
        v_add_f32 v{CP}, v{CP}, v{CP+4}
        ds_write_b32 v{T+3}, v{CP}
        v_mul_f32 v{vNB}, v{vMEAN}, v{vRSTD}
        v_sub_f32 v{vNB}, 0, v{vNB}
        v_mul_f32 v{vRQ}, {hex(f32bits(QSCALE))}, v{vRSTD}
        s_lshl_b32 s34, s{sWAVE}, 8
        s_add_u32 s35, s34, {ST_OFF}
        v_lshl_add_u32 v{T+4}, v{T}, 2, s35
        ds_write_b32 v{T+4}, v{vRSTD}
        ds_write_b32 v{T+4}, v{vNB} offset:128
        v_lshl_add_u32 v{T+5}, v{T+1}, 4, s35
        v_lshlrev_b32 v{T+6}, 4, v{T+1}
        v_add_u32 v{T+6}, {CS_OFF}, v{T+6}
        v_lshlrev_b32 v{T+7}, 2, v{T}
        v_add_u32 v{T+7}, {CS_OFF+256}, v{T+7}
        v_mul_f32 v{T+8}, {hex(f32bits(QSCALE))}, v{vNB}""")
    def block2a():
        for g in range(4):
            a(f"ds_read_b128 v[{BQ+4*g}:{BQ+4*g+3}], v{T+6} offset:{32*g}")
            a(f"ds_read_b128 v[{BK+4*g}:{BK+4*g+3}], v{T+6} offset:{128+32*g}")
        a(f"ds_read_b32 v{T+9}, v{T+7}")
    def block2b():
        for g in range(4):
            a(f"ds_read_b128 v[{AVv+4*g}:{AVv+4*g+3}], v{T+5} offset:{32*g}")
            a(f"ds_read_b128 v[{BV+4*g}:{BV+4*g+3}], v{T+5} offset:{128+32*g}")
    def block3():
        for i in range(16):
            a(f"v_mul_f32 v{BQ+i}, v{BQ+i}, v{T+8}")
        for i in range(16):
            a(f"v_mul_f32 v{BK+i}, v{BK+i}, v{vNB}")
        for i in range(16):
            a(f"v_mul_f32 v{BV+i}, v{BV+i}, v{T+9}")
    for s in range(32):
        c = s // 4
        wA = vm.wait_for({("A", s)})
        if s + 1 < 32:
            if (s + 1) % 4 == 0:
                a(f"s_waitcnt vmcnt({vm.wait_for({('B',(s+1)//4), ('A', s)})}) lgkmcnt(0)\ns_barrier")
                reads(s + 1)
            else:
                reads(s + 1)
                a(f"s_waitcnt vmcnt({wA}) lgkmcnt(3)")
        else:
            a(f"s_waitcnt vmcnt({wA}) lgkmcnt(0)")
        buf = BF + (s % 3) * 12
        af = AR + 4 * (s % AD)
        def C(t): return "0" if s == 0 else vr(ACC + 16 * t, 16)
        a(f"v_mfma_f32_32x32x16_bf16 {vr(ACC,16)}, {vr(buf,4)}, {vr(af,4)}, {C(0)}")
        issue_upto(3 * s)
        a(f"v_mfma_f32_32x32x16_bf16 {vr(ACC+16,16)}, {vr(buf+4,4)}, {vr(af,4)}, {C(1)}")
        issue_upto(3 * s + 1)
        a(f"v_mfma_f32_32x32x16_bf16 {vr(ACC+32,16)}, {vr(af,4)}, {vr(buf+8,4)}, {C(2)}")
        issue_upto(3 * s + 2)
        if s == 17: block1()
        if s == 20: block2a()
        if s == 21: block2b()
        if s == 22: block3()
        if s == 24:
            a(f"""v_bfe_u32 v{T+10}, v{VLANE}, 4, 1
            v_lshlrev_b32 v{T+10}, 16, v{T+10}
            v_and_b32 v{T+11}, 15, v{VLANE}
            v_lshlrev_b32 v{T+11}, 4, v{T+11}
            v_lshlrev_b32 v{T+12}, 8, v{T+1}
            v_add3_u32 v{T+10}, v{T+10}, v{T+11}, v{T+12}
            v_lshrrev_b32 v{T+11}, 2, v{VLANE}
            s_lshl_b32 s37, s{sCB}, 17
            s_lshl_b32 s38, s{sRG}, 10
            s_add_u32 s37, s37, s38
            s_add_u32 s39, s37, {WS_V}
            s_add_u32 s40, s37, {WS_Q}
            s_add_u32 s41, s40, 65536
            s_add_u32 s42, s37, {WS_K}
            s_add_u32 s43, s42, 65536
            s_lshl_b32 s44, s{sCB}, 10
            s_lshl_b32 s45, s{sRG}, 3
            s_add_u32 s44, s44, s45
            s_add_u32 s44, s44, {WS_KMAX}""")
    X = os.environ.get("QX", "")
    if X:
        i0 = max(i for i, l in enumerate(a.lines) if "s_sub_u32 s98" in l) + 1
        body = a.lines[i0:]
        if "b" in X: body = [l for l in body if "s_barrier" not in l]
        if "l" in X: body = [l for l in body if "buffer_load" not in l]
        if "d" in X: body = [l for l in body if "ds_read" not in l]
        if "w" in X: body = [l for l in body if "s_waitcnt" not in l]
        if "m" in X: body = [l for l in body if "mfma" not in l]
        if "f" in X: body = [l for l in body if "f64" not in l]
        if "A" in X: body = [l for l in body if not ("buffer_load" in l and " lds" not in l)]
        if "B" in X: body = [l for l in body if not ("buffer_load" in l and " lds" in l)]
        if "v" in X: body = [l for l in body if not (l.strip().startswith("v_") and "mfma" not in l)]
        a.lines = a.lines[:i0] + body
    stamp_mid(a, 3)
    P = AR
    a("s_nop 7\ns_nop 2")
    for i in range(16):
        a(f"v_fma_f32 v{ACC+16+i}, v{ACC+16+i}, v{vRSTD}, v{BK+i}")
    NA, NB = T + 12, T + 13
    a(f"v_mul_f32 v{NA}, v{ACC+16}, v{ACC+16}\nv_mul_f32 v{NB}, v{ACC+24}, v{ACC+24}")
    for i in range(1, 8):
        a(f"v_fmac_f32 v{NA}, v{ACC+16+i}, v{ACC+16+i}\nv_fmac_f32 v{NB}, v{ACC+24+i}, v{ACC+24+i}")
    a(f"v_mov_b32 v{T+14}, v{NA}\nv_mov_b32 v{T+15}, v{NB}")
    for i in range(8):
        a(f"v_cvt_pk_bf16_f32 v{P+i}, v{ACC+16+2*i}, v{ACC+16+2*i+1}")
    a(f"""v_permlane32_swap_b32 v{NA}, v{T+14}
    v_permlane32_swap_b32 v{NB}, v{T+15}
    buffer_store_dwordx4 v[{P}:{P+3}], v{VA}, s[{sWS}:{sWS+3}], s42 offen
    buffer_store_dwordx4 v[{P+4}:{P+7}], v{VA}, s[{sWS}:{sWS+3}], s43 offen
    v_add_f32 v{NA}, v{NA}, v{T+14}
    v_add_f32 v{NB}, v{NB}, v{T+15}""")
    dpps = ["quad_perm:[1,0,3,2]", "quad_perm:[2,3,0,1]", "row_half_mirror", "row_mirror"]
    for i in range(16):
        a(f"v_fma_f32 v{ACC+i}, v{ACC+i}, v{vRQ}, v{BQ+i}")
        if i % 4 == 3:
            d = dpps[i // 4]
            a(f"v_max_f32_dpp v{NA}, v{NA}, v{NA} {d} row_mask:0xf bank_mask:0xf\nv_max_f32_dpp v{NB}, v{NB}, v{NB} {d} row_mask:0xf bank_mask:0xf")
    for i in range(8):
        a(f"v_cvt_pk_bf16_f32 v{P+8+i}, v{ACC+2*i}, v{ACC+2*i+1}")
    a(f"""buffer_store_dwordx4 v[{P+8}:{P+11}], v{VA}, s[{sWS}:{sWS+3}], s40 offen
    buffer_store_dwordx4 v[{P+12}:{P+15}], v{VA}, s[{sWS}:{sWS+3}], s41 offen""")
    for i in range(16):
        a(f"v_fma_f32 v{ACC+32+i}, v{ACC+32+i}, v{AVv+i}, v{BV+i}")
    for i in range(8):
        a(f"v_cvt_pk_bf16_f32 v{P+16+i}, v{ACC+32+2*i}, v{ACC+32+2*i+1}")
    a(f"""buffer_store_dwordx4 v[{P+16}:{P+19}], v{T+10}, s[{sWS}:{sWS+3}], s39 offen
    buffer_store_dwordx4 v[{P+20}:{P+23}], v{T+10}, s[{sWS}:{sWS+3}], s39 offen offset:512
    s_mov_b64 exec, 0x10001
    buffer_store_dword v{NA}, v{T+11}, s[{sWS}:{sWS+3}], s44 offen
    buffer_store_dword v{NB}, v{T+11}, s[{sWS}:{sWS+3}], s44 offen offset:512""")
    a.label(end)
    stamp_end(a)
    a.label(end + "_real")
    a("s_endpgm")
    desc = "".join(kernel_desc(nm, 256) for nm, _ in names_xoffs)
    return code + a.text(), desc, LDS
```

```python
from common import *
from k_qkv import QSCALE, VmTracker

def stats4_final(a, ST1, ST2, T, vMEAN, vRSTD):
    for i in range(4):
        a(f"v_cvt_f64_f32 v[{T+2*i}:{T+2*i+1}], v{ST1+i}")
    for i in range(4):
        a(f"v_cvt_f64_f32 v[{T+8+2*i}:{T+8+2*i+1}], v{ST2+i}")
    a(f"""v_add_f64 v[{T}:{T+1}], v[{T}:{T+1}], v[{T+2}:{T+3}]
    v_add_f64 v[{T+4}:{T+5}], v[{T+4}:{T+5}], v[{T+6}:{T+7}]
    v_add_f64 v[{T+8}:{T+9}], v[{T+8}:{T+9}], v[{T+10}:{T+11}]
    v_add_f64 v[{T+12}:{T+13}], v[{T+12}:{T+13}], v[{T+14}:{T+15}]
    v_add_f64 v[{T}:{T+1}], v[{T}:{T+1}], v[{T+4}:{T+5}]
    v_add_f64 v[{T+8}:{T+9}], v[{T+8}:{T+9}], v[{T+12}:{T+13}]
    s_nop 1
    v_mov_b32 v{T+2}, v{T}
    v_mov_b32 v{T+3}, v{T+1}
    v_mov_b32 v{T+10}, v{T+8}
    v_mov_b32 v{T+11}, v{T+9}
    s_nop 1
    v_permlane32_swap_b32 v{T}, v{T+2}
    v_permlane32_swap_b32 v{T+1}, v{T+3}
    v_permlane32_swap_b32 v{T+8}, v{T+10}
    v_permlane32_swap_b32 v{T+9}, v{T+11}
    s_nop 1
    v_add_f64 v[{T}:{T+1}], v[{T}:{T+1}], v[{T+2}:{T+3}]
    v_add_f64 v[{T+8}:{T+9}], v[{T+8}:{T+9}], v[{T+10}:{T+11}]
    v_ldexp_f64 v[{T}:{T+1}], v[{T}:{T+1}], -9
    v_ldexp_f64 v[{T+8}:{T+9}], v[{T+8}:{T+9}], -9
    v_fma_f64 v[{T+8}:{T+9}], -v[{T}:{T+1}], v[{T}:{T+1}], v[{T+8}:{T+9}]
    v_cvt_f32_f64 v{vMEAN}, v[{T}:{T+1}]
    v_cvt_f32_f64 v{vRSTD}, v[{T+8}:{T+9}]
    v_max_f32 v{vRSTD}, 0, v{vRSTD}
    v_add_f32 v{vRSTD}, {hex(f32bits(1e-5))}, v{vRSTD}
    v_rsq_f32 v{vRSTD}, v{vRSTD}
    s_nop 0""")

def gen_qkvn(name):
    a = Asm()
    ACC = 0; BF = 48; AF = 84; ST1 = 96; ST2 = 100; CS = 104
    VLANE = 108; VA = 109; VDA = [110, 111]; VDB = 112; VRA = [113, 114, 115, 116, 117, 118, 119, 120]; VRB = [121, 122]
    T = 124; E = 144; CS2 = 250
    vMEAN, vRSTD = 140, 141
    R = 4; SLOT = 32768
    XC_OFF = R * SLOT
    PV_OFF = XC_OFF + 8192
    LDS = PV_OFF + 2048
    sX, sW, sWS = 12, 16, 20
    sRB, sCB, sWAVE, sRG, sCBT = 24, 25, 26, 27, 28
    sA0, sA1, sB0, sB1, sLA, sONES = 29, 30, 31, 32, 33, 46
    end = f"{name}_end"
    a(f"""s_cmp_ge_u32 s2, 256
    s_cbranch_scc1 {end}_real""")
    stamp_begin(a)
    a(f"""s_load_dwordx4 s[4:7], s[0:1], {KA_X}
    s_load_dwordx2 s[8:9], s[0:1], {KA_WS}
    v_and_b32 v{VLANE}, 63, v0
    v_lshrrev_b32 v{T}, 6, v0
    s_and_b32 s34, s2, 7
    s_lshr_b32 s35, s2, 3
    v_readfirstlane_b32 s{sWAVE}, v{T}
    v_lshlrev_b32 v{VA}, 4, v{VLANE}
    s_and_b32 s{sRB}, s34, 3
    s_lshl_b32 s{sRB}, s{sRB}, 3
    s_and_b32 s36, s35, 7
    s_add_u32 s{sRB}, s{sRB}, s36
    s_lshr_b32 s{sCB}, s34, 2
    s_lshl_b32 s{sCB}, s{sCB}, 2
    s_lshr_b32 s36, s35, 3
    s_add_u32 s{sCB}, s{sCB}, s36
    v_lshrrev_b32 v{T}, 3, v{VLANE}
    v_and_b32 v{T+1}, 7, v{VLANE}
    v_lshrrev_b32 v{T+2}, 4, v{VLANE}
    v_xor_b32 v{T+3}, v{T+1}, v{T+2}
    v_lshlrev_b32 v{T+4}, 10, v{T}
    v_lshl_add_u32 v{VDA[0]}, v{T+3}, 4, v{T+4}
    v_xor_b32 v{T+3}, 4, v{T+3}
    v_lshl_add_u32 v{VDA[1]}, v{T+3}, 4, v{T+4}
    v_and_b32 v{T+2}, 1, v{T+2}
    v_lshlrev_b32 v{T+2}, 2, v{T+2}
    v_xor_b32 v{T+3}, v{T+1}, v{T+2}
    v_mul_u32_u24 v{T+4}, 3072, v{T}
    v_lshl_add_u32 v{VDB}, v{T+3}, 4, v{T+4}
    s_lshl_b32 s{sA0}, s{sRB}, 16
    s_lshl_b32 s36, s{sWAVE}, 14
    s_add_u32 s{sA0}, s{sA0}, s36
    s_add_u32 s{sA1}, s{sA0}, 7168
    s_mul_i32 s{sB0}, s{sWAVE}, {16*3072}
    s_lshl_b32 s36, s{sCB}, 7
    s_add_u32 s{sB0}, s{sB0}, s36
    s_add_u32 s{sB1}, s{sB0}, {8*3072-1024}
    s_lshl_b32 s{sLA}, s{sWAVE}, 11
    s_mov_b32 s14, {2048*1024}
    s_mov_b32 s15, 0x00020000
    s_mov_b32 s18, {512*3072}
    s_mov_b32 s19, 0x00020000
    s_waitcnt lgkmcnt(0)
    s_mov_b32 s12, s4
    s_and_b32 s13, s5, 0xffff
    s_mov_b32 s16, s6
    s_and_b32 s17, s7, 0xffff""")
    vm = VmTracker()
    def ld(c, j):
        base = (c % R) * SLOT
        if j == 0:
            a(f"s_add_u32 m0, s{sLA}, {base}\ns_nop 0")
            a(f"buffer_load_dwordx4 v{VDA[0]}, s[{sX}:{sX+3}], s{sA0} offen lds")
        elif j == 1:
            a(f"buffer_load_dwordx4 v{VDA[1]}, s[{sX}:{sX+3}], s{sA1} offen offset:1024 lds")
            a(f"s_add_u32 s{sA0}, s{sA0}, 128\ns_add_u32 s{sA1}, s{sA1}, 128")
        else:
            blk = (j - 2) // 2
            if j % 2 == 0:
                a(f"s_add_u32 m0, s{sLA}, {base+8192+blk*8192}\ns_add_u32 s47, s{sB0}, {blk*1024}")
                a(f"buffer_load_dwordx4 v{VDB}, s[{sW}:{sW+3}], s47 offen lds")
            else:
                a(f"s_add_u32 s47, s{sB1}, {blk*1024}")
                a(f"buffer_load_dwordx4 v{VDB}, s[{sW}:{sW+3}], s47 offen offset:1024 lds")
                if j == 7:
                    a(f"s_add_u32 s{sB0}, s{sB0}, {64*3072}\ns_add_u32 s{sB1}, s{sB1}, {64*3072}")
        vm.issue(("C", c))
    for j in range(8): ld(0, j)
    for j in range(6): ld(1, j)
    a(f"""s_and_b32 s36, s{sWAVE}, 1
    s_lshr_b32 s37, s{sWAVE}, 1
    s_lshl_b32 s{sRG}, s{sRB}, 1
    s_add_u32 s{sRG}, s{sRG}, s36
    s_lshl_b32 s{sCBT}, s{sCB}, 1
    s_add_u32 s{sCBT}, s{sCBT}, s37
    s_mov_b32 s{sONES}, 0x3f803f80
    s_mov_b32 s48, s36
    s_mov_b32 s49, s37
    s_mov_b32 s20, s8
    s_and_b32 s21, s9, 0xffff
    s_mov_b32 s22, {WS_SIZE}
    s_mov_b32 s23, 0x00020000
    v_and_b32 v{T}, 31, v{VLANE}
    v_lshrrev_b32 v{T+1}, 5, v{VLANE}
    v_bfe_u32 v{T+2}, v{VLANE}, 1, 3
    v_xor_b32 v{T+2}, v{T+2}, v{T+1}
    v_lshlrev_b32 v{T+3}, 7, v{T}
    s_lshl_b32 s38, s36, 12
    v_add_u32 v{T+3}, s38, v{T+3}""")
    for q in range(4):
        a(f"""v_xor_b32 v{T+4}, {2*q}, v{T+2}
        v_lshl_add_u32 v{VRA[q]}, v{T+4}, 4, v{T+3}
        v_add_u32 v{VRA[4+q]}, {2*SLOT}, v{VRA[q]}""")
    a(f"""v_lshlrev_b32 v{T+4}, 3, v{T+1}
    v_bfe_u32 v{T+5}, v{VLANE}, 2, 2
    v_add_u32 v{T+4}, v{T+4}, v{T+5}
    v_lshlrev_b32 v{T+4}, 7, v{T+4}
    v_bfe_u32 v{T+5}, v{VLANE}, 4, 1
    v_lshlrev_b32 v{T+5}, 5, v{T+5}
    v_and_b32 v{T+6}, 3, v{VLANE}
    v_lshlrev_b32 v{T+6}, 3, v{T+6}
    v_bfe_u32 v{T+7}, v{VLANE}, 3, 1
    v_lshlrev_b32 v{T+7}, 6, v{T+7}
    s_lshl_b32 s38, s37, 6
    v_xor_b32 v{T+7}, s38, v{T+7}
    v_add3_u32 v{T+4}, v{T+4}, v{T+5}, v{T+6}
    v_add3_u32 v{VRB[0]}, v{T+4}, v{T+7}, 0
    v_add_u32 v{VRB[0]}, 8192, v{VRB[0]}
    v_add_u32 v{VRB[1]}, {2*SLOT}, v{VRB[0]}""")
    for i in range(4):
        a(f"v_mov_b32 v{ST1+i}, 0\nv_mov_b32 v{ST2+i}, 0")
    for i in range(4):
        a(f"v_mov_b32 v{CS+i}, 0")
    for i in range(3):
        a(f"v_mov_b32 v{CS2+i}, 0")
    a("s_mov_b32 s50, 0xffff0000")
    def reads(s):
        c, q = s // 4, s % 4
        sl = c % R
        hi = sl // 2; off = (sl % 2) * SLOT
        af = AF + 4 * (s % 3); bf = BF + 12 * (s % 3)
        a(f"ds_read_b128 v[{af}:{af+3}], v{VRA[4*hi+q]} offset:{off}")
        for t in range(3):
            o = off + t * 8192 + q * 2048
            a(f"ds_read_b64_tr_b16 v[{bf+4*t}:{bf+4*t+1}], v{VRB[hi]} offset:{o}")
            a(f"ds_read_b64_tr_b16 v[{bf+4*t+2}:{bf+4*t+3}], v{VRB[hi]} offset:{o+512}")
    pend = [(1, 6), (1, 7)] + [(c, j) for c in range(2, 8) for j in range(8)]
    allowed = 2
    def issue(n, maxc):
        k = 0
        while pend and k < n and pend[0][0] <= maxc:
            c, j = pend.pop(0); ld(c, j); k += 1
    stamp_mid(a, 1)
    a(f"s_waitcnt vmcnt({vm.wait_for({('C',0)})})\ns_barrier")
    stamp_mid(a, 2)
    reads(0)
    maxc = 2
    for s in range(32):
        if s + 1 < 32:
            if (s + 1) % 4 == 0:
                cn = (s + 1) // 4
                a(f"s_waitcnt vmcnt({vm.wait_for({('C', cn)})})\ns_barrier")
                maxc = cn + 2
            reads(s + 1)
            a("s_waitcnt lgkmcnt(7)")
        else:
            a("s_waitcnt lgkmcnt(0)")
        af = AF + 4 * (s % 3); bf = BF + 12 * (s % 3)
        def C(t): return "0" if s == 0 else vr(ACC + 16 * t, 16)
        if not os.environ.get("QVALU"):
            a(f"v_mfma_f32_32x32x16_bf16 {vr(ACC,16)}, {vr(bf,4)}, {vr(af,4)}, {C(0)}")
            issue(1, maxc)
            a(f"v_mfma_f32_32x32x16_bf16 {vr(ACC+16,16)}, {vr(bf+4,4)}, {vr(af,4)}, {C(1)}")
            issue(1, maxc)
            a(f"v_mfma_f32_32x32x16_bf16 {vr(ACC+32,16)}, {vr(af,4)}, {vr(bf+8,4)}, {C(2)}")
            issue(1, maxc)
            l1 = a.newlabel(name + "_s"); l2 = a.newlabel(name + "_c")
            a(f"s_cmp_lg_u32 s49, {s & 1}\ns_cbranch_scc1 {l1}")
            for i in range(4):
                a(f"v_dot2c_f32_bf16 v{ST1+i}, s{sONES}, v{af+i}")
                a(f"v_dot2c_f32_bf16 v{ST2+i}, v{af+i}, v{af+i}")
            a.label(l1)
            a(f"s_cmp_lg_u32 s48, {s & 1}\ns_cbranch_scc1 {l2}")
            for i in range(4):
                for t in range(3):
                    a(f"v_dot2c_f32_bf16 v{CS+t}, s{sONES}, v{bf+4*t+i}")
            a.label(l2)
            continue
        U = E
        def unp(src, d):
            return [f"v_lshlrev_b32 v{d}, 16, v{src}", f"v_and_b32 v{d+1}, s50, v{src}"]
        def stat_ops(half):
            L = []
            for i in (2 * half, 2 * half + 1):
                d = U + 2 * (i % 2)
                L += unp(af + i, d)
                L += [f"v_add_f32 v{ST1+2*(i%2)}, v{ST1+2*(i%2)}, v{d}", f"v_add_f32 v{ST1+2*(i%2)+1}, v{ST1+2*(i%2)+1}, v{d+1}",
                      f"v_fmac_f32 v{ST2+2*(i%2)}, v{d}, v{d}", f"v_fmac_f32 v{ST2+2*(i%2)+1}, v{d+1}, v{d+1}"]
            return L
        def cs_ops(t, half):
            L = []
            for i in (2 * half, 2 * half + 1):
                d = U + 4 + 2 * (i % 2)
                L += unp(bf + 4 * t + i, d)
                L += [f"v_add_f32 v{CS+t}, v{CS+t}, v{d}", f"v_add_f32 v{CS2+t}, v{CS2+t}, v{d+1}"]
            return L
        def two_way(sreg, f):
            l1 = a.newlabel(name + "_h"); l2 = a.newlabel(name + "_j")
            a(f"s_cmp_lg_u32 s{sreg}, 0\ns_cbranch_scc1 {l1}")
            for x in f(0): a(x)
            a(f"s_branch {l2}")
            a.label(l1)
            for x in f(1): a(x)
            a.label(l2)
        a(f"v_mfma_f32_32x32x16_bf16 {vr(ACC,16)}, {vr(bf,4)}, {vr(af,4)}, {C(0)}")
        issue(1, maxc)
        two_way(49, stat_ops)
        a(f"v_mfma_f32_32x32x16_bf16 {vr(ACC+16,16)}, {vr(bf+4,4)}, {vr(af,4)}, {C(1)}")
        issue(1, maxc)
        two_way(48, lambda h: cs_ops(0, h) + cs_ops(1, h)[:4])
        a(f"v_mfma_f32_32x32x16_bf16 {vr(ACC+32,16)}, {vr(af,4)}, {vr(bf+8,4)}, {C(2)}")
        issue(1, maxc)
        two_way(48, lambda h: cs_ops(1, h)[4:] + cs_ops(2, h))
    assert not pend
    stamp_mid(a, 3)
    a("s_nop 2")
    for i in range(3): a(f"v_add_f32 v{CS+i}, v{CS+i}, v{CS2+i}")
    X0 = E + 96
    for i in range(4):
        a(f"v_cvt_f64_f32 v[{E+2*i}:{E+2*i+1}], v{ST1+i}")
    for i in range(4):
        a(f"v_cvt_f64_f32 v[{E+8+2*i}:{E+8+2*i+1}], v{ST2+i}")
    a(f"""s_lshl_b32 s34, s{sWAVE}, 11
    s_add_u32 s34, s34, {XC_OFF}
    v_add_u32 v{T+2}, s34, v{VA}
    ds_write_b128 v{T+2}, v[{CS}:{CS+3}] offset:1024
    v_add_f64 v[{E}:{E+1}], v[{E}:{E+1}], v[{E+2}:{E+3}]
    v_add_f64 v[{E+4}:{E+5}], v[{E+4}:{E+5}], v[{E+6}:{E+7}]
    v_add_f64 v[{E+8}:{E+9}], v[{E+8}:{E+9}], v[{E+10}:{E+11}]
    v_add_f64 v[{E+12}:{E+13}], v[{E+12}:{E+13}], v[{E+14}:{E+15}]
    v_add_f64 v[{E}:{E+1}], v[{E}:{E+1}], v[{E+4}:{E+5}]
    v_add_f64 v[{E+2}:{E+3}], v[{E+8}:{E+9}], v[{E+12}:{E+13}]
    v_xor_b32 v{T+3}, 4096, v{T+2}
    v_xor_b32 v{T+4}, 2048, v{T+2}
    ds_write_b128 v{T+2}, v[{E}:{E+3}]
    s_lshl_b32 s34, s{sWAVE}, 9
    s_add_u32 s35, s34, {PV_OFF}
    v_lshl_add_u32 v{T+5}, v{T}, 2, s35
    v_lshl_add_u32 v{T+6}, v{T+1}, 4, s35
    s_waitcnt lgkmcnt(0)
    s_barrier
    ds_read_b128 v[{X0}:{X0+3}], v{T+4} offset:1024
    ds_read_b128 v[{E+4}:{E+7}], v{T+3}
    s_waitcnt lgkmcnt(1)
    v_add_f32 v{CS}, v{CS}, v{X0}
    v_add_f32 v{CS+1}, v{CS+1}, v{X0+1}
    v_add_f32 v{CS+2}, v{CS+2}, v{X0+2}
    v_mov_b32 v{T+2}, v{CS}
    v_mov_b32 v{T+3}, v{CS+1}
    v_mov_b32 v{T+4}, v{CS+2}
    s_nop 1
    v_permlane32_swap_b32 v{CS}, v{T+2}
    v_permlane32_swap_b32 v{CS+1}, v{T+3}
    v_permlane32_swap_b32 v{CS+2}, v{T+4}
    s_nop 1
    v_add_f32 v{CS}, v{CS}, v{T+2}
    v_add_f32 v{CS+1}, v{CS+1}, v{T+3}
    v_add_f32 v{CS+2}, v{CS+2}, v{T+4}
    ds_write_b32 v{T+5}, v{CS} offset:256
    ds_write_b32 v{T+5}, v{CS+1} offset:384""")
    BQ = E + 16; BK = E + 32; AVv = E + 48; BV = E + 64; P = E + 80
    for g in range(4):
        a(f"ds_read_b128 v[{BQ+4*g}:{BQ+4*g+3}], v{T+6} offset:{256+32*g}")
        a(f"ds_read_b128 v[{BK+4*g}:{BK+4*g+3}], v{T+6} offset:{384+32*g}")
    a(f"""s_waitcnt lgkmcnt(10)
    v_add_f64 v[{E}:{E+1}], v[{E}:{E+1}], v[{E+4}:{E+5}]
    v_add_f64 v[{E+2}:{E+3}], v[{E+2}:{E+3}], v[{E+6}:{E+7}]
    s_nop 1
    v_mov_b32 v{E+4}, v{E}
    v_mov_b32 v{E+5}, v{E+1}
    v_mov_b32 v{E+6}, v{E+2}
    v_mov_b32 v{E+7}, v{E+3}
    s_nop 1
    v_permlane32_swap_b32 v{E}, v{E+4}
    v_permlane32_swap_b32 v{E+1}, v{E+5}
    v_permlane32_swap_b32 v{E+2}, v{E+6}
    v_permlane32_swap_b32 v{E+3}, v{E+7}
    s_nop 1
    v_add_f64 v[{E}:{E+1}], v[{E}:{E+1}], v[{E+4}:{E+5}]
    v_add_f64 v[{E+2}:{E+3}], v[{E+2}:{E+3}], v[{E+6}:{E+7}]
    v_ldexp_f64 v[{E}:{E+1}], v[{E}:{E+1}], -9
    v_ldexp_f64 v[{E+2}:{E+3}], v[{E+2}:{E+3}], -9
    v_fma_f64 v[{E+2}:{E+3}], -v[{E}:{E+1}], v[{E}:{E+1}], v[{E+2}:{E+3}]
    v_cvt_f32_f64 v{vMEAN}, v[{E}:{E+1}]
    v_cvt_f32_f64 v{vRSTD}, v[{E+2}:{E+3}]
    v_max_f32 v{vRSTD}, 0, v{vRSTD}
    v_add_f32 v{vRSTD}, {hex(f32bits(1e-5))}, v{vRSTD}
    v_rsq_f32 v{vRSTD}, v{vRSTD}
    s_nop 0""")
    vNB, vRQ, vNQ = T + 7, T + 8, T + 9
    a(f"""v_mul_f32 v{vNB}, v{vMEAN}, v{vRSTD}
    v_sub_f32 v{vNB}, 0, v{vNB}
    ds_write_b32 v{T+5}, v{vRSTD}
    ds_write_b32 v{T+5}, v{vNB} offset:128""")
    for g in range(4):
        a(f"ds_read_b128 v[{AVv+4*g}:{AVv+4*g+3}], v{T+6} offset:{32*g}")
        a(f"ds_read_b128 v[{BV+4*g}:{BV+4*g+3}], v{T+6} offset:{128+32*g}")
    a(f"""v_mul_f32 v{vRQ}, {hex(f32bits(QSCALE))}, v{vRSTD}
    v_mul_f32 v{vNQ}, {hex(f32bits(QSCALE))}, v{vNB}
    v_bfe_u32 v{T+10}, v{VLANE}, 4, 1
    v_lshlrev_b32 v{T+10}, 16, v{T+10}
    v_and_b32 v{T+11}, 15, v{VLANE}
    v_lshlrev_b32 v{T+11}, 4, v{T+11}
    v_lshlrev_b32 v{T+12}, 8, v{T+1}
    v_add3_u32 v{T+10}, v{T+10}, v{T+11}, v{T+12}
    v_lshrrev_b32 v{T+11}, 2, v{VLANE}
    s_lshl_b32 s37, s{sCBT}, 17
    s_lshl_b32 s38, s{sRG}, 10
    s_add_u32 s37, s37, s38
    s_add_u32 s39, s37, {WS_V}
    s_add_u32 s40, s37, {WS_Q}
    s_add_u32 s41, s40, 65536
    s_add_u32 s42, s37, {WS_K}
    s_add_u32 s43, s42, 65536
    s_lshl_b32 s44, s{sCBT}, 10
    s_lshl_b32 s45, s{sRG}, 3
    s_add_u32 s44, s44, s45
    s_add_u32 s44, s44, {WS_KMAX}
    s_waitcnt lgkmcnt(10)""")
    for i in range(16):
        a(f"v_mul_f32 v{BK+i}, v{BK+i}, v{vNB}")
    for i in range(16):
        a(f"v_fma_f32 v{ACC+16+i}, v{ACC+16+i}, v{vRSTD}, v{BK+i}")
    NA, NB = T + 12, T + 13
    a(f"v_mul_f32 v{NA}, v{ACC+16}, v{ACC+16}\nv_mul_f32 v{NB}, v{ACC+24}, v{ACC+24}")
    for i in range(1, 8):
        a(f"v_fmac_f32 v{NA}, v{ACC+16+i}, v{ACC+16+i}\nv_fmac_f32 v{NB}, v{ACC+24+i}, v{ACC+24+i}")
    a(f"v_mov_b32 v{T+14}, v{NA}\nv_mov_b32 v{T+15}, v{NB}")
    for i in range(8):
        a(f"v_cvt_pk_bf16_f32 v{P+i}, v{ACC+16+2*i}, v{ACC+16+2*i+1}")
    a(f"""v_permlane32_swap_b32 v{NA}, v{T+14}
    v_permlane32_swap_b32 v{NB}, v{T+15}
    buffer_store_dwordx4 v[{P}:{P+3}], v{VA}, s[{sWS}:{sWS+3}], s42 offen sc1
    buffer_store_dwordx4 v[{P+4}:{P+7}], v{VA}, s[{sWS}:{sWS+3}], s43 offen sc1
    v_add_f32 v{NA}, v{NA}, v{T+14}
    v_add_f32 v{NB}, v{NB}, v{T+15}""")
    dpps = ["quad_perm:[1,0,3,2]", "quad_perm:[2,3,0,1]", "row_half_mirror", "row_mirror"]
    for i in range(16):
        a(f"v_mul_f32 v{BQ+i}, v{BQ+i}, v{vNQ}")
        if i % 4 == 3:
            d = dpps[i // 4]
            a(f"v_max_f32_dpp v{NA}, v{NA}, v{NA} {d} row_mask:0xf bank_mask:0xf\nv_max_f32_dpp v{NB}, v{NB}, v{NB} {d} row_mask:0xf bank_mask:0xf")
    for i in range(16):
        a(f"v_fma_f32 v{ACC+i}, v{ACC+i}, v{vRQ}, v{BQ+i}")
    for i in range(8):
        a(f"v_cvt_pk_bf16_f32 v{P+8+i}, v{ACC+2*i}, v{ACC+2*i+1}")
    a(f"""buffer_store_dwordx4 v[{P+8}:{P+11}], v{VA}, s[{sWS}:{sWS+3}], s40 offen sc1
    buffer_store_dwordx4 v[{P+12}:{P+15}], v{VA}, s[{sWS}:{sWS+3}], s41 offen sc1
    s_waitcnt lgkmcnt(0)""")
    for i in range(16):
        a(f"v_mul_f32 v{BV+i}, v{BV+i}, v{CS+2}")
    for i in range(16):
        a(f"v_fma_f32 v{ACC+32+i}, v{ACC+32+i}, v{AVv+i}, v{BV+i}")
    for i in range(8):
        a(f"v_cvt_pk_bf16_f32 v{P+16+i}, v{ACC+32+2*i}, v{ACC+32+2*i+1}")
    a(f"""buffer_store_dwordx4 v[{P+16}:{P+19}], v{T+10}, s[{sWS}:{sWS+3}], s39 offen sc1
    buffer_store_dwordx4 v[{P+20}:{P+23}], v{T+10}, s[{sWS}:{sWS+3}], s39 offen offset:512 sc1
    s_mov_b64 exec, 0x10001
    buffer_store_dword v{NA}, v{T+11}, s[{sWS}:{sWS+3}], s44 offen
    buffer_store_dword v{NB}, v{T+11}, s[{sWS}:{sWS+3}], s44 offen offset:512""")
    a.label(end)
    stamp_end(a)
    a.label(end + "_real")
    a("s_endpgm")
    return kernel_header(name) + a.text(), kernel_desc(name, 256), LDS
```

```python
class Asm:
    def __init__(self):
        self.lines = []
        self.uid = 0
    def __call__(self, s):
        for l in s.strip("\n").split("\n"):
            self.lines.append("    " + l.strip())
    def label(self, l):
        self.lines.append(l + ":")
    def newlabel(self, p="L"):
        self.uid += 1
        return f"{p}_{self.uid}"
    def text(self):
        return "\n".join(self.lines) + "\n"

def vr(b, n=1):
    return f"v{b}" if n == 1 else f"v[{b}:{b+n-1}]"
def sr(b, n=1):
    return f"s{b}" if n == 1 else f"s[{b}:{b+n-1}]"

MB = 1 << 20
WS_Q = 0
WS_K = 2 * MB
WS_V = 4 * MB
WS_KMAX = 6 * MB
WS_O = 8 * MB
WS_X1 = 10 * MB
WS_X2 = 12 * MB
WS_X0 = 14 * MB
WS_H = 16 * MB
WS_WQKV = 26 * MB
WS_WGU = 28 * MB
WS_ST = 6 * MB + 65536
WS_CSQ = 6 * MB + 65536 + 262144
WS_CSG = WS_CSQ + 65536
WS_WO = 23 * MB + 512 * 1024
WS_WD = 32 * MB
WS_DUMMY = 34 * MB
WS_FLAG = 35 * MB
WS_R2 = 7 * MB + 512 * 1024
WS_ST2 = 7 * MB
WS_SIZE = 40 * MB

KA_X, KA_WQKV, KA_WO, KA_BX, KA_WG, KA_WU, KA_WD, KA_OUT, KA_DBG, KA_WS = [8 * i for i in range(10)]

def kernel_header(name):
    return f""".globl {name}
.p2align 8
.type {name},@function
{name}:
"""

def kernel_desc(name, vgpr, sgpr=96, accum=None):
    import os
    if os.environ.get("STAMP"): sgpr = 102
    if accum is None:
        accum = (vgpr + 3) // 4 * 4
    return f""".p2align 6
.amdhsa_kernel {name}
  .amdhsa_next_free_vgpr {vgpr}
  .amdhsa_next_free_sgpr {sgpr}
  .amdhsa_accum_offset {accum}
  .amdhsa_group_segment_fixed_size 0
  .amdhsa_kernarg_size 80
  .amdhsa_user_sgpr_count 2
  .amdhsa_user_sgpr_kernarg_segment_ptr 1
  .amdhsa_system_sgpr_workgroup_id_x 1
  .amdhsa_float_denorm_mode_32 3
.end_amdhsa_kernel
"""

def make_srd(a, s, ptr, size):
    a(f"""s_mov_b32 s{s}, s{ptr}
    s_and_b32 s{s+1}, s{ptr+1}, 0xffff
    s_mov_b32 s{s+2}, {size}
    s_mov_b32 s{s+3}, 0x00020000""")

def f32bits(x):
    import struct
    return struct.unpack("<I", struct.pack("<f", x))[0]

import os
STAMP = bool(os.environ.get("STAMP"))
WS_STAMP = 36 * MB
def stamp_begin(a):
    if STAMP:
        a("s_memtime s[80:81]\ns_memrealtime s[82:83]\ns_load_dwordx2 s[88:89], s[0:1], %d\ns_load_dwordx2 s[94:95], s[0:1], %d\nv_readfirstlane_b32 s75, v0\ns_mov_b32 s93, s2" % (KA_WS, KA_DBG))
def stamp_mid(a, idx):
    if os.environ.get('HSTAMP'): return
    if STAMP:
        a(f"s_memtime s[90:91]\ns_waitcnt lgkmcnt(0)\ns_sub_u32 s{96+idx}, s90, s80")
HSTAMP = bool(os.environ.get("HSTAMP"))
def hstamp_end(a):
    l = a.newlabel("hst")
    a(f"""s_waitcnt vmcnt(0)
    s_memrealtime s[86:87]
    s_waitcnt lgkmcnt(0)
    s_or_b32 s92, s93, s75
    s_cbranch_scc1 {l}_{id(a)%100000}
    s_bfe_u32 s92, s94, 0x50009
    s_and_b32 s76, s94, 0xffffc1ff
    s_and_b32 s77, s95, 0xffff
    s_mov_b32 s78, 256
    s_mov_b32 s79, 0x00020000
    s_lshl_b32 s92, s92, 3
    s_mov_b64 exec, 1
    v_mov_b32 v0, s82
    v_mov_b32 v1, s86
    v_mov_b32 v2, 0
    buffer_store_dwordx2 v[0:1], v2, s[76:79], s92 offen""")
    a.label(f"{l}_{id(a)%100000}")
def stamp_end(a, vtmp=8):
    if HSTAMP:
        hstamp_end(a); return
    if STAMP:
        a(f"""s_waitcnt vmcnt(0)
        s_memtime s[84:85]
        s_memrealtime s[86:87]
        s_waitcnt lgkmcnt(0)
        s_mov_b64 exec, -1
        s_sub_u32 s84, s84, s80
        s_mov_b32 s76, s88
        s_and_b32 s77, s89, 0xffff
        s_mov_b32 s78, {WS_SIZE}
        s_mov_b32 s79, 0x00020000
        s_bfe_u32 s92, s94, 0x50009
        s_lshl_b32 s92, s92, 18
        s_lshl_b32 s91, s93, 10
        s_add_u32 s92, s92, s91
        s_add_u32 s92, s92, {WS_STAMP}
        v_mov_b32 v{vtmp}, s75
        v_mov_b32 v0, s82
        v_mov_b32 v1, s86
        v_mov_b32 v2, s84
        v_mov_b32 v3, s96
        v_mov_b32 v4, s97
        v_mov_b32 v5, s98
        v_mov_b32 v6, s99
        v_mov_b32 v7, s100
        s_mov_b64 exec, 1
        buffer_store_dwordx4 v[0:3], v{vtmp}, s[76:79], s92 offen
        buffer_store_dwordx4 v[4:7], v{vtmp}, s[76:79], s92 offen offset:16""")
```

```python
from common import *
from k_qkv import QSCALE, VmTracker

def stats4_final(a, ST1, ST2, T, vMEAN, vRSTD):
    for i in range(4):
        a(f"v_cvt_f64_f32 v[{T+2*i}:{T+2*i+1}], v{ST1+i}")
    for i in range(4):
        a(f"v_cvt_f64_f32 v[{T+8+2*i}:{T+8+2*i+1}], v{ST2+i}")
    a(f"""v_add_f64 v[{T}:{T+1}], v[{T}:{T+1}], v[{T+2}:{T+3}]
    v_add_f64 v[{T+4}:{T+5}], v[{T+4}:{T+5}], v[{T+6}:{T+7}]
    v_add_f64 v[{T+8}:{T+9}], v[{T+8}:{T+9}], v[{T+10}:{T+11}]
    v_add_f64 v[{T+12}:{T+13}], v[{T+12}:{T+13}], v[{T+14}:{T+15}]
    v_add_f64 v[{T}:{T+1}], v[{T}:{T+1}], v[{T+4}:{T+5}]
    v_add_f64 v[{T+8}:{T+9}], v[{T+8}:{T+9}], v[{T+12}:{T+13}]
    s_nop 1
    v_mov_b32 v{T+2}, v{T}
    v_mov_b32 v{T+3}, v{T+1}
    v_mov_b32 v{T+10}, v{T+8}
    v_mov_b32 v{T+11}, v{T+9}
    s_nop 1
    v_permlane32_swap_b32 v{T}, v{T+2}
    v_permlane32_swap_b32 v{T+1}, v{T+3}
    v_permlane32_swap_b32 v{T+8}, v{T+10}
    v_permlane32_swap_b32 v{T+9}, v{T+11}
    s_nop 1
    v_add_f64 v[{T}:{T+1}], v[{T}:{T+1}], v[{T+2}:{T+3}]
    v_add_f64 v[{T+8}:{T+9}], v[{T+8}:{T+9}], v[{T+10}:{T+11}]
    v_ldexp_f64 v[{T}:{T+1}], v[{T}:{T+1}], -9
    v_ldexp_f64 v[{T+8}:{T+9}], v[{T+8}:{T+9}], -9
    v_fma_f64 v[{T+8}:{T+9}], -v[{T}:{T+1}], v[{T}:{T+1}], v[{T+8}:{T+9}]
    v_cvt_f32_f64 v{vMEAN}, v[{T}:{T+1}]
    v_cvt_f32_f64 v{vRSTD}, v[{T+8}:{T+9}]
    v_max_f32 v{vRSTD}, 0, v{vRSTD}
    v_add_f32 v{vRSTD}, {hex(f32bits(1e-5))}, v{vRSTD}
    v_rsq_f32 v{vRSTD}, v{vRSTD}
    s_nop 0""")

def gen_qkvn(name):
    a = Asm()
    ACC = 0; BF = 48; AF = 84; ST1 = 96; ST2 = 100; CS = 104
    VLANE = 108; VA = 109; VDA = [110, 111]; VDB = 112; VRA = [113, 114, 115, 116, 117, 118, 119, 120]; VRB = [240, 241, 242, 243, 244, 245, 246, 247]
    T = 124; E = 144; CS2 = 250
    vMEAN, vRSTD = 140, 141
    R = 4; SLOT = 32768
    XC_OFF = R * SLOT
    PV_OFF = XC_OFF + 8192
    LDS = PV_OFF + 2048
    sX, sW, sWS = 12, 16, 20
    sRB, sCB, sWAVE, sRG, sCBT = 24, 25, 26, 27, 28
    sA0, sA1, sB0, sB1, sLA, sONES = 29, 30, 31, 32, 33, 46
    end = f"{name}_end"
    a(f"""s_cmp_ge_u32 s2, 256
    s_cbranch_scc1 {end}_real""")
    stamp_begin(a)
    a(f"""s_load_dwordx4 s[4:7], s[0:1], {KA_X}
    s_load_dwordx2 s[8:9], s[0:1], {KA_WS}
    v_and_b32 v{VLANE}, 63, v0
    v_lshrrev_b32 v{T}, 6, v0
    s_and_b32 s34, s2, 7
    s_lshr_b32 s35, s2, 3
    v_readfirstlane_b32 s{sWAVE}, v{T}
    v_lshlrev_b32 v{VA}, 4, v{VLANE}
    s_and_b32 s{sRB}, s34, 3
    s_lshl_b32 s{sRB}, s{sRB}, 3
    s_and_b32 s36, s35, 7
    s_add_u32 s{sRB}, s{sRB}, s36
    s_lshr_b32 s{sCB}, s34, 2
    s_lshl_b32 s{sCB}, s{sCB}, 2
    s_lshr_b32 s36, s35, 3
    s_add_u32 s{sCB}, s{sCB}, s36
    v_lshrrev_b32 v{T}, 3, v{VLANE}
    v_and_b32 v{T+1}, 7, v{VLANE}
    v_lshrrev_b32 v{T+2}, 4, v{VLANE}
    v_xor_b32 v{T+3}, v{T+1}, v{T+2}
    v_lshlrev_b32 v{T+4}, 10, v{T}
    v_lshl_add_u32 v{VDA[0]}, v{T+3}, 4, v{T+4}
    v_xor_b32 v{T+3}, 4, v{T+3}
    v_lshl_add_u32 v{VDA[1]}, v{T+3}, 4, v{T+4}
    v_and_b32 v{T+2}, 1, v{T+2}
    v_lshlrev_b32 v{T+2}, 2, v{T+2}
    v_xor_b32 v{T+3}, v{T+1}, v{T+2}
    v_mul_u32_u24 v{T+4}, 3072, v{T}
    v_lshl_add_u32 v{VDB}, v{T+3}, 4, v{T+4}
    s_lshl_b32 s{sA0}, s{sRB}, 16
    s_lshl_b32 s36, s{sWAVE}, 14
    s_add_u32 s{sA0}, s{sA0}, s36
    s_add_u32 s{sA1}, s{sA0}, 7168
    s_mul_i32 s{sB0}, s{sWAVE}, {16*3072}
    s_lshl_b32 s36, s{sCB}, 7
    s_add_u32 s{sB0}, s{sB0}, s36
    s_add_u32 s{sB1}, s{sB0}, {8*3072-1024}
    s_lshl_b32 s{sLA}, s{sWAVE}, 11
    s_mov_b32 s14, {2048*1024}
    s_mov_b32 s15, 0x00020000
    s_mov_b32 s18, {512*3072}
    s_mov_b32 s19, 0x00020000
    s_waitcnt lgkmcnt(0)
    s_mov_b32 s12, s4
    s_and_b32 s13, s5, 0xffff
    s_mov_b32 s16, s6
    s_and_b32 s17, s7, 0xffff""")
    vm = VmTracker()
    def ld(c, j):
        base = (c % R) * SLOT
        if j == 0:
            a(f"s_add_u32 m0, s{sLA}, {base}\ns_nop 0")
            a(f"buffer_load_dwordx4 v{VDA[0]}, s[{sX}:{sX+3}], s{sA0} offen lds")
        elif j == 1:
            a(f"buffer_load_dwordx4 v{VDA[1]}, s[{sX}:{sX+3}], s{sA1} offen offset:1024 lds")
            a(f"s_add_u32 s{sA0}, s{sA0}, 128\ns_add_u32 s{sA1}, s{sA1}, 128")
        else:
            blk = (j - 2) // 2
            if j % 2 == 0:
                a(f"s_add_u32 m0, s{sLA}, {base+8192+blk*8192}\ns_add_u32 s47, s{sB0}, {blk*1024}")
                a(f"buffer_load_dwordx4 v{VDB}, s[{sW}:{sW+3}], s47 offen lds")
            else:
                a(f"s_add_u32 s47, s{sB1}, {blk*1024}")
                a(f"buffer_load_dwordx4 v{VDB}, s[{sW}:{sW+3}], s47 offen offset:1024 lds")
                if j == 7:
                    a(f"s_add_u32 s{sB0}, s{sB0}, {64*3072}\ns_add_u32 s{sB1}, s{sB1}, {64*3072}")
        vm.issue(("C", c))
    def touch():
        a(f"""v_lshrrev_b32 v{T+8}, 2, v{VLANE}
        v_lshlrev_b32 v{T+8}, 7, v{T+8}
        s_lshl_b32 s38, s2, 13
        s_lshl_b32 s40, s{sWAVE}, 11
        s_add_u32 s38, s38, s40
        s_mul_i32 s39, s2, 6144
        s_mul_i32 s40, s{sWAVE}, 1536
        s_add_u32 s39, s39, s40
        buffer_load_dword v{E}, v{T+8}, s[{sX}:{sX+3}], s38 offen
        buffer_load_dword v{E+1}, v{T+8}, s[{sW}:{sW+3}], s39 offen""")
        vm.issue(("T", 0)); vm.issue(("T", 0))
    TP = os.environ.get("TOUCHP", "1")
    if TP == "0": touch()
    for j in range(8): ld(0, j)
    if TP == "1": touch()
    for j in range(6): ld(1, j)
    a(f"""s_and_b32 s36, s{sWAVE}, 1
    s_lshr_b32 s37, s{sWAVE}, 1
    s_lshl_b32 s{sRG}, s{sRB}, 1
    s_add_u32 s{sRG}, s{sRG}, s36
    s_lshl_b32 s{sCBT}, s{sCB}, 1
    s_add_u32 s{sCBT}, s{sCBT}, s37
    s_mov_b32 s{sONES}, 0x3f803f80
    s_mov_b32 s48, s36
    s_mov_b32 s49, s37
    s_mov_b32 s20, s8
    s_and_b32 s21, s9, 0xffff
    s_mov_b32 s22, {WS_SIZE}
    s_mov_b32 s23, 0x00020000
    v_and_b32 v{T}, 31, v{VLANE}
    v_lshrrev_b32 v{T+1}, 5, v{VLANE}
    v_bfe_u32 v{T+2}, v{VLANE}, 1, 3
    v_xor_b32 v{T+2}, v{T+2}, v{T+1}
    v_lshlrev_b32 v{T+3}, 7, v{T}
    s_lshl_b32 s38, s36, 12
    v_add_u32 v{T+3}, s38, v{T+3}""")
    a(f"s_lshl_b32 s38, s{sWAVE}, 1\nv_xor_b32 v{T+2}, s38, v{T+2}")
    for q in range(4):
        a(f"""v_xor_b32 v{T+4}, {2*q}, v{T+2}
        v_lshl_add_u32 v{VRA[q]}, v{T+4}, 4, v{T+3}
        v_add_u32 v{VRA[4+q]}, {2*SLOT}, v{VRA[q]}""")
    a(f"""v_lshlrev_b32 v{T+4}, 3, v{T+1}
    v_bfe_u32 v{T+5}, v{VLANE}, 2, 2
    v_add_u32 v{T+4}, v{T+4}, v{T+5}
    v_lshlrev_b32 v{T+4}, 7, v{T+4}
    v_bfe_u32 v{T+5}, v{VLANE}, 4, 1
    v_lshlrev_b32 v{T+5}, 5, v{T+5}
    v_and_b32 v{T+6}, 3, v{VLANE}
    v_lshlrev_b32 v{T+6}, 3, v{T+6}
    v_bfe_u32 v{T+7}, v{VLANE}, 3, 1
    v_lshlrev_b32 v{T+7}, 6, v{T+7}
    s_lshl_b32 s38, s37, 6
    v_xor_b32 v{T+7}, s38, v{T+7}
    v_add3_u32 v{T+4}, v{T+4}, v{T+5}, v{T+6}
    v_add3_u32 v{T+4}, v{T+4}, v{T+7}, 0""")
    for q in range(4):
        a(f"""s_xor_b32 s38, s{sWAVE}, {q}
        s_lshl_b32 s38, s38, 11
        s_add_u32 s38, s38, 8192
        v_add_u32 v{VRB[q]}, s38, v{T+4}
        v_add_u32 v{VRB[4+q]}, {2*SLOT}, v{VRB[q]}""")
    for i in range(4):
        a(f"v_mov_b32 v{ST1+i}, 0\nv_mov_b32 v{ST2+i}, 0")
    for i in range(4):
        a(f"v_mov_b32 v{CS+i}, 0")
    for i in range(3):
        a(f"v_mov_b32 v{CS2+i}, 0")
    a("s_mov_b32 s50, 0xffff0000")
    def reads(s):
        c, q = s // 4, s % 4
        sl = c % R
        hi = sl // 2; off = (sl % 2) * SLOT
        af = AF + 4 * (s % 3); bf = BF + 12 * (s % 3)
        a(f"ds_read_b128 v[{af}:{af+3}], v{VRA[4*hi+q]} offset:{off}")
        for t in range(3):
            o = off + t * 8192
            a(f"ds_read_b64_tr_b16 v[{bf+4*t}:{bf+4*t+1}], v{VRB[4*hi+q]} offset:{o}")
            a(f"ds_read_b64_tr_b16 v[{bf+4*t+2}:{bf+4*t+3}], v{VRB[4*hi+q]} offset:{o+512}")
    pend = [(1, 6), (1, 7)] + [(c, j) for c in range(2, 8) for j in range(8)]
    allowed = 2
    def issue(n, maxc):
        k = 0
        while pend and k < n and pend[0][0] <= maxc:
            c, j = pend.pop(0); ld(c, j); k += 1
    stamp_mid(a, 1)
    a(f"s_waitcnt vmcnt({vm.wait_for({('C',0)})})\ns_barrier")
    stamp_mid(a, 2)
    reads(0)
    maxc = 2
    CSP = int(os.environ.get('CSP', '0'))
    for s in range(32):
        if s + 1 < 32:
            if (s + 1) % 4 == 0:
                cn = (s + 1) // 4
                a(f"s_waitcnt vmcnt({vm.wait_for({('C', cn)})})\ns_barrier")
                maxc = cn + 2
            reads(s + 1)
            a("s_waitcnt lgkmcnt(7)")
        else:
            a("s_waitcnt lgkmcnt(0)")
        af = AF + 4 * (s % 3); bf = BF + 12 * (s % 3)
        def C(t): return "0" if s == 0 else vr(ACC + 16 * t, 16)
        if not os.environ.get("QVALU"):
            a(f"v_mfma_f32_32x32x16_bf16 {vr(ACC,16)}, {vr(bf,4)}, {vr(af,4)}, {C(0)}")
            issue(1, maxc)
            a(f"v_mfma_f32_32x32x16_bf16 {vr(ACC+16,16)}, {vr(bf+4,4)}, {vr(af,4)}, {C(1)}")
            issue(1, maxc)
            a(f"v_mfma_f32_32x32x16_bf16 {vr(ACC+32,16)}, {vr(af,4)}, {vr(bf+8,4)}, {C(2)}")
            issue(1, maxc)
            if s % 4 in (0, 1):
                for i in range(4):
                    a(f"v_dot2c_f32_bf16 v{ST1+i}, s{sONES}, v{af+i}")
                    a(f"v_dot2c_f32_bf16 v{ST2+i}, v{af+i}, v{af+i}")
            if s % 4 in (CSP, CSP + 2):
                for i in range(4):
                    for t in range(3):
                        a(f"v_dot2c_f32_bf16 v{CS+t}, s{sONES}, v{bf+4*t+i}")
            continue
        U = E
        def unp(src, d):
            return [f"v_lshlrev_b32 v{d}, 16, v{src}", f"v_and_b32 v{d+1}, s50, v{src}"]
        def stat_ops(half):
            L = []
            for i in (2 * half, 2 * half + 1):
                d = U + 2 * (i % 2)
                L += unp(af + i, d)
                L += [f"v_add_f32 v{ST1+2*(i%2)}, v{ST1+2*(i%2)}, v{d}", f"v_add_f32 v{ST1+2*(i%2)+1}, v{ST1+2*(i%2)+1}, v{d+1}",
                      f"v_fmac_f32 v{ST2+2*(i%2)}, v{d}, v{d}", f"v_fmac_f32 v{ST2+2*(i%2)+1}, v{d+1}, v{d+1}"]
            return L
        def cs_ops(t, half):
            L = []
            for i in (2 * half, 2 * half + 1):
                d = U + 4 + 2 * (i % 2)
                L += unp(bf + 4 * t + i, d)
                L += [f"v_add_f32 v{CS+t}, v{CS+t}, v{d}", f"v_add_f32 v{CS2+t}, v{CS2+t}, v{d+1}"]
            return L
        def two_way(sreg, f):
            l1 = a.newlabel(name + "_h"); l2 = a.newlabel(name + "_j")
            a(f"s_cmp_lg_u32 s{sreg}, 0\ns_cbranch_scc1 {l1}")
            for x in f(0): a(x)
            a(f"s_branch {l2}")
            a.label(l1)
            for x in f(1): a(x)
            a.label(l2)
        a(f"v_mfma_f32_32x32x16_bf16 {vr(ACC,16)}, {vr(bf,4)}, {vr(af,4)}, {C(0)}")
        issue(1, maxc)
        two_way(49, stat_ops)
        a(f"v_mfma_f32_32x32x16_bf16 {vr(ACC+16,16)}, {vr(bf+4,4)}, {vr(af,4)}, {C(1)}")
        issue(1, maxc)
        two_way(48, lambda h: cs_ops(0, h) + cs_ops(1, h)[:4])
        a(f"v_mfma_f32_32x32x16_bf16 {vr(ACC+32,16)}, {vr(af,4)}, {vr(bf+8,4)}, {C(2)}")
        issue(1, maxc)
        two_way(48, lambda h: cs_ops(1, h)[4:] + cs_ops(2, h))
    assert not pend
    stamp_mid(a, 3)
    a("s_nop 2")
    for i in range(3): a(f"v_add_f32 v{CS+i}, v{CS+i}, v{CS2+i}")
    X0 = E + 96
    for i in range(4):
        a(f"v_cvt_f64_f32 v[{E+2*i}:{E+2*i+1}], v{ST1+i}")
    for i in range(4):
        a(f"v_cvt_f64_f32 v[{E+8+2*i}:{E+8+2*i+1}], v{ST2+i}")
    a(f"""s_lshl_b32 s34, s{sWAVE}, 11
    s_add_u32 s34, s34, {XC_OFF}
    v_add_u32 v{T+2}, s34, v{VA}
    ds_write_b128 v{T+2}, v[{CS}:{CS+3}] offset:1024
    v_add_f64 v[{E}:{E+1}], v[{E}:{E+1}], v[{E+2}:{E+3}]
    v_add_f64 v[{E+4}:{E+5}], v[{E+4}:{E+5}], v[{E+6}:{E+7}]
    v_add_f64 v[{E+8}:{E+9}], v[{E+8}:{E+9}], v[{E+10}:{E+11}]
    v_add_f64 v[{E+12}:{E+13}], v[{E+12}:{E+13}], v[{E+14}:{E+15}]
    v_add_f64 v[{E}:{E+1}], v[{E}:{E+1}], v[{E+4}:{E+5}]
    v_add_f64 v[{E+2}:{E+3}], v[{E+8}:{E+9}], v[{E+12}:{E+13}]
    v_xor_b32 v{T+3}, 4096, v{T+2}
    v_xor_b32 v{T+4}, 2048, v{T+2}
    ds_write_b128 v{T+2}, v[{E}:{E+3}]
    s_lshl_b32 s34, s{sWAVE}, 9
    s_add_u32 s35, s34, {PV_OFF}
    v_lshl_add_u32 v{T+5}, v{T}, 2, s35
    v_lshl_add_u32 v{T+6}, v{T+1}, 4, s35
    s_waitcnt lgkmcnt(0)
    s_barrier
    ds_read_b128 v[{X0}:{X0+3}], v{T+4} offset:1024
    ds_read_b128 v[{E+4}:{E+7}], v{T+3}
    s_waitcnt lgkmcnt(1)
    v_add_f32 v{CS}, v{CS}, v{X0}
    v_add_f32 v{CS+1}, v{CS+1}, v{X0+1}
    v_add_f32 v{CS+2}, v{CS+2}, v{X0+2}
    v_mov_b32 v{T+2}, v{CS}
    v_mov_b32 v{T+3}, v{CS+1}
    v_mov_b32 v{T+4}, v{CS+2}
    s_nop 1
    v_permlane32_swap_b32 v{CS}, v{T+2}
    v_permlane32_swap_b32 v{CS+1}, v{T+3}
    v_permlane32_swap_b32 v{CS+2}, v{T+4}
    s_nop 1
    v_add_f32 v{CS}, v{CS}, v{T+2}
    v_add_f32 v{CS+1}, v{CS+1}, v{T+3}
    v_add_f32 v{CS+2}, v{CS+2}, v{T+4}
    ds_write_b32 v{T+5}, v{CS} offset:256
    ds_write_b32 v{T+5}, v{CS+1} offset:384""")
    BQ = E + 16; BK = E + 32; AVv = E + 48; BV = E + 64; P = E + 80
    for g in range(4):
        a(f"ds_read_b128 v[{BQ+4*g}:{BQ+4*g+3}], v{T+6} offset:{256+32*g}")
        a(f"ds_read_b128 v[{BK+4*g}:{BK+4*g+3}], v{T+6} offset:{384+32*g}")
    a(f"""s_waitcnt lgkmcnt(10)
    v_add_f64 v[{E}:{E+1}], v[{E}:{E+1}], v[{E+4}:{E+5}]
    v_add_f64 v[{E+2}:{E+3}], v[{E+2}:{E+3}], v[{E+6}:{E+7}]
    s_nop 1
    v_mov_b32 v{E+4}, v{E}
    v_mov_b32 v{E+5}, v{E+1}
    v_mov_b32 v{E+6}, v{E+2}
    v_mov_b32 v{E+7}, v{E+3}
    s_nop 1
    v_permlane32_swap_b32 v{E}, v{E+4}
    v_permlane32_swap_b32 v{E+1}, v{E+5}
    v_permlane32_swap_b32 v{E+2}, v{E+6}
    v_permlane32_swap_b32 v{E+3}, v{E+7}
    s_nop 1
    v_add_f64 v[{E}:{E+1}], v[{E}:{E+1}], v[{E+4}:{E+5}]
    v_add_f64 v[{E+2}:{E+3}], v[{E+2}:{E+3}], v[{E+6}:{E+7}]
    v_ldexp_f64 v[{E}:{E+1}], v[{E}:{E+1}], -9
    v_ldexp_f64 v[{E+2}:{E+3}], v[{E+2}:{E+3}], -9
    v_fma_f64 v[{E+2}:{E+3}], -v[{E}:{E+1}], v[{E}:{E+1}], v[{E+2}:{E+3}]
    v_cvt_f32_f64 v{vMEAN}, v[{E}:{E+1}]
    v_cvt_f32_f64 v{vRSTD}, v[{E+2}:{E+3}]
    v_max_f32 v{vRSTD}, 0, v{vRSTD}
    v_add_f32 v{vRSTD}, {hex(f32bits(1e-5))}, v{vRSTD}
    v_rsq_f32 v{vRSTD}, v{vRSTD}
    s_nop 0""")
    vNB, vRQ, vNQ = T + 7, T + 8, T + 9
    a(f"""v_mul_f32 v{vNB}, v{vMEAN}, v{vRSTD}
    v_sub_f32 v{vNB}, 0, v{vNB}
    ds_write_b32 v{T+5}, v{vRSTD}
    ds_write_b32 v{T+5}, v{vNB} offset:128""")
    for g in range(4):
        a(f"ds_read_b128 v[{AVv+4*g}:{AVv+4*g+3}], v{T+6} offset:{32*g}")
        a(f"ds_read_b128 v[{BV+4*g}:{BV+4*g+3}], v{T+6} offset:{128+32*g}")
    a(f"""v_mul_f32 v{vRQ}, {hex(f32bits(QSCALE))}, v{vRSTD}
    v_mul_f32 v{vNQ}, {hex(f32bits(QSCALE))}, v{vNB}
    v_bfe_u32 v{T+10}, v{VLANE}, 4, 1
    v_lshlrev_b32 v{T+10}, 16, v{T+10}
    v_and_b32 v{T+11}, 15, v{VLANE}
    v_lshlrev_b32 v{T+11}, 4, v{T+11}
    v_lshlrev_b32 v{T+12}, 8, v{T+1}
    v_add3_u32 v{T+10}, v{T+10}, v{T+11}, v{T+12}
    v_lshrrev_b32 v{T+11}, 2, v{VLANE}
    s_lshl_b32 s37, s{sCBT}, 17
    s_lshl_b32 s38, s{sRG}, 10
    s_add_u32 s37, s37, s38
    s_add_u32 s39, s37, {WS_V}
    s_add_u32 s40, s37, {WS_Q}
    s_add_u32 s41, s40, 65536
    s_add_u32 s42, s37, {WS_K}
    s_add_u32 s43, s42, 65536
    s_lshl_b32 s44, s{sCBT}, 10
    s_lshl_b32 s45, s{sRG}, 3
    s_add_u32 s44, s44, s45
    s_add_u32 s44, s44, {WS_KMAX}
    s_waitcnt lgkmcnt(10)""")
    for i in range(16):
        a(f"v_mul_f32 v{BK+i}, v{BK+i}, v{vNB}")
    for i in range(16):
        a(f"v_fma_f32 v{ACC+16+i}, v{ACC+16+i}, v{vRSTD}, v{BK+i}")
    NA, NB = T + 12, T + 13
    a(f"v_mul_f32 v{NA}, v{ACC+16}, v{ACC+16}\nv_mul_f32 v{NB}, v{ACC+24}, v{ACC+24}")
    for i in range(1, 8):
        a(f"v_fmac_f32 v{NA}, v{ACC+16+i}, v{ACC+16+i}\nv_fmac_f32 v{NB}, v{ACC+24+i}, v{ACC+24+i}")
    a(f"v_mov_b32 v{T+14}, v{NA}\nv_mov_b32 v{T+15}, v{NB}")
    for i in range(8):
        a(f"v_cvt_pk_bf16_f32 v{P+i}, v{ACC+16+2*i}, v{ACC+16+2*i+1}")
    a(f"""v_permlane32_swap_b32 v{NA}, v{T+14}
    v_permlane32_swap_b32 v{NB}, v{T+15}
    buffer_store_dwordx4 v[{P}:{P+3}], v{VA}, s[{sWS}:{sWS+3}], s42 offen sc1
    buffer_store_dwordx4 v[{P+4}:{P+7}], v{VA}, s[{sWS}:{sWS+3}], s43 offen sc1
    v_add_f32 v{NA}, v{NA}, v{T+14}
    v_add_f32 v{NB}, v{NB}, v{T+15}""")
    dpps = ["quad_perm:[1,0,3,2]", "quad_perm:[2,3,0,1]", "row_half_mirror", "row_mirror"]
    for i in range(16):
        a(f"v_mul_f32 v{BQ+i}, v{BQ+i}, v{vNQ}")
        if i % 4 == 3:
            d = dpps[i // 4]
            a(f"v_max_f32_dpp v{NA}, v{NA}, v{NA} {d} row_mask:0xf bank_mask:0xf\nv_max_f32_dpp v{NB}, v{NB}, v{NB} {d} row_mask:0xf bank_mask:0xf")
    for i in range(16):
        a(f"v_fma_f32 v{ACC+i}, v{ACC+i}, v{vRQ}, v{BQ+i}")
    for i in range(8):
        a(f"v_cvt_pk_bf16_f32 v{P+8+i}, v{ACC+2*i}, v{ACC+2*i+1}")
    a(f"""buffer_store_dwordx4 v[{P+8}:{P+11}], v{VA}, s[{sWS}:{sWS+3}], s40 offen sc1
    buffer_store_dwordx4 v[{P+12}:{P+15}], v{VA}, s[{sWS}:{sWS+3}], s41 offen sc1
    s_waitcnt lgkmcnt(0)""")
    for i in range(16):
        a(f"v_mul_f32 v{BV+i}, v{BV+i}, v{CS+2}")
    for i in range(16):
        a(f"v_fma_f32 v{ACC+32+i}, v{ACC+32+i}, v{AVv+i}, v{BV+i}")
    for i in range(8):
        a(f"v_cvt_pk_bf16_f32 v{P+16+i}, v{ACC+32+2*i}, v{ACC+32+2*i+1}")
    a(f"""buffer_store_dwordx4 v[{P+16}:{P+19}], v{T+10}, s[{sWS}:{sWS+3}], s39 offen sc1
    buffer_store_dwordx4 v[{P+20}:{P+23}], v{T+10}, s[{sWS}:{sWS+3}], s39 offen offset:512 sc1
    s_mov_b64 exec, 0x10001
    buffer_store_dword v{NA}, v{T+11}, s[{sWS}:{sWS+3}], s44 offen
    buffer_store_dword v{NB}, v{T+11}, s[{sWS}:{sWS+3}], s44 offen offset:512""")
    a.label(end)
    stamp_end(a)
    a.label(end + "_real")
    a("s_endpgm")
    return kernel_header(name) + a.text(), kernel_desc(name, 256), LDS
```

```python
from common import *
from k_qkv import QSCALE, VmTracker

def stats4_final(a, ST1, ST2, T, vMEAN, vRSTD):
    for i in range(4):
        a(f"v_cvt_f64_f32 v[{T+2*i}:{T+2*i+1}], v{ST1+i}")
    for i in range(4):
        a(f"v_cvt_f64_f32 v[{T+8+2*i}:{T+8+2*i+1}], v{ST2+i}")
    a(f"""v_add_f64 v[{T}:{T+1}], v[{T}:{T+1}], v[{T+2}:{T+3}]
    v_add_f64 v[{T+4}:{T+5}], v[{T+4}:{T+5}], v[{T+6}:{T+7}]
    v_add_f64 v[{T+8}:{T+9}], v[{T+8}:{T+9}], v[{T+10}:{T+11}]
    v_add_f64 v[{T+12}:{T+13}], v[{T+12}:{T+13}], v[{T+14}:{T+15}]
    v_add_f64 v[{T}:{T+1}], v[{T}:{T+1}], v[{T+4}:{T+5}]
    v_add_f64 v[{T+8}:{T+9}], v[{T+8}:{T+9}], v[{T+12}:{T+13}]
    s_nop 1
    v_mov_b32 v{T+2}, v{T}
    v_mov_b32 v{T+3}, v{T+1}
    v_mov_b32 v{T+10}, v{T+8}
    v_mov_b32 v{T+11}, v{T+9}
    s_nop 1
    v_permlane32_swap_b32 v{T}, v{T+2}
    v_permlane32_swap_b32 v{T+1}, v{T+3}
    v_permlane32_swap_b32 v{T+8}, v{T+10}
    v_permlane32_swap_b32 v{T+9}, v{T+11}
    s_nop 1
    v_add_f64 v[{T}:{T+1}], v[{T}:{T+1}], v[{T+2}:{T+3}]
    v_add_f64 v[{T+8}:{T+9}], v[{T+8}:{T+9}], v[{T+10}:{T+11}]
    v_ldexp_f64 v[{T}:{T+1}], v[{T}:{T+1}], -9
    v_ldexp_f64 v[{T+8}:{T+9}], v[{T+8}:{T+9}], -9
    v_fma_f64 v[{T+8}:{T+9}], -v[{T}:{T+1}], v[{T}:{T+1}], v[{T+8}:{T+9}]
    v_cvt_f32_f64 v{vMEAN}, v[{T}:{T+1}]
    v_cvt_f32_f64 v{vRSTD}, v[{T+8}:{T+9}]
    v_max_f32 v{vRSTD}, 0, v{vRSTD}
    v_add_f32 v{vRSTD}, {hex(f32bits(1e-5))}, v{vRSTD}
    v_rsq_f32 v{vRSTD}, v{vRSTD}
    s_nop 0""")

def gen_qkvn(name):
    a = Asm()
    ACC = 0; BF = 48; AF = 84; ST1 = 96; ST2 = 100; CS = 104
    VLANE = 108; VA = 109; VDA = [110, 111]; VDB = 112; VRA = [113, 114, 115, 116, 117, 118, 119, 120]; VRB = [240, 241, 242, 243, 244, 245, 246, 247]
    T = 124; E = 144; CS2 = 250
    vMEAN, vRSTD = 140, 141
    R = 4; SLOT = 32768
    XC_OFF = R * SLOT
    PV_OFF = XC_OFF + 8192
    LDS = PV_OFF + 2048
    sX, sW, sWS = 12, 16, 20
    sRB, sCB, sWAVE, sRG, sCBT = 24, 25, 26, 27, 28
    sA0, sA1, sB0, sB1, sLA, sONES = 29, 30, 31, 32, 33, 46
    end = f"{name}_end"
    a(f"""s_cmp_ge_u32 s2, 256
    s_cbranch_scc1 {end}_real""")
    stamp_begin(a)
    a(f"""s_load_dwordx4 s[4:7], s[0:1], {KA_X}
    s_load_dwordx2 s[8:9], s[0:1], {KA_WS}
    v_and_b32 v{VLANE}, 63, v0
    v_lshrrev_b32 v{T}, 6, v0
    s_and_b32 s34, s2, 7
    s_lshr_b32 s35, s2, 3
    v_readfirstlane_b32 s{sWAVE}, v{T}
    v_lshlrev_b32 v{VA}, 4, v{VLANE}
    s_and_b32 s{sRB}, s34, 3
    s_lshl_b32 s{sRB}, s{sRB}, 3
    s_and_b32 s36, s35, 7
    s_add_u32 s{sRB}, s{sRB}, s36
    s_lshr_b32 s{sCB}, s34, 2
    s_lshl_b32 s{sCB}, s{sCB}, 2
    s_lshr_b32 s36, s35, 3
    s_add_u32 s{sCB}, s{sCB}, s36
    v_lshrrev_b32 v{T}, 3, v{VLANE}
    v_and_b32 v{T+1}, 7, v{VLANE}
    v_lshrrev_b32 v{T+2}, 4, v{VLANE}
    v_xor_b32 v{T+3}, v{T+1}, v{T+2}
    v_lshlrev_b32 v{T+4}, 10, v{T}
    v_lshl_add_u32 v{VDA[0]}, v{T+3}, 4, v{T+4}
    v_xor_b32 v{T+3}, 4, v{T+3}
    v_lshl_add_u32 v{VDA[1]}, v{T+3}, 4, v{T+4}
    v_and_b32 v{T+2}, 1, v{T+2}
    v_lshlrev_b32 v{T+2}, 2, v{T+2}
    v_xor_b32 v{T+3}, v{T+1}, v{T+2}
    v_mul_u32_u24 v{T+4}, 3072, v{T}
    v_lshl_add_u32 v{VDB}, v{T+3}, 4, v{T+4}
    s_lshl_b32 s{sA0}, s{sRB}, 16
    s_lshl_b32 s36, s{sWAVE}, 14
    s_add_u32 s{sA0}, s{sA0}, s36
    s_add_u32 s{sA1}, s{sA0}, 7168
    s_mul_i32 s{sB0}, s{sWAVE}, {16*3072}
    s_lshl_b32 s36, s{sCB}, 7
    s_add_u32 s{sB0}, s{sB0}, s36
    s_add_u32 s{sB1}, s{sB0}, {8*3072-1024}
    s_lshl_b32 s{sLA}, s{sWAVE}, 11
    s_mov_b32 s14, {2048*1024}
    s_mov_b32 s15, 0x00020000
    s_mov_b32 s18, {512*3072}
    s_mov_b32 s19, 0x00020000
    s_waitcnt lgkmcnt(0)
    s_mov_b32 s12, s4
    s_and_b32 s13, s5, 0xffff
    s_mov_b32 s16, s6
    s_and_b32 s17, s7, 0xffff""")
    vm = VmTracker()
    def ld(c, j):
        base = (c % R) * SLOT
        if j == 0:
            a(f"s_add_u32 m0, s{sLA}, {base}\ns_nop 0")
            a(f"buffer_load_dwordx4 v{VDA[0]}, s[{sX}:{sX+3}], s{sA0} offen lds")
        elif j == 1:
            a(f"buffer_load_dwordx4 v{VDA[1]}, s[{sX}:{sX+3}], s{sA1} offen offset:1024 lds")
            a(f"s_add_u32 s{sA0}, s{sA0}, 128\ns_add_u32 s{sA1}, s{sA1}, 128")
        else:
            blk = (j - 2) // 2
            if j % 2 == 0:
                a(f"s_add_u32 m0, s{sLA}, {base+8192+blk*8192}\ns_add_u32 s47, s{sB0}, {blk*1024}")
                a(f"buffer_load_dwordx4 v{VDB}, s[{sW}:{sW+3}], s47 offen lds")
            else:
                a(f"s_add_u32 s47, s{sB1}, {blk*1024}")
                a(f"buffer_load_dwordx4 v{VDB}, s[{sW}:{sW+3}], s47 offen offset:1024 lds")
                if j == 7:
                    a(f"s_add_u32 s{sB0}, s{sB0}, {64*3072}\ns_add_u32 s{sB1}, s{sB1}, {64*3072}")
        vm.issue(("C", c))
    def touch():
        a(f"""v_lshrrev_b32 v{T+8}, 2, v{VLANE}
        v_lshlrev_b32 v{T+8}, 7, v{T+8}
        s_lshl_b32 s38, s2, 13
        s_lshl_b32 s40, s{sWAVE}, 11
        s_add_u32 s38, s38, s40
        s_mul_i32 s39, s2, 6144
        s_mul_i32 s40, s{sWAVE}, 1536
        s_add_u32 s39, s39, s40
        buffer_load_dword v{E}, v{T+8}, s[{sX}:{sX+3}], s38 offen
        buffer_load_dword v{E+1}, v{T+8}, s[{sW}:{sW+3}], s39 offen""")
        vm.issue(("T", 0)); vm.issue(("T", 0))
    TP = os.environ.get("TOUCHP", "1")
    if TP == "0": touch()
    for j in range(8): ld(0, j)
    if TP == "1": touch()
    for j in range(6): ld(1, j)
    a(f"""s_and_b32 s36, s{sWAVE}, 1
    s_lshr_b32 s37, s{sWAVE}, 1
    s_lshl_b32 s{sRG}, s{sRB}, 1
    s_add_u32 s{sRG}, s{sRG}, s36
    s_lshl_b32 s{sCBT}, s{sCB}, 1
    s_add_u32 s{sCBT}, s{sCBT}, s37
    s_mov_b32 s{sONES}, 0x3f803f80
    s_mov_b32 s48, s36
    s_mov_b32 s49, s37
    s_mov_b32 s20, s8
    s_and_b32 s21, s9, 0xffff
    s_mov_b32 s22, {WS_SIZE}
    s_mov_b32 s23, 0x00020000
    v_and_b32 v{T}, 31, v{VLANE}
    v_lshrrev_b32 v{T+1}, 5, v{VLANE}
    v_bfe_u32 v{T+2}, v{VLANE}, 1, 3
    v_xor_b32 v{T+2}, v{T+2}, v{T+1}
    v_lshlrev_b32 v{T+3}, 7, v{T}
    s_lshl_b32 s38, s36, 12
    v_add_u32 v{T+3}, s38, v{T+3}""")
    a(f"s_lshl_b32 s38, s{sWAVE}, 1\nv_xor_b32 v{T+2}, s38, v{T+2}")
    for q in range(4):
        a(f"""v_xor_b32 v{T+4}, {2*q}, v{T+2}
        v_lshl_add_u32 v{VRA[q]}, v{T+4}, 4, v{T+3}
        v_add_u32 v{VRA[4+q]}, {2*SLOT}, v{VRA[q]}""")
    a(f"""v_lshlrev_b32 v{T+4}, 3, v{T+1}
    v_bfe_u32 v{T+5}, v{VLANE}, 2, 2
    v_add_u32 v{T+4}, v{T+4}, v{T+5}
    v_lshlrev_b32 v{T+4}, 7, v{T+4}
    v_bfe_u32 v{T+5}, v{VLANE}, 4, 1
    v_lshlrev_b32 v{T+5}, 5, v{T+5}
    v_and_b32 v{T+6}, 3, v{VLANE}
    v_lshlrev_b32 v{T+6}, 3, v{T+6}
    v_bfe_u32 v{T+7}, v{VLANE}, 3, 1
    v_lshlrev_b32 v{T+7}, 6, v{T+7}
    s_lshl_b32 s38, s37, 6
    v_xor_b32 v{T+7}, s38, v{T+7}
    v_add3_u32 v{T+4}, v{T+4}, v{T+5}, v{T+6}
    v_add3_u32 v{T+4}, v{T+4}, v{T+7}, 0""")
    for q in range(4):
        a(f"""s_xor_b32 s38, s{sWAVE}, {q}
        s_lshl_b32 s38, s38, 11
        s_add_u32 s38, s38, 8192
        v_add_u32 v{VRB[q]}, s38, v{T+4}
        v_add_u32 v{VRB[4+q]}, {2*SLOT}, v{VRB[q]}""")
    for i in range(4):
        a(f"v_mov_b32 v{ST1+i}, 0\nv_mov_b32 v{ST2+i}, 0")
    for i in range(4):
        a(f"v_mov_b32 v{CS+i}, 0")
    for i in range(3):
        a(f"v_mov_b32 v{CS2+i}, 0")
    a("s_mov_b32 s50, 0xffff0000")
    def reads(s):
        c, q = s // 4, s % 4
        sl = c % R
        hi = sl // 2; off = (sl % 2) * SLOT
        af = AF + 4 * (s % 3); bf = BF + 12 * (s % 3)
        a(f"ds_read_b128 v[{af}:{af+3}], v{VRA[4*hi+q]} offset:{off}")
        for t in range(3):
            o = off + t * 8192
            a(f"ds_read_b64_tr_b16 v[{bf+4*t}:{bf+4*t+1}], v{VRB[4*hi+q]} offset:{o}")
            a(f"ds_read_b64_tr_b16 v[{bf+4*t+2}:{bf+4*t+3}], v{VRB[4*hi+q]} offset:{o+512}")
    pend = [(1, 6), (1, 7)] + [(c, j) for c in range(2, 8) for j in range(8)]
    allowed = 2
    def issue(n, maxc):
        k = 0
        while pend and k < n and pend[0][0] <= maxc:
            c, j = pend.pop(0); ld(c, j); k += 1
    if os.environ.get("TLBW"):
        sh = int(os.environ["TLBW"])
        a(f"""v_lshlrev_b32 v{T+9}, {sh}, v{VLANE}
        s_lshl_b32 s38, s{sWAVE}, {sh+6}
        buffer_load_dword v{E+2}, v{T+9}, s[{sWS}:{sWS+3}], s38 offen""")
        vm.issue(("T", 0))
    stamp_mid(a, 1)
    a(f"s_waitcnt vmcnt({vm.wait_for({('C',0)})})\ns_barrier")
    stamp_mid(a, 2)
    reads(0)
    maxc = 2
    CSP = int(os.environ.get('CSP', '0'))
    for s in range(32):
        if s + 1 < 32:
            if (s + 1) % 4 == 0:
                cn = (s + 1) // 4
                a(f"s_waitcnt vmcnt({vm.wait_for({('C', cn)})})\ns_barrier")
                maxc = cn + 2
            reads(s + 1)
            a("s_waitcnt lgkmcnt(7)")
        else:
            a("s_waitcnt lgkmcnt(0)")
        af = AF + 4 * (s % 3); bf = BF + 12 * (s % 3)
        def C(t): return "0" if s == 0 else vr(ACC + 16 * t, 16)
        if not os.environ.get("QVALU"):
            a(f"v_mfma_f32_32x32x16_bf16 {vr(ACC,16)}, {vr(bf,4)}, {vr(af,4)}, {C(0)}")
            issue(1, maxc)
            a(f"v_mfma_f32_32x32x16_bf16 {vr(ACC+16,16)}, {vr(bf+4,4)}, {vr(af,4)}, {C(1)}")
            issue(1, maxc)
            a(f"v_mfma_f32_32x32x16_bf16 {vr(ACC+32,16)}, {vr(af,4)}, {vr(bf+8,4)}, {C(2)}")
            issue(1, maxc)
            if s % 4 in (0, 1):
                for i in range(4):
                    a(f"v_dot2c_f32_bf16 v{ST1+i}, s{sONES}, v{af+i}")
                    a(f"v_dot2c_f32_bf16 v{ST2+i}, v{af+i}, v{af+i}")
            if s % 4 in (CSP, CSP + 2):
                for i in range(4):
                    for t in range(3):
                        a(f"v_dot2c_f32_bf16 v{CS+t}, s{sONES}, v{bf+4*t+i}")
            continue
        U = E
        def unp(src, d):
            return [f"v_lshlrev_b32 v{d}, 16, v{src}", f"v_and_b32 v{d+1}, s50, v{src}"]
        def stat_ops(half):
            L = []
            for i in (2 * half, 2 * half + 1):
                d = U + 2 * (i % 2)
                L += unp(af + i, d)
                L += [f"v_add_f32 v{ST1+2*(i%2)}, v{ST1+2*(i%2)}, v{d}", f"v_add_f32 v{ST1+2*(i%2)+1}, v{ST1+2*(i%2)+1}, v{d+1}",
                      f"v_fmac_f32 v{ST2+2*(i%2)}, v{d}, v{d}", f"v_fmac_f32 v{ST2+2*(i%2)+1}, v{d+1}, v{d+1}"]
            return L
        def cs_ops(t, half):
            L = []
            for i in (2 * half, 2 * half + 1):
                d = U + 4 + 2 * (i % 2)
                L += unp(bf + 4 * t + i, d)
                L += [f"v_add_f32 v{CS+t}, v{CS+t}, v{d}", f"v_add_f32 v{CS2+t}, v{CS2+t}, v{d+1}"]
            return L
        def two_way(sreg, f):
            l1 = a.newlabel(name + "_h"); l2 = a.newlabel(name + "_j")
            a(f"s_cmp_lg_u32 s{sreg}, 0\ns_cbranch_scc1 {l1}")
            for x in f(0): a(x)
            a(f"s_branch {l2}")
            a.label(l1)
            for x in f(1): a(x)
            a.label(l2)
        a(f"v_mfma_f32_32x32x16_bf16 {vr(ACC,16)}, {vr(bf,4)}, {vr(af,4)}, {C(0)}")
        issue(1, maxc)
        two_way(49, stat_ops)
        a(f"v_mfma_f32_32x32x16_bf16 {vr(ACC+16,16)}, {vr(bf+4,4)}, {vr(af,4)}, {C(1)}")
        issue(1, maxc)
        two_way(48, lambda h: cs_ops(0, h) + cs_ops(1, h)[:4])
        a(f"v_mfma_f32_32x32x16_bf16 {vr(ACC+32,16)}, {vr(af,4)}, {vr(bf+8,4)}, {C(2)}")
        issue(1, maxc)
        two_way(48, lambda h: cs_ops(1, h)[4:] + cs_ops(2, h))
    assert not pend
    stamp_mid(a, 3)
    a("s_nop 2")
    for i in range(3): a(f"v_add_f32 v{CS+i}, v{CS+i}, v{CS2+i}")
    X0 = E + 96
    for i in range(4):
        a(f"v_cvt_f64_f32 v[{E+2*i}:{E+2*i+1}], v{ST1+i}")
    for i in range(4):
        a(f"v_cvt_f64_f32 v[{E+8+2*i}:{E+8+2*i+1}], v{ST2+i}")
    a(f"""s_lshl_b32 s34, s{sWAVE}, 11
    s_add_u32 s34, s34, {XC_OFF}
    v_add_u32 v{T+2}, s34, v{VA}
    ds_write_b128 v{T+2}, v[{CS}:{CS+3}] offset:1024
    v_add_f64 v[{E}:{E+1}], v[{E}:{E+1}], v[{E+2}:{E+3}]
    v_add_f64 v[{E+4}:{E+5}], v[{E+4}:{E+5}], v[{E+6}:{E+7}]
    v_add_f64 v[{E+8}:{E+9}], v[{E+8}:{E+9}], v[{E+10}:{E+11}]
    v_add_f64 v[{E+12}:{E+13}], v[{E+12}:{E+13}], v[{E+14}:{E+15}]
    v_add_f64 v[{E}:{E+1}], v[{E}:{E+1}], v[{E+4}:{E+5}]
    v_add_f64 v[{E+2}:{E+3}], v[{E+8}:{E+9}], v[{E+12}:{E+13}]
    v_xor_b32 v{T+3}, 4096, v{T+2}
    v_xor_b32 v{T+4}, 2048, v{T+2}
    ds_write_b128 v{T+2}, v[{E}:{E+3}]
    s_lshl_b32 s34, s{sWAVE}, 9
    s_add_u32 s35, s34, {PV_OFF}
    v_lshl_add_u32 v{T+5}, v{T}, 2, s35
    v_lshl_add_u32 v{T+6}, v{T+1}, 4, s35
    s_waitcnt lgkmcnt(0)
    s_barrier
    ds_read_b128 v[{X0}:{X0+3}], v{T+4} offset:1024
    ds_read_b128 v[{E+4}:{E+7}], v{T+3}
    s_waitcnt lgkmcnt(1)
    v_add_f32 v{CS}, v{CS}, v{X0}
    v_add_f32 v{CS+1}, v{CS+1}, v{X0+1}
    v_add_f32 v{CS+2}, v{CS+2}, v{X0+2}
    v_mov_b32 v{T+2}, v{CS}
    v_mov_b32 v{T+3}, v{CS+1}
    v_mov_b32 v{T+4}, v{CS+2}
    s_nop 1
    v_permlane32_swap_b32 v{CS}, v{T+2}
    v_permlane32_swap_b32 v{CS+1}, v{T+3}
    v_permlane32_swap_b32 v{CS+2}, v{T+4}
    s_nop 1
    v_add_f32 v{CS}, v{CS}, v{T+2}
    v_add_f32 v{CS+1}, v{CS+1}, v{T+3}
    v_add_f32 v{CS+2}, v{CS+2}, v{T+4}
    ds_write_b32 v{T+5}, v{CS} offset:256
    ds_write_b32 v{T+5}, v{CS+1} offset:384""")
    BQ = E + 16; BK = E + 32; AVv = E + 48; BV = E + 64; P = E + 80
    for g in range(4):
        a(f"ds_read_b128 v[{BQ+4*g}:{BQ+4*g+3}], v{T+6} offset:{256+32*g}")
        a(f"ds_read_b128 v[{BK+4*g}:{BK+4*g+3}], v{T+6} offset:{384+32*g}")
    a(f"""s_waitcnt lgkmcnt(10)
    v_add_f64 v[{E}:{E+1}], v[{E}:{E+1}], v[{E+4}:{E+5}]
    v_add_f64 v[{E+2}:{E+3}], v[{E+2}:{E+3}], v[{E+6}:{E+7}]
    s_nop 1
    v_mov_b32 v{E+4}, v{E}
    v_mov_b32 v{E+5}, v{E+1}
    v_mov_b32 v{E+6}, v{E+2}
    v_mov_b32 v{E+7}, v{E+3}
    s_nop 1
    v_permlane32_swap_b32 v{E}, v{E+4}
    v_permlane32_swap_b32 v{E+1}, v{E+5}
    v_permlane32_swap_b32 v{E+2}, v{E+6}
    v_permlane32_swap_b32 v{E+3}, v{E+7}
    s_nop 1
    v_add_f64 v[{E}:{E+1}], v[{E}:{E+1}], v[{E+4}:{E+5}]
    v_add_f64 v[{E+2}:{E+3}], v[{E+2}:{E+3}], v[{E+6}:{E+7}]
    v_ldexp_f64 v[{E}:{E+1}], v[{E}:{E+1}], -9
    v_ldexp_f64 v[{E+2}:{E+3}], v[{E+2}:{E+3}], -9
    v_fma_f64 v[{E+2}:{E+3}], -v[{E}:{E+1}], v[{E}:{E+1}], v[{E+2}:{E+3}]
    v_cvt_f32_f64 v{vMEAN}, v[{E}:{E+1}]
    v_cvt_f32_f64 v{vRSTD}, v[{E+2}:{E+3}]
    v_max_f32 v{vRSTD}, 0, v{vRSTD}
    v_add_f32 v{vRSTD}, {hex(f32bits(1e-5))}, v{vRSTD}
    v_rsq_f32 v{vRSTD}, v{vRSTD}
    s_nop 0""")
    vNB, vRQ, vNQ = T + 7, T + 8, T + 9
    a(f"""v_mul_f32 v{vNB}, v{vMEAN}, v{vRSTD}
    v_sub_f32 v{vNB}, 0, v{vNB}
    ds_write_b32 v{T+5}, v{vRSTD}
    ds_write_b32 v{T+5}, v{vNB} offset:128""")
    for g in range(4):
        a(f"ds_read_b128 v[{AVv+4*g}:{AVv+4*g+3}], v{T+6} offset:{32*g}")
        a(f"ds_read_b128 v[{BV+4*g}:{BV+4*g+3}], v{T+6} offset:{128+32*g}")
    a(f"""v_mul_f32 v{vRQ}, {hex(f32bits(QSCALE))}, v{vRSTD}
    v_mul_f32 v{vNQ}, {hex(f32bits(QSCALE))}, v{vNB}
    v_bfe_u32 v{T+10}, v{VLANE}, 4, 1
    v_lshlrev_b32 v{T+10}, 16, v{T+10}
    v_and_b32 v{T+11}, 15, v{VLANE}
    v_lshlrev_b32 v{T+11}, 4, v{T+11}
    v_lshlrev_b32 v{T+12}, 8, v{T+1}
    v_add3_u32 v{T+10}, v{T+10}, v{T+11}, v{T+12}
    v_lshrrev_b32 v{T+11}, 2, v{VLANE}
    s_lshl_b32 s37, s{sCBT}, 17
    s_lshl_b32 s38, s{sRG}, 10
    s_add_u32 s37, s37, s38
    s_add_u32 s39, s37, {WS_V}
    s_add_u32 s40, s37, {WS_Q}
    s_add_u32 s41, s40, 65536
    s_add_u32 s42, s37, {WS_K}
    s_add_u32 s43, s42, 65536
    s_lshl_b32 s44, s{sCBT}, 10
    s_lshl_b32 s45, s{sRG}, 3
    s_add_u32 s44, s44, s45
    s_add_u32 s44, s44, {WS_KMAX}
    s_waitcnt lgkmcnt(10)""")
    for i in range(16):
        a(f"v_mul_f32 v{BK+i}, v{BK+i}, v{vNB}")
    for i in range(16):
        a(f"v_fma_f32 v{ACC+16+i}, v{ACC+16+i}, v{vRSTD}, v{BK+i}")
    NA, NB = T + 12, T + 13
    a(f"v_mul_f32 v{NA}, v{ACC+16}, v{ACC+16}\nv_mul_f32 v{NB}, v{ACC+24}, v{ACC+24}")
    for i in range(1, 8):
        a(f"v_fmac_f32 v{NA}, v{ACC+16+i}, v{ACC+16+i}\nv_fmac_f32 v{NB}, v{ACC+24+i}, v{ACC+24+i}")
    a(f"v_mov_b32 v{T+14}, v{NA}\nv_mov_b32 v{T+15}, v{NB}")
    for i in range(8):
        a(f"v_cvt_pk_bf16_f32 v{P+i}, v{ACC+16+2*i}, v{ACC+16+2*i+1}")
    a(f"""v_permlane32_swap_b32 v{NA}, v{T+14}
    v_permlane32_swap_b32 v{NB}, v{T+15}
    buffer_store_dwordx4 v[{P}:{P+3}], v{VA}, s[{sWS}:{sWS+3}], s42 offen sc1
    buffer_store_dwordx4 v[{P+4}:{P+7}], v{VA}, s[{sWS}:{sWS+3}], s43 offen sc1
    v_add_f32 v{NA}, v{NA}, v{T+14}
    v_add_f32 v{NB}, v{NB}, v{T+15}""")
    dpps = ["quad_perm:[1,0,3,2]", "quad_perm:[2,3,0,1]", "row_half_mirror", "row_mirror"]
    for i in range(16):
        a(f"v_mul_f32 v{BQ+i}, v{BQ+i}, v{vNQ}")
        if i % 4 == 3:
            d = dpps[i // 4]
            a(f"v_max_f32_dpp v{NA}, v{NA}, v{NA} {d} row_mask:0xf bank_mask:0xf\nv_max_f32_dpp v{NB}, v{NB}, v{NB} {d} row_mask:0xf bank_mask:0xf")
    for i in range(16):
        a(f"v_fma_f32 v{ACC+i}, v{ACC+i}, v{vRQ}, v{BQ+i}")
    for i in range(8):
        a(f"v_cvt_pk_bf16_f32 v{P+8+i}, v{ACC+2*i}, v{ACC+2*i+1}")
    a(f"""buffer_store_dwordx4 v[{P+8}:{P+11}], v{VA}, s[{sWS}:{sWS+3}], s40 offen sc1
    buffer_store_dwordx4 v[{P+12}:{P+15}], v{VA}, s[{sWS}:{sWS+3}], s41 offen sc1
    s_waitcnt lgkmcnt(0)""")
    for i in range(16):
        a(f"v_mul_f32 v{BV+i}, v{BV+i}, v{CS+2}")
    for i in range(16):
        a(f"v_fma_f32 v{ACC+32+i}, v{ACC+32+i}, v{AVv+i}, v{BV+i}")
    for i in range(8):
        a(f"v_cvt_pk_bf16_f32 v{P+16+i}, v{ACC+32+2*i}, v{ACC+32+2*i+1}")
    a(f"""buffer_store_dwordx4 v[{P+16}:{P+19}], v{T+10}, s[{sWS}:{sWS+3}], s39 offen sc1
    buffer_store_dwordx4 v[{P+20}:{P+23}], v{T+10}, s[{sWS}:{sWS+3}], s39 offen offset:512 sc1
    s_mov_b64 exec, 0x10001
    buffer_store_dword v{NA}, v{T+11}, s[{sWS}:{sWS+3}], s44 offen
    buffer_store_dword v{NB}, v{T+11}, s[{sWS}:{sWS+3}], s44 offen offset:512""")
    a.label(end)
    stamp_end(a)
    a.label(end + "_real")
    a("s_endpgm")
    return kernel_header(name) + a.text(), kernel_desc(name, 256), LDS
```

```python
from common import *
from k_prep import emit_wunits

def gen_attn(entries):
    a = Asm()
    name = entries[0][0]
    O = 0; CM = 16; S = [32, 48]; P = 64; KF = [72, 76]; VF = [80, 88]; QF = 96
    VKA = 100; VVA = 101; VLANE = 102; VA = 103; T = 104
    STG = 131072
    CNT_OFF = STG + 24576
    LDS = STG + 32768
    sWS = 12
    sHEAD, sQB, sWAVE, sRG, sNOBAR, sIT, sSIDE, sQT, sKH, sNIT, sSECOND = 24, 25, 26, 27, 64, 65, 66, 70, 71, 72, 73
    sVM = 68
    UN = 8
    def emit_vf_init():
        if os.environ.get("ALLONES"):
            for i in range(16): a(f"v_mov_b32 v{VF[0]+i}, 0x3f803f80")
            return
        for i in range(16): a(f"v_mov_b32 v{VF[0]+i}, 0")
        a("s_mov_b32 exec_lo, 0x110000\ns_mov_b32 exec_hi, 0x110000")
        for i in range(16): a(f"v_mov_b32 v{VF[0]+i}, 0x3f803f80")
        a("s_mov_b64 exec, -1")
    body = f"{name}_body"; end = f"{name}_end"; helper = f"{name}_helper"; pro = f"{name}_pro"
    code = ""
    for i, (nm, side) in enumerate(entries):
        code += kernel_header(nm) + f"    s_mov_b32 s{sSIDE}, {int(side)}\n"
        if i + 1 < len(entries):
            code += f"    s_branch {body}\n"
    a.label(body)
    a(f"""s_cmp_ge_u32 s2, 256
    s_cbranch_scc1 {end}_real""")
    stamp_begin(a)
    a(f"""s_load_dwordx2 s[8:9], s[0:1], {KA_WS}
    v_and_b32 v{VLANE}, 63, v0
    v_lshrrev_b32 v{T}, 6, v0
    s_and_b32 s34, s2, 7
    s_lshr_b32 s35, s2, 3
    v_readfirstlane_b32 s{sWAVE}, v{T}
    v_lshlrev_b32 v{VA}, 4, v{VLANE}
    s_lshl_b32 s{sHEAD}, s34, 2
    s_and_b32 s36, s35, 3
    s_add_u32 s{sHEAD}, s{sHEAD}, s36
    s_lshr_b32 s{sQB}, s35, 2
    s_lshl_b32 s36, s{sHEAD}, 16
    s_mov_b32 s14, {WS_SIZE}
    s_mov_b32 s15, 0x00020000
    s_and_b32 s{sQT}, s{sWAVE}, 7
    s_lshr_b32 s{sKH}, s{sWAVE}, 3
    s_lshl_b32 s{sRG}, s{sQB}, 3
    s_add_u32 s{sRG}, s{sRG}, s{sQT}
    s_and_b32 s39, s{sWAVE}, 1
    s_bfe_u32 s40, s{sWAVE}, 0x10001
    s_lshl_b32 s42, s40, 15
    s_lshl_b32 s43, s39, 16
    s_add_u32 s43, s43, s42
    s_lshl_b32 s44, s39, 21
    s_add_u32 s44, s44, s42
    s_add_u32 s44, s44, s36
    s_add_u32 s44, s44, {WS_K}
    s_mov_b32 s{sNOBAR}, 0
    s_cmp_ge_u32 s{sWAVE}, 12
    s_cbranch_scc1 {helper}
    s_bfe_u32 s41, s{sWAVE}, 0x10002
    s_lshl_b32 s41, s41, 11
    s_add_u32 m0, s43, s41
    s_add_u32 s44, s44, s41
    s_waitcnt lgkmcnt(0)
    s_mov_b32 s12, s8
    s_and_b32 s13, s9, 0xffff
    s_cmp_ge_u32 s{sWAVE}, 8
    s_cbranch_scc1 {pro}""")
    for j in range(2):
        a(f"buffer_load_dwordx4 v{VA}, s[{sWS}:{sWS+3}], s44 offen offset:{1024*j} lds")
    a(f"""v_lshlrev_b32 v{T}, 2, v{VLANE}
    v_add_u32 v{T}, {CNT_OFF}, v{T}
    v_mov_b32 v{T+1}, 0
    ds_write_b32 v{T}, v{T+1}""")
    a.label(pro)
    a("s_setprio 3")
    a(f"""s_lshl_b32 s36, s{sHEAD}, 16
    s_lshl_b32 s37, s{sRG}, 10
    s_add_u32 s37, s37, s36
    s_lshl_b32 s38, s{sHEAD}, 9
    s_add_u32 s38, s38, {WS_KMAX}
    v_lshlrev_b32 v{T+1}, 3, v{VLANE}
    buffer_load_dwordx4 v[{QF}:{QF+3}], v{VA}, s[{sWS}:{sWS+3}], s37 offen
    buffer_load_dwordx2 v[{T+2}:{T+3}], v{T+1}, s[{sWS}:{sWS+3}], s38 offen
    s_mov_b32 s{sSECOND}, 0
    s_mov_b32 s{sNIT}, 4
    s_mov_b32 s{sVM}, 0xffff
    s_mov_b32 s{sVM+1}, 0xffff
    v_lshrrev_b32 v{T+4}, 5, v{VLANE}
    v_lshlrev_b32 v{T+4}, 8, v{T+4}
    v_and_b32 v{T+5}, 15, v{VLANE}
    v_lshlrev_b32 v{T+5}, 4, v{T+5}
    v_add_u32 v{T+4}, v{T+4}, v{T+5}
    v_add_u32 v{T+8}, 65536, v{T+4}
    s_lshl_b32 s45, s{sKH}, 15
    v_add_u32 v{VKA}, s45, v{VA}
    v_add_u32 v{VVA}, s45, v{T+8}""")
    emit_vf_init()
    a(f"""v_mov_b32 v{T+6}, 0
    v_mov_b32 v{T+14}, {CNT_OFF}
    s_waitcnt vmcnt(0) lgkmcnt(0)
    v_max_f32 v{T+2}, v{T+2}, v{T+3}""")
    for i in range(4):
        a(f"v_dot2c_f32_bf16 v{T+6}, v{QF+i}, v{QF+i}")
    for dpp in ("quad_perm:[1,0,3,2]", "quad_perm:[2,3,0,1]", "row_half_mirror", "row_mirror"):
        a(f"""s_nop 1
        v_max_f32_dpp v{T+2}, v{T+2}, v{T+2} {dpp} row_mask:0xf bank_mask:0xf""")
    a(f"""v_mov_b32 v{T+7}, v{T+6}
    s_nop 1
    v_permlane32_swap_b32 v{T+6}, v{T+7}
    v_readlane_b32 s46, v{T+2}, 0
    v_readlane_b32 s47, v{T+2}, 16
    v_readlane_b32 s48, v{T+2}, 32
    v_readlane_b32 s49, v{T+2}, 48
    v_add_f32 v{T+6}, v{T+6}, v{T+7}
    s_max_u32 s46, s46, s47
    s_max_u32 s48, s48, s49
    s_max_u32 s46, s46, s48
    s_nop 1
    v_mul_f32 v{T+6}, s46, v{T+6}
    v_sqrt_f32 v{T+6}, v{T+6}
    s_nop 0
    v_mul_f32 v{T+6}, {hex(f32bits(-(1.0 + 2.0**-7)))}, v{T+6}""")
    main = f"{name}_main"
    stamp_mid(a, 1)
    a(f"""s_cmp_lg_u32 s{sNOBAR}, 0
    s_cbranch_scc1 {main}
    s_barrier""")
    a.label(main)
    stamp_mid(a, 2)
    a(f"""ds_read_b128 {vr(KF[0],4)}, v{VKA}
    ds_read_b128 {vr(KF[1],4)}, v{VKA} offset:1024
    s_mov_b64 exec, s[{sVM}:{sVM+1}]
    ds_read_b128 {vr(VF[0],4)}, v{VVA}
    ds_read_b128 {vr(VF[0]+4,4)}, v{VVA} offset:512
    s_mov_b64 exec, -1
    s_mov_b32 s{sIT}, 0""")
    for i in range(16):
        a(f"v_mov_b32 v{CM+i}, v{T+6}")
    for i in range(16):
        a(f"v_mov_b32 v{O+i}, 0")
    for i in range(4):
        a(f"v_mov_b32 v{P+4+i}, 0")
    a(f"""s_waitcnt lgkmcnt(3)
    v_mfma_f32_32x32x16_bf16 {vr(S[0],16)}, {vr(KF[0],4)}, {vr(QF,4)}, {vr(CM,16)}
    s_nop 9""")
    loop = f"{name}_loop"
    a.label(loop)
    for t in range(UN):
        s = S[t % 2]; sn = S[(t + 1) % 2]
        E = [f"v_exp_f32 v{s+i}, v{s+i}" for i in range(16)]
        C = [f"v_cvt_pk_bf16_f32 v{P+i}, v{s+2*i}, v{s+2*i+1}" for i in range(8)]
        NW = int(os.environ.get("WPF", "6"))
        if t == 5 and NW:
            a(f"""s_lshl_b32 s50, s{sIT}, 4
            s_add_u32 s50, s50, s{sWAVE}
            s_sub_u32 s50, s50, 32
            s_cmp_ge_u32 s50, {NW}
            s_cbranch_scc1 {name}_nowpf
            s_and_b32 s50, s2, 7
            s_lshr_b32 s51, s2, 3
            s_lshl_b32 s52, s51, 14
            s_add_u32 s52, s52, {WS_WO}
            s_lshl_b32 s53, s{sWAVE}, 13
            s_add_u32 s52, s52, s53
            s_lshr_b32 s54, s50, 1
            s_mul_i32 s54, s54, {4*32*7168}
            s_mul_i32 s55, s51, 28672
            s_add_u32 s54, s54, s55
            s_add_u32 s54, s54, s53
            s_add_u32 s54, s54, {WS_WGU - 2*8192}
            s_cmp_ge_u32 s{sWAVE}, 2
            s_cselect_b32 s52, s54, s52
            s_mul_i32 s54, s51, 57344
            s_add_u32 s54, s54, s53
            s_add_u32 s54, s54, {WS_WD - 6*8192}
            s_cmp_ge_u32 s{sWAVE}, 6
            s_cselect_b32 s52, s54, s52
            s_lshr_b32 s54, s50, 2
            s_mul_i32 s54, s54, {8*98304}
            s_mul_i32 s55, s51, 24576
            s_add_u32 s54, s54, s55
            s_add_u32 s54, s54, s53
            s_add_u32 s54, s54, {WS_WQKV - 13*8192}
            s_cmp_ge_u32 s{sWAVE}, 13
            s_cselect_b32 s52, s54, s52
            v_lshlrev_b32 v{T+16}, 7, v{VLANE}
            buffer_load_dword v{T+17}, v{T+16}, s[{sWS}:{sWS+3}], s52 offen""")
            a.label(f"{name}_nowpf")
        if t == 2:
            skip = f"{name}_nopoll"; pl = f"{name}_spoll"
            a(f"""s_cmp_ge_u32 s{sIT}, 2
            s_cbranch_scc1 {skip}
            s_lshl_b32 s50, s{sIT}, 2
            s_add_u32 s50, s50, 4""")
            a.label(pl)
            a(f"""ds_read_b32 v{T+15}, v{T+14} offset:64
            s_waitcnt lgkmcnt(0)
            v_readfirstlane_b32 s51, v{T+15}
            s_nop 3
            s_cmp_lt_u32 s51, s50
            s_cbranch_scc1 {pl}""")
            a.label(skip)
        PR = eval(os.environ.get("PR", "{(1, 4): 2, (3, 0): 1, (3, 6): 0}"))
        for (it_, t_), pr_ in PR.items():
            if t_ == t:
                a(f"""s_cmp_lg_u32 s{sIT}, {it_}
                s_cbranch_scc1 {name}_pr{it_}_{t}
                s_setprio {pr_}""")
                a.label(f"{name}_pr{it_}_{t}")
        a("s_waitcnt lgkmcnt(2)")
        a(f"v_mfma_f32_32x32x16_bf16 {vr(sn,16)}, {vr(KF[(t+1)%2],4)}, {vr(QF,4)}, {vr(CM,16)}")
        a(f"ds_read_b128 {vr(KF[t%2],4)}, v{VKA} offset:{(t+2)*1024}")
        for x in E[:8]: a(x)
        a(f"v_mfma_f32_32x32x16_bf16 {vr(O,16)}, {vr(VF[(t+1)%2]+4,4)}, {vr(P+4,4)}, {vr(O,16)}")
        a(f"""s_mov_b64 exec, s[{sVM}:{sVM+1}]
        ds_read_b128 {vr(VF[(t+1)%2],4)}, v{VVA} offset:{(t+1)*1024}
        ds_read_b128 {vr(VF[(t+1)%2]+4,4)}, v{VVA} offset:{(t+1)*1024+512}
        s_mov_b64 exec, -1""")
        for x in C[:4] + E[8:12]: a(x)
        a("s_waitcnt lgkmcnt(4)")
        a(f"v_mfma_f32_32x32x16_bf16 {vr(O,16)}, {vr(VF[t%2],4)}, {vr(P,4)}, {vr(O,16)}")
        for x in E[12:]: a(x)
        if t == UN - 1:
            a(f"""v_add_u32 v{VKA}, {UN*1024}, v{VKA}
            v_add_u32 v{VVA}, {UN*1024}, v{VVA}
            s_add_u32 s{sIT}, s{sIT}, 1""")
            a(f"s_cmp_lt_u32 s{sIT}, s{sNIT}")
        for x in C[4:]: a(x)
    a(f"s_cbranch_scc1 {loop}")
    a(f"""s_waitcnt lgkmcnt(0)
    v_mfma_f32_32x32x16_bf16 {vr(O,16)}, {vr(VF[1]+4,4)}, {vr(P+4,4)}, {vr(O,16)}""")
    stamp_mid(a, 3)
    fb = f"{name}_fallback"; fin = f"{name}_fin"; second = f"{name}_second"; poll = f"{name}_poll"
    a(f"""s_lshl_b32 s36, s{sRG}, 15
    s_lshl_b32 s37, s{sHEAD}, 10
    s_add_u32 s36, s36, s37
    s_add_u32 s36, s36, {WS_O}
    s_mov_b32 s37, {hex(f32bits(2.0**-40))}
    s_cmp_lg_u32 s{sSECOND}, 0
    s_cbranch_scc1 {name}_fin0
    s_lshl_b32 s38, s{sQT}, 3
    s_add_u32 s38, s38, {CNT_OFF}
    v_mov_b32 v{T+9}, s38
    v_mov_b32 v{T+10}, 1
    s_mul_i32 s39, s{sQT}, 2304
    s_add_u32 s39, s39, {STG}
    s_mov_b64 exec, 1
    ds_add_rtn_u32 v{T+11}, v{T+9}, v{T+10}
    s_mov_b64 exec, -1
    v_add_u32 v{T+12}, s39, v{VA}
    v_lshlrev_b32 v{T+13}, 2, v{VLANE}
    v_add_u32 v{T+13}, s39, v{T+13}
    s_waitcnt lgkmcnt(0)
    v_readfirstlane_b32 s40, v{T+11}
    s_nop 3
    s_cmp_lg_u32 s40, 0
    s_cbranch_scc1 {second}""")
    a.label(f"{name}_sdpoll")
    a(f"""ds_read_b32 v{T+15}, v{T+14} offset:68
    s_waitcnt lgkmcnt(0)
    v_readfirstlane_b32 s51, v{T+15}
    s_nop 3
    s_cmp_lt_u32 s51, 4
    s_cbranch_scc1 {name}_sdpoll
    ds_write_b128 v{T+12}, v[{O}:{O+3}]
    ds_write_b128 v{T+12}, v[{O+4}:{O+7}] offset:1024
    ds_write_b32 v{T+13}, v{O+8} offset:2048
    s_waitcnt lgkmcnt(0)
    ds_write_b32 v{T+9}, v{T+10} offset:4
    s_branch {end}""")
    a.label(second)
    a.label(poll)
    a(f"""ds_read_b32 v{T+11}, v{T+9} offset:4
    s_waitcnt lgkmcnt(0)
    v_readfirstlane_b32 s40, v{T+11}
    s_nop 3
    s_cmp_eq_u32 s40, 0
    s_cbranch_scc1 {poll}
    ds_read_b128 v[{S[0]}:{S[0]+3}], v{T+12}
    ds_read_b128 v[{S[0]+4}:{S[0]+7}], v{T+12} offset:1024
    ds_read_b32 v{S[0]+8}, v{T+13} offset:2048
    s_waitcnt lgkmcnt(0)""")
    for i in range(9):
        a(f"v_add_f32 v{O+i}, v{O+i}, v{S[0]+i}")
    a(f"""v_cmp_nge_f32 vcc, v{O+8}, s37
    s_nop 4
    s_cbranch_vccnz {fb}""")
    a.label(f"{name}_fin0")
    a(f"s_nop 6\nv_rcp_f32 v{O+9}, v{O+8}\ns_nop 0")
    for i in range(8):
        a(f"v_mul_f32 v{O+i}, v{O+i}, v{O+9}")
    for i in range(4):
        a(f"v_cvt_pk_bf16_f32 v{P+i}, v{O+2*i}, v{O+2*i+1}")
    a(f"buffer_store_dwordx4 v[{P}:{P+3}], v{VA}, s[{sWS}:{sWS+3}], s36 offen")
    a.label(end)
    stamp_end(a)
    a.label(end + "_real")
    a("s_endpgm")
    a.label(fb)
    floop = f"{name}_fbloop"
    MX = T + 9
    a(f"""s_mov_b32 s{sSECOND}, 1
    s_mov_b32 s{sNOBAR}, 1
    s_mov_b32 s{sNIT}, 8
    v_mov_b32 v{MX}, 0xff800000
    v_mov_b32 v{T+10}, v{VA}
    s_mov_b32 s38, 0""")
    a.label(floop)
    a(f"""ds_read_b128 {vr(KF[0],4)}, v{T+10}
    v_add_u32 v{T+10}, 1024, v{T+10}
    s_waitcnt lgkmcnt(0)
    v_mfma_f32_32x32x16_bf16 {vr(S[0],16)}, {vr(KF[0],4)}, {vr(QF,4)}, 0
    s_nop 15
    s_nop 3""")
    for i in range(8):
        a(f"v_max3_f32 v{MX}, v{S[0]+2*i}, v{S[0]+2*i+1}, v{MX}")
    a(f"""s_add_u32 s38, s38, 1
    s_cmp_lt_u32 s38, 64
    s_cbranch_scc1 {floop}
    v_mov_b32 v{T+10}, v{MX}
    s_nop 1
    v_permlane32_swap_b32 v{MX}, v{T+10}
    s_nop 1
    v_max_f32 v{MX}, v{MX}, v{T+10}
    v_sub_f32 v{T+6}, 0, v{MX}
    v_mov_b32 v{VKA}, v{VA}
    v_mov_b32 v{VVA}, v{T+8}""")
    emit_vf_init()
    a(f"s_branch {main}")
    a.label(helper)
    a(f"""s_load_dwordx2 s[6:7], s[0:1], {KA_WQKV}
    s_load_dwordx4 s[28:31], s[0:1], {KA_WG}
    s_load_dwordx2 s[60:61], s[0:1], {KA_WO}
    s_load_dwordx2 s[62:63], s[0:1], {KA_WD}
    s_add_u32 s43, s43, 4096
    s_add_u32 s44, s44, 4096
    s_mov_b32 s{sNOBAR}, 1
    s_setprio 3
    v_mov_b32 v{T+14}, {CNT_OFF}
    v_mov_b32 v{T+15}, 1
    s_waitcnt lgkmcnt(0)
    s_mov_b32 s12, s8
    s_and_b32 s13, s9, 0xffff""")
    def dma4():
        a(f"s_mov_b32 m0, s43\ns_add_u32 s43, s43, 4096")
        for j in range(4):
            a(f"buffer_load_dwordx4 v{VA}, s[{sWS}:{sWS+3}], s44 offen offset:{1024*j} lds")
        a("s_add_u32 s44, s44, 4096")
    dma4(); dma4()
    a("s_barrier")
    dma4(); dma4()
    a(f"""s_waitcnt vmcnt(8)
    s_mov_b64 exec, 1
    ds_add_u32 v{T+14}, v{T+15} offset:64
    s_mov_b64 exec, -1""")
    dma4(); dma4(); dma4()
    hdone = f"{name}_hdone"
    a(f"""s_waitcnt vmcnt(0)
    s_mov_b64 exec, 1
    ds_add_u32 v{T+14}, v{T+15} offset:64
    s_mov_b64 exec, -1
    s_cmp_eq_u32 s{sSIDE}, 0
    s_cbranch_scc1 {hdone}
    s_sub_u32 s45, s{sWAVE}, 12
    s_lshl_b32 s34, s45, 13
    s_add_u32 s34, s34, {STG}
    s_lshl_b32 s67, s45, 8
    s_add_u32 s67, s67, s2
    s_mov_b32 s33, 0x3f803f80
    s_cmp_ge_u32 s67, 768
    s_cbranch_scc1 {hdone}""")
    a.label(f"{name}_wloop")
    emit_wunits(a, name + "_w", f"{name}_wnext", VLANE, T, VA, 0, sWS, 67)
    a.label(f"{name}_wnext")
    a(f"""s_mov_b64 exec, -1
    s_add_u32 s67, s67, 768
    s_cmp_lt_u32 s67, 928
    s_cbranch_scc1 {name}_wloop""")
    a.label(hdone)
    a(f"""s_mov_b64 exec, -1
    s_cmp_ge_u32 s2, 4
    s_cbranch_scc1 {name}_nozero
    s_cmp_lg_u32 s{sWAVE}, 15
    s_cbranch_scc1 {name}_nozero
    v_mov_b32 v0, 0
    v_mov_b32 v1, 0
    v_mov_b32 v2, 0
    v_mov_b32 v3, 0
    s_lshl_b32 s45, s2, 12
    s_add_u32 s45, s45, {WS_FLAG}
    buffer_store_dwordx4 v[0:3], v{VA}, s[{sWS}:{sWS+3}], s45 offen
    buffer_store_dwordx4 v[0:3], v{VA}, s[{sWS}:{sWS+3}], s45 offen offset:1024
    buffer_store_dwordx4 v[0:3], v{VA}, s[{sWS}:{sWS+3}], s45 offen offset:2048
    buffer_store_dwordx4 v[0:3], v{VA}, s[{sWS}:{sWS+3}], s45 offen offset:3072""")
    a.label(f"{name}_nozero")
    a(f"""s_mov_b64 exec, 1
    ds_add_u32 v{T+14}, v{T+15} offset:68
    s_mov_b64 exec, -1
    s_branch {pro}""")
    desc = "".join(kernel_desc(nm, 128) for nm, _ in entries)
    return code + a.text(), desc, LDS
```

```python
from common import *
from k_qkv import emit_stats_final, VmTracker, QSCALE
from collections import defaultdict

VLANE = 252; VA = 253; VT = 254
sWS = 12; sWAVE = 70; sLAYER = 71; sFLG = 72; sPOLL = 73; sSPIN = 74
SC = " sc1"
PF = 76 if not STAMP else 76

def tile_stats(a, V, T, vaddr, soff):
    a(f"v_add_f32 v{T}, v{V}, v{V+1}\nv_mul_f32 v{T+1}, v{V}, v{V}")
    a(f"v_fmac_f32 v{T+1}, v{V+1}, v{V+1}")
    for i in range(2, 16):
        a(f"v_add_f32 v{T}, v{T}, v{V+i}\nv_fmac_f32 v{T+1}, v{V+i}, v{V+i}")
    a(f"""v_mov_b32 v{T+2}, v{T}
    v_mov_b32 v{T+3}, v{T+1}
    s_nop 1
    v_permlane32_swap_b32 v{T}, v{T+2}
    v_permlane32_swap_b32 v{T+1}, v{T+3}
    s_nop 1
    v_add_f32 v{T}, v{T}, v{T+2}
    v_add_f32 v{T+1}, v{T+1}, v{T+3}
    s_mov_b64 exec, 0xffffffff
    buffer_store_dwordx2 v[{T}:{T+1}], v{vaddr}, s[{sWS}:{sWS+3}], s{soff} offen sc1
    s_mov_b64 exec, -1""")

ATOM = True
GO = bool(os.environ.get("GOF"))
SIGOP = (f"s_and_b32 s{sFLG}, s{sFLG}, 0xffffff80\nbuffer_atomic_add v{VT+1}, v{VT}, s[{sWS}:{sWS+3}], s{sFLG} offen sc1" if ATOM else
         f"buffer_store_byte v{VT+1}, v{VT}, s[{sWS}:{sWS+3}], s{sFLG} offen sc1")
def signal(a, name, n_after, go=False):
    l = a.newlabel(name + "_sig")
    a(f"s_waitcnt vmcnt({n_after})")
    if os.environ.get("HST") and not hasattr(signal, "done"): stamp_mid(a, 2)
    a("s_barrier")
    if os.environ.get("HST") and not hasattr(signal, "done"): stamp_mid(a, 3); signal.done = 1
    a(f"""s_cmp_lg_u32 s{sWAVE}, 0
    s_cbranch_scc1 {l}
    v_mov_b32 v{VT}, 0
    v_mov_b32 v{VT+1}, 1
    s_mov_b64 exec, 1
    s_and_b32 s{sFLG}, s{sFLG}, 0xffffff80""")
    if go:
        a(f"""buffer_atomic_add v{VT+1}, v{VT}, s[{sWS}:{sWS+3}], s{sFLG} offen sc0 sc1
        s_waitcnt vmcnt(0)
        v_readfirstlane_b32 s16, v{VT+1}
        v_mov_b32 v{VT+1}, 16
        s_cmp_lg_u32 s16, 15
        s_cbranch_scc1 {l}_x
        buffer_store_dword v{VT+1}, v{VT}, s[{sWS}:{sWS+3}], s{sFLG} offen offset:2048 sc1""")
        a.label(l + "_x")
    else:
        a(f"buffer_atomic_add v{VT+1}, v{VT}, s[{sWS}:{sWS+3}], s{sFLG} offen sc1")
    a("s_mov_b64 exec, -1")
    a.label(l)

def poll_pre(a):
    a(f"""s_add_u32 s66, s8, s{sPOLL}
    s_addc_u32 s67, s9, 0
    s_load_dword s16, s[66:67], 0 glc""")
def poll(a, name, pre=False):
    l = a.newlabel(name + "_poll"); d = a.newlabel(name + "_pok")
    S0 = int(os.environ.get("PS0", "0")); S1 = int(os.environ.get("PS1", "2"))
    if pre:
        a(f"""s_waitcnt lgkmcnt(0)
        s_cmp_eq_u32 s16, 16
        s_cbranch_scc1 {d}""")
    a(f"""s_cmp_lg_u32 s{sWAVE}, 0
    s_cbranch_scc1 {d}
    s_add_u32 s66, s8, s{sPOLL}
    s_addc_u32 s67, s9, 0
    s_mov_b32 s{sSPIN}, 0""")
    a.label(l)
    if ATOM:
        a(f"""s_load_dword s16, s[66:67], 0 glc
        s_add_u32 s{sSPIN}, s{sSPIN}, 1
        s_waitcnt lgkmcnt(0)
        s_cmp_eq_u32 s16, 16""")
    else:
        a(f"""s_load_dwordx4 s[16:19], s[66:67], 0 glc
        s_add_u32 s{sSPIN}, s{sSPIN}, 1
        s_waitcnt lgkmcnt(0)
        s_and_b64 s[16:17], s[16:17], s[18:19]
        s_and_b32 s16, s16, s17
        s_cmp_eq_u32 s16, 0x01010101""")
    a(f"""s_cbranch_scc1 {d}
    s_sleep {S1}
    s_cmp_lt_u32 s{sSPIN}, 0x40000
    s_cbranch_scc1 {l}""")
    a.label(d)
    a("s_barrier")

CSF_OFF = 155648
CSQ_OFF = 155648 + 1024
STQ_OFF = 155648 + 2048
FMAP = int(os.environ.get("FMAP", "3")); QMAP = int(os.environ.get("QMAP", "2"))
def map16(a, lr, sRB, sCB, t):
    xr = 4 - lr
    a(f"""s_and_b32 s{t}, s2, 7
    s_lshr_b32 s{t+1}, s2, 3
    s_and_b32 s{sRB}, s{t}, {(1 << xr) - 1}
    s_lshl_b32 s{sRB}, s{sRB}, {lr}
    s_lshr_b32 s{sCB}, s{t}, {xr}
    s_lshl_b32 s{sCB}, s{sCB}, {5 - lr}
    s_and_b32 s{t}, s{t+1}, {(1 << lr) - 1}
    s_add_u32 s{sRB}, s{sRB}, s{t}
    s_lshr_b32 s{t+1}, s{t+1}, {lr}
    s_add_u32 s{sCB}, s{sCB}, s{t+1}""")
def cs_issue(a):
    map16(a, FMAP, 43, 40, 44)
    map16(a, QMAP, 43, 41, 44)
    a(f"""s_mul_i32 s40, s40, {224*64}
    s_add_u32 s40, s40, {WS_CSG}
    s_mul_i32 s41, s41, 3072
    s_add_u32 s41, s41, {WS_CSQ}
    s_lshl_b32 s42, s{sWAVE}, 6
    v_add_u32 v220, s42, v{VLANE}
    v_lshlrev_b32 v221, 6, v220""")
    for i in range(4):
        a(f"buffer_load_dwordx4 v[{196+4*i}:{199+4*i}], v221, s[{sWS}:{sWS+3}], s40 offen offset:{16*i}")
    a("v_lshlrev_b32 v221, 5, v220")
    for i in range(2):
        a(f"buffer_load_dwordx4 v[{212+4*i}:{215+4*i}], v221, s[{sWS}:{sWS+3}], s41 offen offset:{16*i}")
def cs_reduce(a):
    CP = 196
    for i in range(12): a(f"v_add_f32 v{CP+2*i}, v{CP+2*i}, v{CP+2*i+1}")
    for i in range(6): a(f"v_add_f32 v{CP+4*i}, v{CP+4*i}, v{CP+4*i+2}")
    a(f"""v_add_f32 v{CP}, v{CP}, v{CP+4}
    v_add_f32 v{CP+8}, v{CP+8}, v{CP+12}
    v_add_f32 v{CP+16}, v{CP+16}, v{CP+20}
    v_add_f32 v{CP}, v{CP}, v{CP+8}
    v_lshlrev_b32 v220, 2, v220
    v_add_u32 v220, {CSF_OFF}, v220
    ds_write_b32 v220, v{CP}
    ds_write_b32 v220, v{CP+16} offset:1024""")

class Proj:
    def __init__(self, a, name, KS, a_off, w_off, atab, btab):
        self.a = a; self.name = name; self.KS = KS; self.NCH = KS // 4; self.a_off = a_off; self.w_off = w_off
        self.vm = VmTracker()
        self.sRB, self.sCB, self.sG, self.sT, self.sRG = 50, 51, 52, 53, 54
        self.sAO, self.sW0, self.sLA, self.sLB = 55, 64, 65, 68
        self.nb = 0; self.na = 0
        self.freeA = list(atab); self.freeB = list(btab); self.addrA = {}; self.addrB = {}; self.pool = []
    def setup(self):
        a = self.a; ARG = self.KS * 1024
        a(f"""s_and_b32 s{self.sRB}, s2, 7
        s_lshr_b32 s{self.sCB}, s2, 3
        s_lshl_b32 s{self.sRB}, s{self.sRB}, 2
        s_and_b32 s69, s{self.sCB}, 3
        s_add_u32 s{self.sRB}, s{self.sRB}, s69
        s_lshr_b32 s{self.sCB}, s{self.sCB}, 2
        s_and_b32 s{self.sG}, s{sWAVE}, 1
        s_lshr_b32 s{self.sT}, s{sWAVE}, 1
        s_lshl_b32 s{self.sRG}, s{self.sRB}, 1
        s_add_u32 s{self.sRG}, s{self.sRG}, s{self.sG}
        s_mul_i32 s{self.sAO}, s{self.sRG}, {ARG}
        s_lshl_b32 s69, s{self.sT}, 11
        s_add_u32 s{self.sAO}, s{self.sAO}, s69
        s_add_u32 s{self.sAO}, s{self.sAO}, {self.a_off}
        s_lshl_b32 s{self.sLA}, s{self.sG}, 12
        s_add_u32 s{self.sLA}, s{self.sLA}, s69
        s_mul_i32 s{self.sW0}, s{self.sCB}, {2*ARG}
        s_lshl_b32 s{self.sLB}, s{sWAVE}, 11
        s_add_u32 s{self.sW0}, s{self.sW0}, s{self.sLB}
        s_add_u32 s{self.sW0}, s{self.sW0}, {self.w_off}""")
    def ldA(self, half, sc=""):
        a = self.a; c = self.na
        if half == 0:
            self.addrA[c] = self.freeA.pop(0) if self.freeA else self.pool.pop(0)
            a(f"s_add_u32 m0, s{self.sLA}, {self.addrA[c]}\ns_nop 0")
            a(f"buffer_load_dwordx4 v{VA}, s[{sWS}:{sWS+3}], s{self.sAO} offen{sc} lds")
        else:
            a(f"buffer_load_dwordx4 v{VA}, s[{sWS}:{sWS+3}], s{self.sAO} offen offset:1024{sc} lds")
            a(f"s_add_u32 s{self.sAO}, s{self.sAO}, 4096")
            self.na += 1
        self.vm.issue(("A", c))
    def ldB(self, half):
        a = self.a; c = self.nb
        if half == 0:
            self.addrB[c] = self.freeB.pop(0) if self.freeB else self.pool.pop(0)
            a(f"s_add_u32 m0, s{self.sLB}, {self.addrB[c]}\ns_nop 0")
            a(f"buffer_load_dwordx4 v{VA}, s[{sWS}:{sWS+3}], s{self.sW0} offen lds")
        else:
            a(f"buffer_load_dwordx4 v{VA}, s[{sWS}:{sWS+3}], s{self.sW0} offen offset:1024 lds")
            a(f"s_add_u32 s{self.sW0}, s{self.sW0}, 8192")
            self.nb += 1
        self.vm.issue(("B", c))
    def main(self, res_emit, sc, PA):
        a = self.a; vm = self.vm; NCH = self.NCH
        ACC = 0; FR = 96; VRA = [56, 57, 58]; VRB = [59, 60, 61]
        for c in range(PA):
            self.ldA(0, sc); self.ldA(1, sc)
            if self.nb <= c: self.ldB(0); self.ldB(1)
        if self.bahead and not getattr(self, "late", None):
            while self.freeB: self.ldB(0); self.ldB(1)
        self.pool = self.freeA + self.freeB; self.freeA = []; self.freeB = []
        a(f"""s_lshl_b32 s56, s{self.sRG}, 15
        s_lshl_b32 s57, s{self.sCB}, 12
        s_lshl_b32 s58, s{self.sT}, 11
        s_add_u32 s57, s57, s58
        s_add_u32 s57, s57, s56""")
        res_emit(); vm.issue(("R", 0)); vm.issue(("R", 0))
        a(f"""s_lshl_b32 s59, s{self.sG}, 12
        v_add_u32 v{VRA[0]}, s59, v{VA}
        v_add_u32 v{VRA[1]}, 57344, v{VRA[0]}
        v_add_u32 v{VRA[2]}, 114688, v{VRA[0]}
        s_lshl_b32 s59, s{self.sT}, 10
        v_add_u32 v{VRB[0]}, s59, v{VA}
        v_add_u32 v{VRB[1]}, 57344, v{VRB[0]}
        v_add_u32 v{VRB[2]}, 114688, v{VRB[0]}""")
        def rd(c, q):
            af = FR + 32 * (c % 2); bf = af + 16
            oa = self.addrA[c]; ob = self.addrB[c]
            a(f"ds_read_b128 v[{af+4*q}:{af+4*q+3}], v{VRA[oa//57344]} offset:{oa%57344+q*1024}")
            a(f"ds_read_b128 v[{bf+4*q}:{bf+4*q+3}], v{VRB[ob//57344]} offset:{ob%57344+q*2048}")
        def mf(c, q):
            af = FR + 32 * (c % 2); bf = af + 16
            cc = "0" if (c == 0 and q == 0) else vr(ACC, 16)
            a(f"v_mfma_f32_32x32x16_bf16 {vr(ACC,16)}, {vr(bf+4*q,4)}, {vr(af+4*q,4)}, {cc}")
        DA = self.DA; DB = self.DB
        self.cur = None
        def lds_for(k, q):
            if q % 2 == 0:
                self.cur = None
                if self.pool:
                    wantA = self.na < self.alim and self.na <= k + DA
                    wantB = self.nb < NCH and self.nb <= k + DB
                    urgentB = self.nb < NCH and self.nb <= self.na
                    if wantB and (urgentB and q == 2 or not wantA): self.cur = "B"
                    elif wantA: self.cur = "A"
                    elif wantB: self.cur = "B"
            if self.cur == "A": self.ldA(q % 2, sc)
            if self.cur == "B": self.ldB(q % 2)
        late = getattr(self, "late", None)
        if late:
            signal(a, late[0], min(63, vm.wait_for({('A',0),('B',0)})))
        else:
            a(f"s_waitcnt vmcnt({min(63, vm.wait_for({('A',0),('B',0)}))})\ns_barrier")
        self.alim = late[1] if late else NCH
        for q in range(4):
            rd(0, q); lds_for(-1, q)
        for k in range(NCH - 1):
            if late and self.na == self.alim and self.alim < NCH:
                a(f"s_waitcnt vmcnt({min(63, vm.wait_for({('A',k+1),('B',k+1)}))}) lgkmcnt(0)")
                poll(a, late[0])
                self.alim = NCH
            else:
                a(f"s_waitcnt vmcnt({min(63, vm.wait_for({('A',k+1),('B',k+1)}))})\ns_barrier")
            if k >= 1: self.pool += [self.addrA[k-1], self.addrB[k-1]]
            for q in range(4):
                a("s_waitcnt lgkmcnt(6)")
                mf(k, q); rd(k + 1, q); lds_for(k, q)
            if getattr(self, "cs_hook", False):
                if k == 3:
                    cs_issue(a)
                    for _ in range(6): vm.issue(("CS", 0))
        for q in range(4):
            a(f"s_waitcnt lgkmcnt({2*(3-q)})")
            mf(NCH - 1, q)
        a("s_barrier")
    def epilogue_common(self, vscale=None):
        a = self.a; ACC = 0; RES = 48; U = 80
        a("s_mov_b32 s47, 0xffff0000")
        for i in range(8):
            a(f"v_lshlrev_b32 v{U+2*i}, 16, v{RES+i}\nv_and_b32 v{U+2*i+1}, s47, v{RES+i}")
        for i in range(16):
            a(f"v_add_f32 v{ACC+i}, v{ACC+i}, v{U+i}" if vscale is None else f"v_fma_f32 v{ACC+i}, v{ACC+i}, v{vscale}, v{U+i}")
        for i in range(8):
            a(f"v_cvt_pk_bf16_f32 v{RES+i}, v{ACC+2*i}, v{ACC+2*i+1}")
    def store_tiled(self, out_off, st_off, phase):
        a = self.a; PK = 48; U = 80; T = 64
        a(f"""s_add_u32 s58, s57, {out_off}
        buffer_store_dwordx4 v[{PK}:{PK+3}], v{VA}, s[{sWS}:{sWS+3}], s58 offen sc1
        buffer_store_dwordx4 v[{PK+4}:{PK+7}], v{VA}, s[{sWS}:{sWS+3}], s58 offen offset:1024 sc1
        v_and_b32 v{T}, 31, v{VLANE}
        v_lshlrev_b32 v{T}, 3, v{T}
        s_lshr_b32 s58, s57, 3
        s_add_u32 s58, s58, {st_off}""")
        for i in range(8):
            a(f"v_lshlrev_b32 v{U+2*i}, 16, v{PK+i}\nv_and_b32 v{U+2*i+1}, s47, v{PK+i}")
        tile_stats(a, U, T + 2, T, 58)
        a(f"""s_lshr_b32 s58, s{self.sRB}, 1
        s_lshl_b32 s58, s58, 7
        s_and_b32 s59, s{self.sRB}, 1
        s_lshl_b32 s59, s59, 3
        s_add_u32 s59, s59, s{self.sCB}
        s_add_u32 s{sFLG}, s58, s59
        s_add_u32 s{sFLG}, s{sFLG}, {WS_FLAG + phase*4096}""")

def gen_blk(entries):
    a = Asm()
    name = entries[0][0]
    body = f"{name}_body"; end = f"{name}_end"
    code = ""
    for i, (nm, layer) in enumerate(entries):
        code += kernel_header(nm) + f"    s_mov_b32 s{sLAYER}, {layer}\n"
        if i + 1 < len(entries):
            code += f"    s_branch {body}\n"
    a.label(body)
    a(f"""s_cmp_ge_u32 s2, 256
    s_cbranch_scc1 {end}_real""")
    stamp_begin(a)
    a(f"""s_load_dwordx2 s[8:9], s[0:1], {KA_WS}
    s_load_dwordx2 s[4:5], s[0:1], {KA_OUT}
    s_load_dwordx2 s[6:7], s[0:1], {KA_X}
    v_and_b32 v{VLANE}, 63, v0
    v_lshrrev_b32 v{VT}, 6, v0
    v_lshlrev_b32 v{VA}, 4, v{VLANE}
    v_readfirstlane_b32 s{sWAVE}, v{VT}
    s_mov_b32 s14, {WS_SIZE}
    s_mov_b32 s15, 0x00020000""")
    P = Proj(a, name + "_wo", 32, WS_O, WS_WO, [16384*i for i in range(8)], [16384*i + 8192 for i in range(8)]); P.bahead = False; P.cs_hook = True; P.DA = 4; P.DB = 4
    P.setup()
    a(f"""s_waitcnt lgkmcnt(0)
    s_mov_b32 s12, s8
    s_and_b32 s13, s9, 0xffff""")
    RES = 48; T = 64
    def res_wo():
        l1 = f"{name}_rnat"; l2 = f"{name}_rdone"
        a(f"""s_cmp_eq_u32 s{sLAYER}, 0
        s_cbranch_scc1 {l1}
        s_add_u32 s58, s57, {WS_X2}
        buffer_load_dwordx4 v[{RES}:{RES+3}], v{VA}, s[{sWS}:{sWS+3}], s58 offen
        buffer_load_dwordx4 v[{RES+4}:{RES+7}], v{VA}, s[{sWS}:{sWS+3}], s58 offen offset:1024
        s_branch {l2}""")
        a.label(l1)
        a(f"""s_mov_b32 s60, s6
        s_and_b32 s61, s7, 0xffff
        s_mov_b32 s62, {2048*1024}
        s_mov_b32 s63, 0x00020000
        s_lshl_b32 s58, s{P.sCB}, 7
        s_lshl_b32 s59, s{P.sT}, 6
        s_add_u32 s58, s58, s59
        s_add_u32 s58, s58, s56
        v_and_b32 v{T}, 31, v{VLANE}
        v_lshlrev_b32 v{T}, 10, v{T}
        v_lshrrev_b32 v{T+1}, 5, v{VLANE}
        v_lshl_add_u32 v{T}, v{T+1}, 4, v{T}
        buffer_load_dwordx4 v[{RES}:{RES+3}], v{T}, s[60:63], s58 offen
        buffer_load_dwordx4 v[{RES+4}:{RES+7}], v{T}, s[60:63], s58 offen offset:32""")
        a.label(l2)
    P.main(res_wo, "", 3)
    a(f"""s_cmp_lg_u32 s{sLAYER}, 0
    s_cbranch_scc1 {name}_noswap
    v_permlane32_swap_b32 v{RES}, v{RES+2}
    v_permlane32_swap_b32 v{RES+1}, v{RES+3}
    v_permlane32_swap_b32 v{RES+4}, v{RES+6}
    v_permlane32_swap_b32 v{RES+5}, v{RES+7}
    s_nop 1""")
    a.label(f"{name}_noswap")
    P.epilogue_common()
    P.store_tiled(WS_X1, WS_ST, 0)
    if not os.environ.get("STSET") and not os.environ.get("FST"): stamp_mid(a, 0)
    lds_ffn = emit_ffn1(a, name)
    if not os.environ.get("FST") and not os.environ.get("HST"): stamp_mid(a, 2)
    D = emit_ffn1.down
    def res_dn():
        a(f"""s_add_u32 s58, s57, {WS_X1}
        buffer_load_dwordx4 v[{RES}:{RES+3}], v{VA}, s[{sWS}:{sWS+3}], s58 offen sc1
        buffer_load_dwordx4 v[{RES+4}:{RES+7}], v{VA}, s[{sWS}:{sWS+3}], s58 offen offset:1024 sc1
        v_and_b32 v{T+8}, 31, v{VLANE}
        v_lshlrev_b32 v{T+8}, 2, v{T+8}
        s_lshl_b32 s58, s{D.sRG}, 7
        s_add_u32 s58, s58, {WS_R2}
        buffer_load_dword v{T+9}, v{T+8}, s[{sWS}:{sWS+3}], s58 offen sc1""")
        D.vm.issue(("R", 0))
    D.main(res_dn, SC, 5)
    D.epilogue_common(T + 9)
    nat = f"{name}_nat"
    a(f"""s_cmp_lg_u32 s{sLAYER}, 0
    s_cbranch_scc1 {nat}""")
    D.store_tiled(WS_X2, WS_ST2, 2)
    if not os.environ.get("STSET") and not os.environ.get("FST") and not os.environ.get("HST"): stamp_mid(a, 3)
    lds_qkv = emit_qkv(a, name)
    a(f"s_branch {end}")
    a.label(nat)
    PK = 48
    a(f"""s_mov_b32 s20, s4
    s_and_b32 s21, s5, 0xffff
    s_mov_b32 s22, {2048*1024}
    s_mov_b32 s23, 0x00020000
    s_lshl_b32 s58, s{D.sCB}, 7
    s_lshl_b32 s59, s{D.sT}, 6
    s_add_u32 s58, s58, s59
    s_add_u32 s58, s58, s56
    v_and_b32 v{T}, 31, v{VLANE}
    v_lshlrev_b32 v{T}, 10, v{T}
    v_lshrrev_b32 v{T+1}, 5, v{VLANE}
    v_lshl_add_u32 v{T}, v{T+1}, 4, v{T}
    v_permlane32_swap_b32 v{PK}, v{PK+2}
    v_permlane32_swap_b32 v{PK+1}, v{PK+3}
    v_permlane32_swap_b32 v{PK+4}, v{PK+6}
    v_permlane32_swap_b32 v{PK+5}, v{PK+7}
    s_nop 1
    buffer_store_dwordx4 v[{PK}:{PK+3}], v{T}, s[20:23], s58 offen
    buffer_store_dwordx4 v[{PK+4}:{PK+7}], v{T}, s[20:23], s58 offen offset:32""")
    a.label(end)
    stamp_end(a)
    a.label(end + "_real")
    a("s_endpgm")
    desc = "".join(kernel_desc(nm, 384, accum=256) for nm, _ in entries)
    return code + a.text(), desc, max(lds_ffn, lds_qkv, 131072)

def emit_ffn1(a, name):
    NB = 9; LA = 7; NT1 = 3
    ACC = 0; BF = 112; CT = 148; SR = 180
    VB = [229, 230, 231]; T = 232
    vMEAN, vRSTD = 246, 247; NM = 248; R2 = 250
    CS_OFF = CSF_OFF
    LDS = STQ_OFF + 1024
    K = 1024
    caddr = [0, 24*K, 48*K, 72*K, 96*K, 0, 32*K, 64*K]
    cfirst = [0, 24, 48, 72, 96, 128, 160, 192]
    sRB, sCB, sRG = 24, 25, 27
    sL1, sW1, sAOFF, sW2, sL2 = 28, 29, 30, 31, 32
    map16(a, FMAP, sRB, sCB, 34)
    a(f"""s_lshl_b32 s{sRG}, s{sRB}, 2
    s_add_u32 s{sRG}, s{sRG}, s{sWAVE}
    s_mul_i32 s{sL1}, s{sWAVE}, 6144
    s_lshl_b32 s{sL2}, s{sWAVE}, 10
    s_mul_i32 s36, s{sCB}, {32*7168}
    s_add_u32 s36, s36, {WS_WGU}
    s_mul_i32 s{sW2}, s{sWAVE}, 7168
    s_lshl_b32 s{sW1}, s{sW2}, 1
    s_add_u32 s{sW2}, s{sW2}, s36
    s_add_u32 s{sW1}, s{sW1}, s36
    s_lshl_b32 s{sAOFF}, s{sRG}, 15
    s_add_u32 s{sAOFF}, s{sAOFF}, {WS_X1}
    s_lshl_b32 s{sPOLL}, s{sRB}, 7
    s_add_u32 s{sPOLL}, s{sPOLL}, {WS_FLAG + (2048 if GO else 0)}""")
    vm = VmTracker(); lg = VmTracker()
    def bdma(c, j):
        if c < 4:
            i, t = j // 3, j % 3
            a(f"s_add_u32 m0, s{sL1}, {caddr[c] + 3072*i}")
            a(f"s_add_u32 s41, s{sW1}, {(8*c + i)*7168}")
            a(f"buffer_load_dwordx4 v{VA}, s[{sWS}:{sWS+3}], s41 offen offset:{1024*t} lds")
        else:
            a(f"s_add_u32 m0, s{sL2}, {caddr[c] + 4096*j}")
            a(f"s_add_u32 s41, s{sW2}, {(c-1)*1024 + j*28672}")
            a(f"buffer_load_dwordx4 v{VA}, s[{sWS}:{sWS+3}], s41 offen lds")
        vm.issue(("B", c))
    def npieces(c): return 6 if c < 4 else 8
    def aload(s):
        a(f"buffer_load_dwordx4 a[{4*s}:{4*s+3}], v{VA}, s[{sWS}:{sWS+3}], s{sAOFF} offen offset:{(s%4)*1024} sc1")
        if s % 4 == 3:
            a(f"s_add_u32 s{sAOFF}, s{sAOFF}, 4096")
        vm.issue(("A", s))
    NP1 = int(os.environ.get("FNP1", "3"))
    NPRE = int(os.environ.get("FPRE", "4"))
    pre = [(c, j) for c in range(NP1) for j in range(6)]
    for (c, j) in pre[:NPRE]: bdma(c, j)
    signal(a, name, NPRE, GO)
    cs_reduce(a)
    a(f"""v_and_b32 v{T}, 31, v{VLANE}
    v_lshrrev_b32 v{T+1}, 5, v{VLANE}
    v_lshlrev_b32 v{T+2}, 11, v{T+1}
    v_lshl_add_u32 v{T+2}, v{T}, 3, v{T+2}
    v_lshlrev_b32 v{T+3}, 2, v{T}
    s_lshl_b32 s34, s{sRG}, 12
    s_add_u32 s34, s34, {WS_ST}
    v_lshlrev_b32 v{T+5}, 4, v{T+1}
    v_add_u32 v{T+5}, {CS_OFF}, v{T+5}
    v_mov_b32 v{VB[0]}, v{VA}
    v_add_u32 v{VB[1]}, {48*K}, v{VA}
    v_add_u32 v{VB[2]}, {96*K}, v{VA}
    s_mul_i32 s37, s{sRG}, {112*1024}
    s_add_u32 s37, s37, {WS_H}
    s_mul_i32 s38, s{sCB}, 3072
    s_add_u32 s38, s38, s37
    s_add_u32 s38, s38, 65536
    s_lshl_b32 s43, s{sCB}, 12
    s_add_u32 s37, s37, s43
    s_lshl_b32 s40, s{sRB}, 7
    s_add_u32 s40, s40, s{sCB}
    s_add_u32 s40, s40, {WS_FLAG + 4096}
    s_lshl_b32 s39, s{sRG}, 7
    s_add_u32 s39, s39, {WS_R2}
    s_mov_b32 s42, {WS_SIZE}
    s_cmp_eq_u32 s{sCB}, 0
    s_cselect_b32 s39, s39, s42""")
    for (c, j) in pre[NPRE:]: bdma(c, j)
    a(f"s_waitcnt vmcnt({vm.wait_for({('B', 0)})}) lgkmcnt(0)")
    if os.environ.get("HST"): stamp_mid(a, 4)
    poll(a, name)
    stamp_mid(a, 1)
    a(f"s_mov_b32 s{sFLG}, s40")
    APRE = 13
    for q in range(APRE): aload(q)
    slots = [(s, t) for s in range(32) for t in range(NT1)] + [(s, t) for t in range(NT1, 7) for s in range(32)]
    NS = len(slots)
    def accof(t): return ACC + 16 * t
    def chunk_of(m): return max(c for c in range(8) if cfirst[c] <= m)
    def read(m):
        c = chunk_of(m); ad = caddr[c] + 1024 * (m - cfirst[c])
        b = BF + 4 * (m % NB)
        a(f"ds_read_b128 v[{b}:{b+3}], v{VB[ad//(48*K)]} offset:{ad % (48*K)}")
        lg.issue(("F", m))
    loadq = defaultdict(list)
    def small_st(i):
        a(f"buffer_load_dwordx2 v[{SR+2*i}:{SR+2*i+1}], v{T+2}, s[{sWS}:{sWS+3}], s34 offen offset:{256*i} sc1")
        vm.issue(("S", 0))
    for s_ in range(APRE, 32):
        loadq[(s_ - APRE) * 3 + 1].append(lambda s_=s_: aload(s_))
    x = 2
    for c in range(NP1, 4):
        for j in range(6): loadq[x].append(lambda c=c, j=j: bdma(c, j)); x += 3
    for i in range(8): loadq[x].append(lambda i=i: small_st(i)); x += 3
    x = max(x, 56)
    for j in range(8): loadq[x].append(lambda j=j: bdma(4, j)); x += 2
    for c in (5, 6, 7):
        x = max(x, cfirst[c - 2] - LA + 2)
        for j in range(8): loadq[x].append(lambda c=c, j=j: bdma(c, j)); x += 3
    btab = [128*K + 8192*i for i in range(3)] + [96*K + 8192*i for i in range(4)] + [8192*i for i in range(4)] + [32*K + 8192*i for i in range(3)]
    atab = [56*K + 8192*i for i in range(5)]
    D = Proj(a, name + "_dn", 112, WS_H, WS_WD, atab, btab); D.bahead = True; D.DA = int(os.environ.get('DDA', '6')); D.DB = int(os.environ.get('DDB', '8'))
    def dB():
        D.ldB(0); D.ldB(1); vm.issue(("DB", 0)); vm.issue(("DB", 0))
    loadq[149].append(D.setup)
    EB = int(os.environ.get("EARLYB", "11"))
    bslots = [150, 153, 156] + [160, 164, 168, 172] + [188, 192, 196, 200]
    assert x <= 150, x
    for i in range(EB): loadq[bslots[i]].append(dB)
    fillq = defaultdict(list)
    sub = Asm()
    emit_stats_final(sub, SR, T + 6, vMEAN, vRSTD)
    sub(f"""v_sub_f32 v{NM}, 0, v{vMEAN}
    v_mul_f32 v{R2}, v{vRSTD}, v{vRSTD}
    buffer_store_dword v{R2}, v{T+3}, s[{sWS}:{sWS+3}], s39 offen sc1""")
    blockA = [l.strip() for l in sub.lines]
    m0 = 66
    for i, ins in enumerate(blockA): fillq[m0 + i // 2].append((ins, None))
    endA = m0 + (len(blockA) - 1) // 2
    assert endA < 87, endA
    csreadq = defaultdict(list)
    def cs_at(slot, t, buf): csreadq[slot].append((t, CT + 16 * buf))
    busy = set()
    for t in range(NT1, 7):
        first = cfirst[t + 1]
        cs_at(first - 15, t, 0)
        for i in range(16):
            fillq[first - 9 + i // 3].append((f"v_mul_f32 v{accof(t)+i}, v{NM}, v{CT+i}", None, ("C", t)))
        for y in range(first - 9, first - 3): busy.add(y)
    def epi(t, corr):
        ac = accof(t); L = []
        if corr:
            for i in range(16): L.append((f"v_fmac_f32 v{ac+i}, v{NM}, v{CT+16+i}", t, ("C", t)))
        for i in range(8): L.append((f"v_max_f32 v{ac+i}, 0, v{ac+i}", t))
        for i in range(8): L.append((f"v_mul_f32 v{ac+i}, v{ac+i}, v{ac+8+i}", t))
        for i in range(4): L.append((f"v_cvt_pk_bf16_f32 v{ac+8+i}, v{ac+2*i}, v{ac+2*i+1}", t))
        so = 37 if t < 4 else 38
        L.append((f"buffer_store_dwordx4 v[{ac+8}:{ac+11}], v{VA}, s[{sWS}:{sWS+3}], s{so} offen offset:{(t%4)*1024} sc1", t))
        return L
    cur = 99
    FPS = int(os.environ.get("FPS", "2"))
    order = [(0, True, 99), (1, True, 99), (3, False, 132), (2, True, 99), (4, False, 164), (5, False, 196)]
    for (t, corr, earliest) in order:
        cur = max(cur, earliest)
        if corr: cs_at(cur - 5, t, 1)
        L = epi(t, corr)
        i = 0
        while i < len(L):
            if cur in busy: cur += 1; continue
            for it in L[i:i+FPS]: fillq[cur].append(it)
            i += FPS; cur += 1
    assert cur <= NS, cur
    tail = epi(6, False)
    for m in range(LA): read(m)
    last_mfma_pos = {}
    def pos(): return len(a.lines)
    seen = set()
    def emit_fill(item):
        ins = item[0]; tile = item[1]
        if len(item) > 2:
            n = lg.wait_for({item[2]})
            if n < 15 and ("w", item[2]) not in seen:
                a(f"s_waitcnt lgkmcnt({n})"); seen.add(("w", item[2]))
        if tile is not None:
            d = pos() - last_mfma_pos[tile]
            if d < 13:
                a(f"s_nop {13 - d - 1}")
        a(ins)
        if "buffer_store" in ins: vm.issue(("ST", tile if tile is not None else 0))
    for m, (s, t) in enumerate(slots):
        need = set()
        if s not in seen:
            seen.add(s); need.add(("A", s))
        if m == m0: need.add(("S", 0))
        w = ""
        if m % 2 == 0:
            tags = {("F", m)} | ({("F", m + 1)} if m + 1 < NS else set())
            w = f"lgkmcnt({min(15, lg.wait_for(tags))})"
        if need: w = f"vmcnt({min(63, vm.wait_for(need))}) " + w
        if w: a(f"s_waitcnt {w}")
        cc = "0" if (s == 0 and t < NT1) else vr(accof(t), 16)
        a(f"v_mfma_f32_32x32x16_bf16 {vr(accof(t),16)}, {vr(BF+4*(m%NB),4)}, a[{4*s}:{4*s+3}], {cc}")
        last_mfma_pos[t] = pos() - 1
        if os.environ.get("FST") and m in (0, 64, 128, 192): stamp_mid(a, {0: 0, 64: 2, 128: 3, 192: 4}[m])
        for f in loadq[m]: f()
        for item in fillq[m]: emit_fill(item)
        if m + LA < NS:
            if (m + LA) in cfirst:
                cn = cfirst.index(m + LA)
                tags = {('B', cn)}
                if cn == 7:
                    tags |= {("ST", 0), ("ST", 1), ("ST", 2), ("ST", 3)}
                    assert all(tg in vm.ops for tg in tags) and vm.ops.count(("ST", 0)) == 2
                a(f"s_waitcnt vmcnt({min(63, vm.wait_for(tags))})\ns_barrier")
                if cn == 7:
                    l = a.newlabel(name + "_es")
                    a(f"""s_cmp_lg_u32 s{sWAVE}, 0
                    s_cbranch_scc1 {l}
                    v_mov_b32 v{VT}, 0
                    v_mov_b32 v{VT+1}, 1
                    s_and_b32 s43, s{sFLG}, 0xffffff80
                    s_add_u32 s43, s43, 8192
                    s_mov_b64 exec, 1
                    buffer_atomic_add v{VT+1}, v{VT}, s[{sWS}:{sWS+3}], s43 offen sc1
                    s_mov_b64 exec, -1""")
                    a.label(l)
            read(m + LA)
        else:
            a("s_nop 0")
        for (tt, cb) in csreadq[m]:
            for g in range(4):
                a(f"ds_read_b128 v[{cb+4*g}:{cb+4*g+3}], v{T+5} offset:{128*tt+32*g}")
                lg.issue(("C", tt))
    if os.environ.get("STSET"): stamp_mid(a, 0)
    a(f"""s_lshr_b32 s{sPOLL}, s{D.sRB}, 1
    s_lshl_b32 s{sPOLL}, s{sPOLL}, 7
    s_add_u32 s{sPOLL}, s{sPOLL}, {WS_FLAG + 3*4096}""")
    for item in tail: emit_fill(item)
    poll(a, name)
    a(f"s_sub_u32 s{sPOLL}, s{sPOLL}, 8192")
    D.late = (name, 16)
    emit_ffn1.down = D
    return LDS

def emit_qkv(a, name):
    ACC = 0; BF = 48; BQ = 84; BK = 100; AVv = 116; BV = 132
    AR = 148; AD = 20
    SR = AVv; CP = BV; VB0 = 230; VB1 = 231; T = 232
    vMEAN, vRSTD, vNB, vRQ = 248, 249, 250, 251
    CS_OFF = CSQ_OFF; ST_OFF = STQ_OFF
    LDS = ST_OFF + 1024
    sRB, sCB, sRG = 24, 25, 27
    sM0, sWOFF, sAOFF = 30, 31, 32
    map16(a, QMAP, sRB, sCB, 34)
    a(f"""s_lshl_b32 s{sRG}, s{sRB}, 2
    s_add_u32 s{sRG}, s{sRG}, s{sWAVE}
    s_mul_i32 s{sM0}, s{sWAVE}, 3072
    s_mul_i32 s{sWOFF}, s{sCB}, 98304
    s_add_u32 s{sWOFF}, s{sWOFF}, s{sM0}
    s_add_u32 s{sWOFF}, s{sWOFF}, {WS_WQKV}
    s_lshl_b32 s{sAOFF}, s{sRG}, 15
    s_add_u32 s{sAOFF}, s{sAOFF}, {WS_X2}
    s_lshl_b32 s{sPOLL}, s{sRB}, 7
    s_add_u32 s{sPOLL}, s{sPOLL}, {WS_FLAG + 8192 + (2048 if GO else 0)}""")
    def bdma(c):
        a(f"s_mov_b32 m0, s{sM0}\ns_add_u32 s{sM0}, s{sM0}, 12288")
        for j in range(3):
            a(f"buffer_load_dwordx4 v{VA}, s[{sWS}:{sWS+3}], s{sWOFF} offen offset:{1024*j} lds")
        a(f"s_add_u32 s{sWOFF}, s{sWOFF}, 12288")
    bdma(0); bdma(1)
    signal(a, name, 6, GO)
    a(f"""v_and_b32 v{T}, 31, v{VLANE}
    v_lshrrev_b32 v{T+1}, 5, v{VLANE}
    v_lshlrev_b32 v{T+2}, 11, v{T+1}
    v_lshl_add_u32 v{T+2}, v{T}, 3, v{T+2}
    s_lshl_b32 s34, s{sRG}, 12
    s_add_u32 s34, s34, {WS_ST2}
    s_lshl_b32 s36, s{sWAVE}, 6
    v_add_u32 v{T+3}, s36, v{VLANE}
    v_lshlrev_b32 v{T+13}, 5, v{T+3}
    s_mul_i32 s35, s{sCB}, 3072
    s_add_u32 s35, s35, {WS_CSQ}
""")
    vm = VmTracker()
    for c in range(2, 8):
        bdma(c)
        for _ in range(3): vm.issue(("B", c))
    a(f"""v_mov_b32 v{VB0}, v{VA}
    v_add_u32 v{VB1}, 49152, v{VA}
    v_lshlrev_b32 v{T+3}, 2, v{T+3}
    v_add_u32 v{T+3}, {CS_OFF}, v{T+3}
    s_lshl_b32 s36, s{sWAVE}, 8
    s_add_u32 s35, s36, {ST_OFF}
    v_lshl_add_u32 v{T+4}, v{T}, 2, s35
    v_lshl_add_u32 v{T+5}, v{T+1}, 4, s35
    v_lshlrev_b32 v{T+6}, 4, v{T+1}
    v_add_u32 v{T+6}, {CS_OFF}, v{T+6}
    v_lshlrev_b32 v{T+7}, 2, v{T}
    v_add_u32 v{T+7}, {CS_OFF+256}, v{T+7}
    v_bfe_u32 v{T+10}, v{VLANE}, 4, 1
    v_lshlrev_b32 v{T+10}, 16, v{T+10}
    v_and_b32 v{T+11}, 15, v{VLANE}
    v_lshlrev_b32 v{T+11}, 4, v{T+11}
    v_lshlrev_b32 v{T+12}, 8, v{T+1}
    v_add3_u32 v{T+10}, v{T+10}, v{T+11}, v{T+12}
    v_lshrrev_b32 v{T+11}, 2, v{VLANE}
    s_lshl_b32 s37, s{sCB}, 17
    s_lshl_b32 s38, s{sRG}, 10
    s_add_u32 s37, s37, s38
    s_add_u32 s39, s37, {WS_V}
    s_add_u32 s40, s37, {WS_Q}
    s_add_u32 s41, s40, 65536
    s_add_u32 s42, s37, {WS_K}
    s_add_u32 s43, s42, 65536
    s_lshl_b32 s44, s{sCB}, 10
    s_lshl_b32 s45, s{sRG}, 3
    s_add_u32 s44, s44, s45
    s_add_u32 s44, s44, {WS_KMAX}
    s_waitcnt vmcnt(18)""")
    for g in range(4):
        a(f"ds_read_b128 v[{BQ+4*g}:{BQ+4*g+3}], v{T+6} offset:{32*g}")
        a(f"ds_read_b128 v[{BK+4*g}:{BK+4*g+3}], v{T+6} offset:{128+32*g}")
    a(f"ds_read_b32 v{T+9}, v{T+7}")
    poll(a, name)
    if not os.environ.get('FST') and not os.environ.get('HST'): stamp_mid(a, 4)
    def aload(s):
        r = AR + 4 * (s % AD)
        a(f"buffer_load_dwordx4 v[{r}:{r+3}], v{VA}, s[{sWS}:{sWS+3}], s{sAOFF} offen offset:{(s%4)*1024} sc1")
        if s % 4 == 3:
            a(f"s_add_u32 s{sAOFF}, s{sAOFF}, 4096")
        vm.issue(("A", s))
    APRE = 13
    for s in range(APRE): aload(s)
    def reads(s):
        buf = BF + (s % 3) * 12
        base = VB0 if s < 16 else VB1
        off = (s % 16) * 3072
        for t in range(3):
            a(f"ds_read_b128 v[{buf+4*t}:{buf+4*t+3}], v{base} offset:{off+1024*t}")
    a("s_waitcnt lgkmcnt(0)")
    reads(0)
    E2 = 216
    for s in range(32):
        wA = vm.wait_for({("A", s)})
        if s == 14: wA = min(wA, vm.wait_for({("S", 0)}))
        if s + 1 < 32:
            if s + 1 == 8:
                a("s_barrier")
            reads(s + 1)
            a(f"s_waitcnt vmcnt({wA}) lgkmcnt(3)")
        else:
            a(f"s_waitcnt vmcnt({wA}) lgkmcnt(0)")
        buf = BF + (s % 3) * 12
        af = AR + 4 * (s % AD)
        def C(t): return "0" if s == 0 else vr(ACC + 16 * t, 16)
        a(f"v_mfma_f32_32x32x16_bf16 {vr(ACC,16)}, {vr(buf,4)}, {vr(af,4)}, {C(0)}")
        if s + APRE < 32: aload(s + APRE)
        a(f"v_mfma_f32_32x32x16_bf16 {vr(ACC+16,16)}, {vr(buf+4,4)}, {vr(af,4)}, {C(1)}")
        if s < 4:
            for i in (2 * s, 2 * s + 1):
                a(f"buffer_load_dwordx2 v[{SR+2*i}:{SR+2*i+1}], v{T+2}, s[{sWS}:{sWS+3}], s34 offen offset:{256*i} sc1")
                vm.issue(("S", 0))
        a(f"v_mfma_f32_32x32x16_bf16 {vr(ACC+32,16)}, {vr(af,4)}, {vr(buf+8,4)}, {C(2)}")
        if s == 14:
            emit_stats_final(a, SR, BV + 8, vMEAN, vRSTD)
            a(f"""v_mul_f32 v{vNB}, v{vMEAN}, v{vRSTD}
            v_sub_f32 v{vNB}, 0, v{vNB}
            v_mul_f32 v{vRQ}, {hex(f32bits(QSCALE))}, v{vRSTD}
            ds_write_b32 v{T+4}, v{vRSTD}
            ds_write_b32 v{T+4}, v{vNB} offset:128
            v_mul_f32 v{T+8}, {hex(f32bits(QSCALE))}, v{vNB}""")
        if s == 16:
            for g in range(4):
                a(f"ds_read_b128 v[{AVv+4*g}:{AVv+4*g+3}], v{T+5} offset:{32*g}")
                a(f"ds_read_b128 v[{BV+4*g}:{BV+4*g+3}], v{T+5} offset:{128+32*g}")
        if s == 18:
            for i in range(16): a(f"v_mul_f32 v{BQ+i}, v{BQ+i}, v{T+8}")
        if s == 20:
            for i in range(16): a(f"v_mul_f32 v{BK+i}, v{BK+i}, v{vNB}")
        if s == 22:
            for i in range(16): a(f"v_mul_f32 v{BV+i}, v{BV+i}, v{T+9}")
    P = AR
    if os.environ.get("STSET"): stamp_mid(a, 3)
    a("s_nop 7\ns_nop 2")
    for i in range(16):
        a(f"v_fma_f32 v{ACC+16+i}, v{ACC+16+i}, v{vRSTD}, v{BK+i}")
    NA, NB = T + 12, T + 13
    a(f"v_mul_f32 v{NA}, v{ACC+16}, v{ACC+16}\nv_mul_f32 v{NB}, v{ACC+24}, v{ACC+24}")
    for i in range(1, 8):
        a(f"v_fmac_f32 v{NA}, v{ACC+16+i}, v{ACC+16+i}\nv_fmac_f32 v{NB}, v{ACC+24+i}, v{ACC+24+i}")
    a(f"v_mov_b32 v{T+14}, v{NA}\nv_mov_b32 v{T+15}, v{NB}")
    for i in range(8):
        a(f"v_cvt_pk_bf16_f32 v{P+i}, v{ACC+16+2*i}, v{ACC+16+2*i+1}")
    a(f"""v_permlane32_swap_b32 v{NA}, v{T+14}
    v_permlane32_swap_b32 v{NB}, v{T+15}
    buffer_store_dwordx4 v[{P}:{P+3}], v{VA}, s[{sWS}:{sWS+3}], s42 offen sc1
    buffer_store_dwordx4 v[{P+4}:{P+7}], v{VA}, s[{sWS}:{sWS+3}], s43 offen sc1
    v_add_f32 v{NA}, v{NA}, v{T+14}
    v_add_f32 v{NB}, v{NB}, v{T+15}""")
    dpps = ["quad_perm:[1,0,3,2]", "quad_perm:[2,3,0,1]", "row_half_mirror", "row_mirror"]
    for i in range(16):
        a(f"v_fma_f32 v{ACC+i}, v{ACC+i}, v{vRQ}, v{BQ+i}")
        if i % 4 == 3:
            d = dpps[i // 4]
            a(f"v_max_f32_dpp v{NA}, v{NA}, v{NA} {d} row_mask:0xf bank_mask:0xf\nv_max_f32_dpp v{NB}, v{NB}, v{NB} {d} row_mask:0xf bank_mask:0xf")
    for i in range(8):
        a(f"v_cvt_pk_bf16_f32 v{P+8+i}, v{ACC+2*i}, v{ACC+2*i+1}")
    a(f"""buffer_store_dwordx4 v[{P+8}:{P+11}], v{VA}, s[{sWS}:{sWS+3}], s40 offen sc1
    buffer_store_dwordx4 v[{P+12}:{P+15}], v{VA}, s[{sWS}:{sWS+3}], s41 offen sc1""")
    for i in range(16):
        a(f"v_fma_f32 v{ACC+32+i}, v{ACC+32+i}, v{AVv+i}, v{BV+i}")
    for i in range(8):
        a(f"v_cvt_pk_bf16_f32 v{P+16+i}, v{ACC+32+2*i}, v{ACC+32+2*i+1}")
    a(f"""buffer_store_dwordx4 v[{P+16}:{P+19}], v{T+10}, s[{sWS}:{sWS+3}], s39 offen sc1
    buffer_store_dwordx4 v[{P+20}:{P+23}], v{T+10}, s[{sWS}:{sWS+3}], s39 offen offset:512 sc1
    s_mov_b64 exec, 0x10001
    buffer_store_dword v{NA}, v{T+11}, s[{sWS}:{sWS+3}], s44 offen
    buffer_store_dword v{NB}, v{T+11}, s[{sWS}:{sWS+3}], s44 offen offset:512""")
    return LDS
```
